```python
import torch

def _softmax(x, axis=-1):
    return torch.softmax(x, dim=axis)
def _gelu(x):
    return torch.nn.functional.gelu(x, approximate="tanh")
def _silu(x):
    return torch.nn.functional.silu(x)
def _sigmoid(x):
    return torch.sigmoid(x)
def _layernorm(x, axis=-1, eps=1e-5):
    m = x.mean(dim=axis, keepdim=True)
    v = x.var(dim=axis, keepdim=True, unbiased=False)
    return (x - m) / torch.sqrt(v + eps)
def _scatter_add(tgt, idx, src, axis=0):
    return tgt.clone().index_add_(axis, idx, src)
def _segment_sum(src, seg, n):
    out = torch.zeros((n,) + src.shape[1:], dtype=src.dtype)
    return out.index_add_(0, seg, src)
def _pad(x, pw):
    flat = tuple(v for pair in reversed(pw) for v in pair)
    return torch.nn.functional.pad(x, flat)

kernel_name = 'interleave_layers__sliding_local_dilated__dense_activation_squared_relu__prompt'

def setup_inputs():

    _w = (lambda a: (lambda t: t.to(torch.bfloat16) if t.is_floating_point() else t)(torch.as_tensor(a)))
    def _A_setup():
        B, S, D = 1, 2048, 640
        return {
            "x": _w((lambda *s: torch.randn(*s, dtype=torch.bfloat16) * 0.05)(B, S, D)),
            "wqkv": _w((lambda *s: torch.randn(*s, dtype=torch.bfloat16) * 0.05)(D, 3 * D)),
            "wo": _w((lambda *s: torch.randn(*s, dtype=torch.bfloat16) * 0.05)(D, D)),
        }
    _A_in = _A_setup()

    def _B_setup():
        B, S, D, F = 1, 2048, 640, 1728
        return {
            "x": _w((lambda *s: torch.randn(*s, dtype=torch.bfloat16) * 0.05)(B, S, D)),
            "w1": _w((lambda *s: torch.randn(*s, dtype=torch.bfloat16) * 0.05)(D, F)),
            "b1": _w((lambda *s: torch.randn(*s, dtype=torch.bfloat16) * 0.2)(F)),
            "w2": _w((lambda *s: torch.randn(*s, dtype=torch.bfloat16) * 0.05)(F, D)),
            "b2": _w((lambda *s: torch.randn(*s, dtype=torch.bfloat16) * 0.8)(D)),
        }
    _B_in = _B_setup()

    return {
        "A_x": _A_in["x"],
        "A_wqkv": _A_in["wqkv"],
        "A_wo": _A_in["wo"],
        "B_x": _B_in["x"],
        "B_w1": _B_in["w1"],
        "B_b1": _B_in["b1"],
        "B_w2": _B_in["w2"],
        "B_b2": _B_in["b2"],
    }

def reference(A_x, A_wqkv, A_wo, B_x, B_w1, B_b1, B_w2, B_b2):
    def _A_ref(x, wqkv, wo):
        B, S, D = x.shape
        H = 32; Dh = D // H
        W, dil = 8, 2
        qkv = (lambda x, *d: x.permute(*d))((x @ wqkv).reshape(B, S, 3, H, Dh), 2, 0, 3, 1, 4)
        q, k, v = qkv[0], qkv[1], qkv[2]
        scale = Dh ** -0.5
        pos = torch.arange(S)
        off = torch.arange(W) * dil
        idx = pos[:, None] - off[None, :]
        mask = idx >= 0
        idx_c = torch.where(mask, idx, 0).reshape(-1)
        kg = k[:, :, idx_c, :].reshape(B, H, S, W, Dh)
        vg = v[:, :, idx_c, :].reshape(B, H, S, W, Dh)
        logits = torch.einsum("bhsd,bhswd->bhsw", q, kg) * scale
        logits = torch.where(mask[None, None, :, :], logits, -1e9)
        attn = _softmax(logits, axis=-1)
        o = torch.einsum("bhsw,bhswd->bhsd", attn, vg)
        return (lambda x, *d: x.permute(*d))(o, 0, 2, 1, 3).reshape(B, S, D) @ wo

    def _B_ref(x, w1, b1, w2, b2):
        h = torch.einsum("bsd,df->bsf", x, w1) + b1
        zero = torch.zeros_like(h)
        r = torch.where(h > zero, h, zero)
        h = r * r
        out = torch.einsum("bsf,fd->bsd", h, w2) + b2
        return out

    x = A_x
    x = x + _A_ref(_layernorm(x, axis=-1), A_wqkv, A_wo)
    x = x + _B_ref(_layernorm(x, axis=-1), B_w1, B_b1, B_w2, B_b2)
    x = x + _A_ref(_layernorm(x, axis=-1), A_wqkv, A_wo)
    x = x + _B_ref(_layernorm(x, axis=-1), B_w1, B_b1, B_w2, B_b2)
    return x
```

```python
import re

_REG_RE = re.compile(r'^(-|abs\()?([vas])(\d+|\[(\d+):(\d+)\])\)?$')

TRANS = ('v_exp_f32', 'v_log_f32', 'v_rcp_f32', 'v_rsq_f32', 'v_sqrt_f32', 'v_sin_f32', 'v_cos_f32')


def parse_reg(tok):
    tok = tok.strip()
    if tok == 'vcc':
        return [('s', 106), ('s', 107)]
    if tok == 'exec':
        return [('s', 126), ('s', 127)]
    if tok == 'm0':
        return [('s', 124)]
    m = _REG_RE.match(tok)
    if not m:
        return []
    kind = m.group(2)
    if m.group(4) is not None:
        return [(kind, i) for i in range(int(m.group(4)), int(m.group(5)) + 1)]
    return [(kind, int(m.group(3)))]


class Ins:
    __slots__ = ('text', 'op', 'dst', 'src', 'srcs', 'kind', 'mods', 'states')

    def __init__(self, text):
        self.text = text
        t = text.split(';')[0].strip()
        parts = t.split(None, 1)
        self.op = parts[0]
        rest = parts[1] if len(parts) > 1 else ''
        bmods = ' '.join(re.findall(r'\s(?:op_sel|op_sel_hi|neg_lo|neg_hi):\[[^\]]*\]', rest))
        rest = re.sub(r'\s(?:op_sel|op_sel_hi|neg_lo|neg_hi):\[[^\]]*\]', '', rest)
        ops = [o.strip() for o in rest.split(',')] if rest else []
        self.mods = bmods
        if ops:
            last = ops[-1].split(None, 1)
            ops[-1] = last[0]
            if len(last) > 1:
                self.mods += ' ' + last[1]
        clean = []
        for o in ops:
            clean.append(o)
        regs = [parse_reg(o) for o in clean]
        op = self.op
        self.dst = []
        self.srcs = []
        self.states = 1
        if op == 's_nop':
            self.kind = 'nop'
            self.states = int(ops[0], 0) + 1
        elif op.startswith('v_mfma'):
            self.kind = 'mfma'
            self.dst = regs[0]
            self.srcs = regs[1:4]
        elif op.startswith('v_permlane'):
            self.kind = 'valu'
            self.dst = regs[0] + regs[1]
            self.srcs = [regs[0], regs[1]]
        elif op.startswith('v_'):
            self.kind = 'valu'
            self.dst = regs[0]
            self.srcs = regs[1:]
            if op.startswith('v_fmac') or op.startswith('v_dot2c'):
                self.srcs = self.srcs + [regs[0]]
            if op.startswith('v_cndmask') and len(regs) == 3:
                self.srcs = self.srcs + [parse_reg('vcc')]
        elif op.startswith('buffer_load') or op.startswith('global_load'):
            self.kind = 'vmem'
            if ' lds' in (' ' + self.mods) or '_lds_' in op:
                self.srcs = regs + [parse_reg('m0')]
            else:
                self.dst = regs[0]
                self.srcs = regs[1:]
        elif op.startswith('buffer_store') or op.startswith('global_store'):
            self.kind = 'vmem'
            self.srcs = regs
        elif op.startswith('buffer_atomic') or op.startswith('global_atomic'):
            self.kind = 'vmem'
            self.srcs = regs
            if 'sc0' in self.mods:
                self.dst = regs[0]
        elif op.startswith('buffer_'):
            self.kind = 'vmem'
        elif op.startswith('ds_read') or op.startswith('ds_bpermute') or op.startswith('ds_swizzle'):
            self.kind = 'ds'
            self.dst = regs[0]
            self.srcs = regs[1:]
        elif op.startswith('ds_'):
            self.kind = 'ds'
            self.srcs = regs
        elif op.startswith('s_'):
            self.kind = 'salu'
            nodst = ('s_cmp', 's_waitcnt', 's_barrier', 's_branch', 's_cbranch', 's_bitcmp', 's_sleep', 's_setprio',
                     's_endpgm', 's_setpc')
            if any(op.startswith(p) for p in nodst):
                self.srcs = regs
            else:
                self.dst = regs[0] if regs else []
                self.srcs = regs[1:]
                if 'saveexec' in op:
                    self.dst = self.dst + parse_reg('exec')
        else:
            raise ValueError('unknown instruction ' + text)
        self.src = [r for s in self.srcs for r in s]


def need_states(p, c):
    n = 0
    pd = set(p.dst)
    cs = set(c.src)
    cd = set(c.dst)
    raw = pd & cs
    waw = pd & cd
    if p.kind == 'valu':
        vraw = {r for r in raw if r[0] in 'va'}
        sraw = {r for r in raw if r[0] == 's'}
        if vraw:
            if c.kind == 'mfma':
                n = max(n, 2)
            if c.op.startswith('v_permlane') or 'dpp' in c.op or 'row_' in c.mods or 'quad_perm' in c.mods:
                n = max(n, 2)
            if c.op.startswith('v_readlane') or c.op.startswith('v_readfirstlane'):
                n = max(n, 1)
            if p.op in TRANS and c.kind == 'valu' and c.op not in TRANS:
                n = max(n, 1)
            if p.op in TRANS:
                n = max(n, 1)
        if p.op.startswith('v_dot2'):
            if c.op == p.op:
                ab = set(c.srcs[0]) | set(c.srcs[1])
                if pd & ab:
                    n = max(n, 3)
            elif raw or waw:
                n = max(n, 3)
        if sraw:
            if c.kind == 'valu':
                n = max(n, 4 if c.op.startswith('v_readlane') or c.op.startswith('v_writelane') else 2)
            if c.kind == 'vmem':
                n = max(n, 5)
            if c.kind == 'salu':
                n = max(n, 1)
    elif p.kind == 'mfma':
        passes = 8 if '32x32' in p.op else 4
        full = {4: 8, 8: 12}[passes]
        part = {4: 6, 8: 10}[passes]
        war = {4: 3, 8: 7}[passes]
        if c.kind == 'mfma':
            if pd & (set(c.srcs[0]) | set(c.srcs[1])):
                n = max(n, full)
            sc = c.srcs[2]
            if pd & set(sc):
                if list(sc) != list(p.dst):
                    n = max(n, part)
            elif waw:
                n = max(n, full)
        else:
            if raw or waw:
                n = max(n, full)
            if c.kind == 'valu' and (set(p.srcs[2]) & cd):
                n = max(n, war)
    elif p.kind == 'salu':
        if ('s', 124) in pd and c.kind == 'vmem' and ('s', 124) in cs:
            n = max(n, 1)
    elif p.kind == 'vmem':
        if ('store' in p.op) and (p.op.endswith('x4') or p.op.endswith('x3')):
            data = set(p.srcs[0]) if p.op.startswith('buffer') else set(p.srcs[1])
            if data & cd:
                n = max(n, 2)
    return n


class Asm:
    def __init__(self):
        self.lines = []
        self.win = []
        self.vm = []
        self.lg = []
        self.nlabel = 0
        self.nins = 0

    def raw(self, text):
        self.lines.append(text)

    def comment(self, text):
        self.lines.append('    ; ' + text)

    def label(self, name):
        self.fence()
        self.lines.append(name + ':')

    def fence(self):
        need = 0
        dist = 0
        for p in reversed(self.win):
            mx = {'mfma': 12 if '32x32' in p.op else 8, 'valu': 5, 'vmem': 2, 'salu': 1}.get(p.kind, 0)
            need = max(need, mx - dist)
            dist += p.states
        if need > 0:
            self._emit(Ins('s_nop %d' % (need - 1)))
        self.win = []

    def newlabel(self, base='L'):
        self.nlabel += 1
        return '%s_%d' % (base, self.nlabel)

    def _emit(self, ins):
        self.lines.append('    ' + ins.text)
        self.win.append(ins)
        if len(self.win) > 16:
            self.win.pop(0)
        self.nins += 1

    def __call__(self, text, tag=None):
        ins = Ins(text)
        need = 0
        dist = 0
        for p in reversed(self.win):
            n = need_states(p, ins)
            need = max(need, n - dist)
            dist += p.states
            if dist > 14:
                break
        if need > 0:
            self._emit(Ins('s_nop %d' % (need - 1)))
        self._emit(ins)
        if ins.kind == 'vmem':
            self.vm.append(tag)
        elif ins.kind == 'ds':
            self.lg.append(tag)
        if ins.op.startswith('s_branch') or ins.op.startswith('s_cbranch') or ins.op.startswith('s_setpc'):
            pass
        return ins

    def wait_vm(self, tag):
        tags = tag if isinstance(tag, (list, tuple, set)) else [tag]
        idx = -1
        for i, t in enumerate(self.vm):
            if t in tags:
                idx = i
        if idx < 0:
            return
        n = len(self.vm) - 1 - idx
        n = min(n, 63)
        self('s_waitcnt vmcnt(%d)' % n)
        self.vm = self.vm[len(self.vm) - n:] if n > 0 else []

    def wait_lg(self, tag):
        tags = tag if isinstance(tag, (list, tuple, set)) else [tag]
        idx = -1
        for i, t in enumerate(self.lg):
            if t in tags:
                idx = i
        if idx < 0:
            return
        n = len(self.lg) - 1 - idx
        n = min(n, 15)
        self('s_waitcnt lgkmcnt(%d)' % n)
        self.lg = self.lg[len(self.lg) - n:] if n > 0 else []

    def wait_vm_all(self):
        self('s_waitcnt vmcnt(0)')
        self.vm = []

    def wait_lg_all(self):
        self('s_waitcnt lgkmcnt(0)')
        self.lg = []

    def text(self):
        return '\n'.join(self.lines) + '\n'


def vr(base, n=1, k='v'):
    if n == 1:
        return '%s%d' % (k, base)
    return '%s[%d:%d]' % (k, base, base + n - 1)


def ar(base, n=1):
    return vr(base, n, 'a')


def sr(base, n=1):
    return vr(base, n, 's')
```

```python
import sys, math
sys.path.insert(0, 'work')
from asmlib import Asm, vr, ar, sr

KNAME = 'interleave_layers__sliding_local_dilated__dense_activation_squared_relu__prompt'

WS_SIZE = 268435456
WQKV_T = 0
WO_T = WQKV_T + 16 * 163840
W1_T = WO_T + 8 * 20 * 5 * 1024
W2_T = W1_T + 54 * 20 * 2 * 1024
XSZ = 16 * 20 * 8 * 1024
X0 = W2_T + 8 * 54 * 5 * 1024
XB = [X0 + i * XSZ for i in range(4)]
OB = [X0 + (4 + i) * XSZ for i in range(2)]
HSZ = 16 * 54 * 8 * 1024
HB = [X0 + 6 * XSZ + i * HSZ for i in range(2)]
STSZ = 16 * 8 * 1024
ST0 = HB[1] + HSZ
STB = [ST0 + i * STSZ for i in range(4)]
WS_END = ST0 + 4 * STSZ

ONES = 0x3F803F80

S_WS = 4
S_A = 8
S_B = 12
S_TEAM, S_J, S_W = 16, 17, 18
S_IN, S_ST, S_OUT, S_RES, S_STO = 19, 20, 21, 22, 23
S_LAST = 24


def f32bits(x):
    import struct
    return struct.unpack('<I', struct.pack('<f', x))[0]


def kernel_begin(a, name):
    a.raw('.globl %s' % name)
    a.raw('.p2align 8')
    a.raw('.type %s,@function' % name)
    a.raw('%s:' % name)
    a.win = []
    a.vm = []
    a.lg = []


def prologue(a, endlabel, loads=()):
    a('s_cmp_ge_u32 s2, 256')
    a('s_cbranch_scc1 %s' % endlabel)
    a('s_load_dwordx2 s[4:5], s[0:1], 80')
    for (sb, off, nb) in loads:
        a('s_load_dwordx2 %s, s[0:1], %d' % (sr(sb, 2), off))
    a('v_lshrrev_b32 v1, 6, v0')
    a('v_and_b32 v0, 63, v0')
    a('v_readfirstlane_b32 s%d, v1' % S_W)
    a('v_lshlrev_b32 v1, 4, v0')
    a('s_and_b32 s3, s2, 7')
    a('s_lshr_b32 s%d, s2, 3' % S_J)
    a('s_lshr_b32 s%d, s%d, 4' % (S_TEAM, S_J))
    a('s_lshl_b32 s3, s3, 1')
    a('s_add_u32 s%d, s%d, s3' % (S_TEAM, S_TEAM))
    a('s_and_b32 s%d, s%d, 15' % (S_J, S_J))
    a('s_waitcnt lgkmcnt(0)')
    a('s_and_b32 s5, s5, 0xffff')
    a('s_mov_b32 s6, %d' % WS_SIZE)
    a('s_mov_b32 s7, 0x20000')
    for (sb, off, nb) in loads:
        a('s_and_b32 s%d, s%d, 0xffff' % (sb + 1, sb + 1))
        a('s_mov_b32 s%d, %d' % (sb + 2, nb))
        a('s_mov_b32 s%d, 0x20000' % (sb + 3))


def reduce_g(a, x, tmp):
    a('v_mov_b32 v%d, v%d' % (tmp, x))
    a('v_permlane16_swap_b32 v%d, v%d' % (x, tmp))
    a('v_add_f32 v%d, v%d, v%d' % (x, x, tmp))
    a('v_mov_b32 v%d, v%d' % (tmp, x))
    a('v_permlane32_swap_b32 v%d, v%d' % (x, tmp))
    a('v_add_f32 v%d, v%d, v%d' % (x, x, tmp))


def tile_scalars(a):
    a('s_and_b32 s25, s%d, 7' % S_J)
    a('s_lshr_b32 s26, s%d, 3' % S_J)
    a('s_lshl_b32 s26, s26, 2')
    a('s_add_u32 s26, s26, s%d' % S_W)
    a('s_and_b32 s27, s25, 1')
    a('s_mul_i32 s28, s25, 5')
    a('s_add_u32 s28, s28, s27')
    a('s_lshr_b32 s28, s28, 1')
    a('s_mul_i32 s29, s%d, 20' % S_TEAM)
    a('s_add_u32 s29, s29, s28')
    a('s_lshl_b32 s29, s29, 3')
    a('s_add_u32 s29, s29, s26')
    a('s_lshl_b32 s29, s29, 10')
    a('s_mul_i32 s30, s27, 24568')
    a('s_sub_u32 s30, 16384, s30')
    a('s_add_u32 s30, s30, s29')
    a('s_lshl_b32 s31, s%d, 3' % S_TEAM)
    a('s_add_u32 s31, s31, s26')
    a('s_lshl_b32 s31, s31, 10')
    a('s_lshr_b32 s3, s25, 1')
    a('s_lshl_b32 s3, s3, 8')
    a('s_add_u32 s31, s31, s3')
    a('s_lshl_b32 s3, s27, 3')
    a('s_add_u32 s31, s31, s3')
    a('s_mul_i32 s34, s25, 160')
    a('s_cmp_eq_u32 s27, 0')
    a('s_cselect_b32 s35, 128, 0')
    a('s_add_u32 s35, s35, s34')
    a('s_lshl_b32 s3, s27, 5')
    a('s_add_u32 s34, s34, s3')
    a('s_and_b32 s3, s%d, 7' % S_TEAM)
    a('s_lshl_b32 s3, s3, 7')
    a('s_lshl_b32 s32, s26, 4')
    a('s_add_u32 s3, s3, s32')
    a('s_lshl_b32 s3, s3, 1')
    a('s_lshr_b32 s32, s%d, 3' % S_TEAM)
    a('s_add_u32 s3, s3, s32')
    a('s_mul_i32 s3, s3, 1280')
    a('s_add_u32 s32, s3, s34')
    a('s_add_u32 s33, s3, s35')


def rowmajor_voff(a, dst, tmp):
    a('v_and_b32 v%d, 15, v0' % dst)
    a('v_mul_u32_u24 v%d, 2560, v%d' % (dst, dst))
    a('v_lshrrev_b32 v%d, 4, v0' % tmp)
    a('v_lshl_add_u32 v%d, v%d, 3, v%d' % (dst, tmp, dst))


def finish_tile(a, P, T, s_x, s_st):
    a('s_add_u32 s36, s%d, s29' % s_x)
    a('s_add_u32 s37, s36, 8192')
    a('s_add_u32 s38, s%d, s30' % s_x)
    a('buffer_store_dwordx4 %s, v1, s[4:7], s36 offen' % vr(P, 4))
    a('buffer_store_dwordx4 %s, v1, s[4:7], s37 offen' % vr(P + 4, 4))
    a('buffer_store_dwordx2 %s, v1, s[4:7], s38 offen' % vr(P + 8, 2))
    a('s_mov_b32 s39, 0x%x' % ONES)
    for i in range(10):
        a('v_dot2_f32_bf16 v%d, v%d, s39, %s' % (T, P + i, '0' if i == 0 else 'v%d' % T))
        a('v_dot2_f32_bf16 v%d, v%d, v%d, %s' % (T + 1, P + i, P + i, '0' if i == 0 else 'v%d' % (T + 1)))
    reduce_g(a, T, T + 2)
    reduce_g(a, T + 1, T + 3)
    a('s_add_u32 s36, s%d, s31' % s_st)
    a('s_mov_b64 exec, 0xffff')
    a('buffer_store_dwordx2 %s, v1, s[4:7], s36 offen' % vr(T, 2))
    a('s_mov_b64 exec, -1')


def qkv_sg(ch, hf):
    Q, K, V = 0, 1, 2
    if ch < 4:
        h, lo = ch >> 1, (ch & 1) * 2
        return Q * 10 + h * 5 + lo + hf
    if ch == 4:
        return Q * 10 + hf * 5 + 4
    if ch == 15:
        return 0
    h = (ch - 5) // 5
    c = (ch - 5) % 5
    if c < 2:
        return K * 10 + h * 5 + c * 2 + hf
    if c < 4:
        return V * 10 + h * 5 + (c - 2) * 2 + hf
    return (K if hf == 0 else V) * 10 + h * 5 + 4


def gen_prep(a):
    name = 'prep_kernel'
    kernel_begin(a, name)
    END = 'prep_end'
    a('s_cmp_ge_u32 s2, 256')
    a('s_cbranch_scc1 %s' % END)
    a('s_load_dwordx2 s[40:41], s[0:1], 8')
    a('s_load_dwordx2 s[42:43], s[0:1], 16')
    a('s_load_dwordx2 s[44:45], s[0:1], 32')
    a('s_load_dwordx2 s[46:47], s[0:1], 48')
    prologue(a, END, loads=[(S_B, 0, 2048 * 1280)])
    tile_scalars(a)
    rowmajor_voff(a, 2, 3)
    for s in range(4):
        a('buffer_load_dwordx2 %s, v2, s[12:15], s32 offen offset:%d' % (vr(40 + 2 * s, 2), 32 * s))
    a('buffer_load_dwordx2 %s, v2, s[12:15], s33 offen' % vr(48, 2))
    a('s_lshl_b32 s48, s2, 2')
    a('s_add_u32 s48, s48, s%d' % S_W)
    a('s_lshl_b32 s49, s%d, 13' % S_W)
    a('v_lshrrev_b32 v4, 2, v0')
    a('v_and_b32 v5, 3, v0')
    LG = 'prep_generic'
    LX = 'prep_x'
    a('s_cmp_ge_u32 s48, 320')
    a('s_cbranch_scc1 %s' % LG)
    a('s_mul_i32 s50, s48, 3277')
    a('s_lshr_b32 s50, s50, 16')
    a('s_mul_i32 s51, s50, 20')
    a('s_sub_u32 s51, s48, s51')
    a('s_mov_b32 s8, s40')
    a('s_and_b32 s9, s41, 0xffff')
    a('s_mov_b32 s10, %d' % (640 * 3840))
    a('s_mov_b32 s11, 0x20000')
    a('v_and_b32 v6, 15, v0')
    a('v_lshrrev_b32 v7, 4, v0')
    a('v_mul_u32_u24 v7, 3840, v7')
    a('v_lshl_add_u32 v7, v6, 4, v7')
    a('v_mov_b32 v8, 1200')
    a('v_cmp_le_u32 vcc, 5, v6')
    a('v_cndmask_b32 v9, 0, v8, vcc')
    a('v_add_u32 v7, v7, v9')
    a('v_cmp_le_u32 vcc, 10, v6')
    a('v_cndmask_b32 v9, 0, v8, vcc')
    a('v_add_u32 v7, v7, v9')
    a('s_mul_i32 s52, s51, %d' % (32 * 3840))
    a('s_mul_i32 s3, s50, 80')
    a('s_add_u32 s52, s52, s3')
    for i in range(8):
        a('s_add_u32 m0, s49, %d' % (1024 * i))
        a('s_add_u32 s53, s52, %d' % (15360 * i))
        a('buffer_load_dwordx4 v7, s[8:11], s53 offen lds')
    a('v_lshlrev_b32 v10, 8, v4')
    a('v_add_u32 v10, s49, v10')
    a('v_lshlrev_b32 v11, 3, v5')
    a('s_mul_i32 s54, s50, 163840')
    a('s_lshl_b32 s3, s51, 11')
    a('s_add_u32 s54, s54, s3')
    a('s_add_u32 s54, s54, %d' % WQKV_T)
    a.wait_vm_all()
    for T in range(8):
        b, hf = T >> 1, T & 1
        const = 0
        for c in range(4):
            const |= qkv_sg(4 * b + c, hf) << (8 * c)
        a('s_mov_b32 s3, 0x%x' % const)
        a('v_bfe_u32 v12, s3, v11, 8')
        a('v_lshl_add_u32 v12, v12, 3, v10')
        a('ds_read_b64_tr_b16 %s, v12' % vr(64 + 4 * T, 2))
        a('ds_read_b64_tr_b16 %s, v12 offset:4096' % vr(66 + 4 * T, 2))
    a.wait_lg_all()
    for T in range(8):
        a('s_add_u32 s55, s54, %d' % ((T >> 1) * 40960 + (T & 1) * 1024))
        a('buffer_store_dwordx4 %s, v1, s[4:7], s55 offen' % vr(64 + 4 * T, 4))
    a('s_branch %s' % LX)
    a.label(LG)
    a('s_sub_u32 s48, s48, 320')
    a('s_lshl_b32 s48, s48, 1')
    a('s_cmp_ge_u32 s48, 1280')
    a('s_cbranch_scc1 %s' % LX)
    a('v_lshrrev_b32 v6, 3, v0')
    a('v_and_b32 v7, 7, v0')
    a('v_lshlrev_b32 v7, 4, v7')
    a('v_lshlrev_b32 v10, 7, v4')
    a('v_lshl_add_u32 v10, v5, 3, v10')
    a('v_add_u32 v10, s49, v10')
    for uu in range(2):
        sb = 56 + 8 * uu
        a('s_add_u32 s%d, s48, %d' % (sb, uu))
        L1 = a.newlabel('pg_w1')
        L2 = a.newlabel('pg_w2')
        LD = a.newlabel('pg_go')
        a('s_cmp_ge_u32 s%d, 740' % sb)
        a('s_cbranch_scc1 %s' % L2)
        a('s_cmp_ge_u32 s%d, 200' % sb)
        a('s_cbranch_scc1 %s' % L1)
        a('s_mov_b32 s8, s42')
        a('s_and_b32 s9, s43, 0xffff')
        a('s_mov_b32 s10, %d' % (640 * 1280))
        a('s_mov_b32 s%d, 10' % (sb + 1))
        a('s_mov_b32 s%d, 6554' % (sb + 2))
        a('s_mov_b32 s%d, 1280' % (sb + 3))
        a('s_mov_b32 s%d, %d' % (sb + 4, WO_T))
        a('s_mov_b32 s%d, 20' % (sb + 5))
        a('s_branch %s' % LD)
        a.label(L1)
        a('s_sub_u32 s%d, s%d, 200' % (sb, sb))
        a('s_mov_b32 s8, s44')
        a('s_and_b32 s9, s45, 0xffff')
        a('s_mov_b32 s10, %d' % (640 * 3456))
        a('s_mov_b32 s%d, 27' % (sb + 1))
        a('s_mov_b32 s%d, 2428' % (sb + 2))
        a('s_mov_b32 s%d, 3456' % (sb + 3))
        a('s_mov_b32 s%d, %d' % (sb + 4, W1_T))
        a('s_mov_b32 s%d, 0' % (sb + 5))
        a('s_branch %s' % LD)
        a.label(L2)
        a('s_sub_u32 s%d, s%d, 740' % (sb, sb))
        a('s_mov_b32 s8, s46')
        a('s_and_b32 s9, s47, 0xffff')
        a('s_mov_b32 s10, %d' % (1728 * 1280))
        a('s_mov_b32 s%d, 10' % (sb + 1))
        a('s_mov_b32 s%d, 6554' % (sb + 2))
        a('s_mov_b32 s%d, 1280' % (sb + 3))
        a('s_mov_b32 s%d, %d' % (sb + 4, W2_T))
        a('s_mov_b32 s%d, 54' % (sb + 5))
        a.label(LD)
        a('s_mov_b32 s11, 0x20000')
        a('s_mul_i32 s%d, s%d, s%d' % (sb + 6, sb, sb + 2))
        a('s_lshr_b32 s%d, s%d, 16' % (sb + 6, sb + 6))
        a('s_mul_i32 s3, s%d, s%d' % (sb + 6, sb + 1))
        a('s_sub_u32 s%d, s%d, s3' % (sb + 7, sb))
        a('v_mul_lo_u32 v8, v6, s%d' % (sb + 3))
        a('v_add_u32 v8, v8, v7')
        a('s_mul_i32 s50, s%d, s%d' % (sb + 6, sb + 3))
        a('s_lshl_b32 s50, s50, 5')
        a('s_lshl_b32 s3, s%d, 7' % (sb + 7))
        a('s_add_u32 s50, s50, s3')
        a('s_lshl_b32 s51, s%d, 3' % (sb + 3))
        for i in range(4):
            a('s_add_u32 m0, s49, %d' % (4096 * uu + 1024 * i))
            a('buffer_load_dwordx4 v8, s[8:11], s50 offen lds')
            if i < 3:
                a('s_add_u32 s50, s50, s51')
    a.wait_vm_all()
    for uu in range(2):
        for q in range(4):
            r = 64 + 16 * uu + 4 * q
            a('ds_read_b64_tr_b16 %s, v10 offset:%d' % (vr(r, 2), 4096 * uu + 32 * q))
            a('ds_read_b64_tr_b16 %s, v10 offset:%d' % (vr(r + 2, 2), 4096 * uu + 32 * q + 2048))
    a.wait_lg_all()
    for uu in range(2):
        sb = 56 + 8 * uu
        for q in range(4):
            r = 64 + 16 * uu + 4 * q
            a('s_lshl_b32 s50, s%d, 2' % (sb + 7))
            a('s_add_u32 s50, s50, %d' % q)
            a('s_lshr_b32 s51, s50, 1')
            a('s_mul_i32 s51, s51, 20')
            a('s_add_u32 s51, s51, s%d' % (sb + 6))
            a('s_lshl_b32 s51, s51, 1')
            a('s_add_u32 s51, s51, %d' % (q & 1))
            a('s_mul_i32 s52, s50, 205')
            a('s_lshr_b32 s52, s52, 10')
            a('s_mul_i32 s53, s52, 5')
            a('s_sub_u32 s53, s50, s53')
            a('s_and_b32 s54, s52, 1')
            a('s_sub_u32 s54, s53, s54')
            a('s_cmp_lt_i32 s54, 0')
            a('s_cselect_b32 s54, 4, s54')
            a('s_mul_i32 s52, s52, s%d' % (sb + 5))
            a('s_add_u32 s52, s52, s%d' % (sb + 6))
            a('s_mul_i32 s52, s52, 5')
            a('s_add_u32 s52, s52, s54')
            a('s_cmp_eq_u32 s%d, 0' % (sb + 5))
            a('s_cselect_b32 s51, s51, s52')
            a('s_lshl_b32 s51, s51, 10')
            a('s_add_u32 s51, s51, s%d' % (sb + 4))
            a('buffer_store_dwordx4 %s, v1, s[4:7], s51 offen' % vr(r, 4))
    a.label(LX)
    a.wait_vm_all()
    a('s_mov_b32 s%d, %d' % (S_OUT, XB[0]))
    a('s_mov_b32 s%d, %d' % (S_STO, STB[0]))
    finish_tile(a, 40, 52, S_OUT, S_STO)
    a.label(END)
    a('s_endpgm')


def load_stats(a, ntiles, halo, RAW):
    for i in range(ntiles):
        if halo and i == 0:
            a('buffer_load_dwordx4 %s, v1, s[4:7], s41 offen' % vr(RAW, 4), tag='st')
        else:
            mt = i - 1 if halo else i
            if mt == 4:
                a('s_add_u32 s40, s40, 4096')
            a('buffer_load_dwordx4 %s, v1, s[4:7], s40 offen offset:%d' % (vr(RAW + 4 * i, 4), (mt & 3) * 1024), tag='st')


def compute_stats(a, ntiles, RAW, MEAN, RSTD):
    a('s_mov_b32 s42, 0x%x' % f32bits(1.0 / 640.0))
    a('s_mov_b32 s43, 0x%x' % f32bits(1e-5))
    for i in range(ntiles):
        r = RAW + 4 * i
        a('v_add_f32 v%d, v%d, v%d' % (r, r, r + 2))
        a('v_add_f32 v%d, v%d, v%d' % (r + 1, r + 1, r + 3))
        reduce_g(a, r, r + 2)
        reduce_g(a, r + 1, r + 3)
        a('v_mul_f32 v%d, s42, v%d' % (MEAN + i, r))
        a('v_mul_f32 v%d, s42, v%d' % (r + 1, r + 1))
        a('v_fma_f32 v%d, -v%d, v%d, v%d' % (r + 1, MEAN + i, MEAN + i, r + 1))
        a('v_max_f32 v%d, 0, v%d' % (r + 1, r + 1))
        a('v_add_f32 v%d, s43, v%d' % (r + 1, r + 1))
        a('v_rsq_f32 v%d, v%d' % (RSTD + i, r + 1))


def gemm_nsplit(a, NT, halo):
    KB = NT * 1024
    SLOT = 4 * KB
    ACC = 16
    CS = 88
    FR = [96, 96 + 36]
    ONE = 168
    VB = 172
    a('s_mul_i32 s47, s%d, %d' % (S_W, KB))

    def dma_stage(st):
        slot = st & 3
        off = 1024 if halo else 0
        if halo:
            a('s_add_u32 m0, s47, %d' % (slot * SLOT))
            a('s_add_u32 s3, s46, %d' % (st * 32768))
            a('buffer_load_dwordx4 v1, s[4:7], s3 offen lds', tag='d%d' % st)
        for h in range(2):
            a('s_add_u32 m0, s47, %d' % (slot * SLOT + off + h * 4096))
            a('s_add_u32 s3, s45, %d' % (st * 32768 + h * 4096))
            for q in range(4):
                a('buffer_load_dwordx4 v1, s[4:7], s3 offen offset:%d lds' % (q * 1024), tag='d%d' % st)

    def w_stage(st):
        for kk in range(0, 4, 2):
            ks = st * 4 + kk
            a('s_add_u32 s3, s44, %d' % (ks * 2048))
            for q in range(4):
                a('buffer_load_dwordx4 %s, v1, s[4:7], s3 offen offset:%d' % (ar(ks * 8 + q * 4, 4), q * 1024), tag='w%d' % st)

    for st in range(4):
        dma_stage(st)
        w_stage(st)
    w_stage(4)
    for s in range(4):
        a('v_add_u32 v%d, %d, v1' % (VB + s, s * SLOT))
    for i in range(4):
        a('v_mov_b32 v%d, 0x%x' % (ONE + i, ONES))

    def read_frags(ks, i):
        st, kk = ks >> 2, ks & 3
        a('ds_read_b128 %s, v%d offset:%d' % (vr(FR[ks & 1] + 4 * i, 4), VB + (st & 3), kk * KB + i * 1024), tag='f%d_%d' % (ks, i))

    return_hook = None
    a.wait_vm('d0')
    a('s_barrier')
    for i in range(NT):
        read_frags(0, i)
    for ks in range(20):
        st = ks >> 2
        nxt = ks + 1
        if nxt < 20 and (nxt & 3) == 0:
            a.wait_lg_all()
            a.wait_vm('d%d' % (st + 1))
            a('s_barrier')
            if st == 0:
                dma_stage(4)
        if (ks & 3) == 0:
            a.wait_vm('w%d' % st)
        for i in range(NT):
            a.wait_lg('f%d_%d' % (ks, i))
            for t in range(2):
                d = vr(ACC + (i * 2 + t) * 4, 4)
                a('v_mfma_f32_16x16x32_bf16 %s, %s, %s, %s' % (d, ar(ks * 8 + t * 4, 4), vr(FR[ks & 1] + 4 * i, 4), '0' if ks == 0 else d))
            if nxt < 20:
                read_frags(nxt, i)
        for t in range(2):
            d = vr(CS + 4 * t, 4)
            a('v_mfma_f32_16x16x32_bf16 %s, %s, %s, %s' % (d, ar(ks * 8 + t * 4, 4), vr(ONE, 4), '0' if ks == 0 else d))
    return ACC, CS


def gen_p1(a):
    END = 'p1_end'
    for L in range(2):
        kernel_begin(a, 'p1l%d_kernel' % L)
        a('s_mov_b32 s%d, %d' % (S_IN, XB[2 * L]))
        a('s_mov_b32 s%d, %d' % (S_ST, STB[2 * L]))
        a('s_mov_b32 s%d, %d' % (S_OUT, OB[L]))
        if L == 0:
            a('s_branch p1_body')
    a.label('p1_body')
    prologue(a, END)
    RAW, MEAN, RSTD = 180, 216, 226
    a('s_and_b32 s3, s%d, 7' % S_TEAM)
    a('s_cmp_eq_u32 s3, 0')
    a('s_cselect_b32 s25, 0, 1')
    a('s_sub_u32 s25, s%d, s25' % S_TEAM)
    a('s_lshl_b32 s40, s%d, 13' % S_TEAM)
    a('s_add_u32 s40, s40, s%d' % S_ST)
    a('s_lshl_b32 s41, s25, 13')
    a('s_add_u32 s41, s41, s%d' % S_ST)
    a('s_add_u32 s41, s41, 7168')
    load_stats(a, 9, True, RAW)
    a('s_lshl_b32 s44, s%d, 2' % S_J)
    a('s_add_u32 s44, s44, s%d' % S_W)
    a('s_mul_i32 s44, s44, 40960')
    a('s_add_u32 s44, s44, %d' % WQKV_T)
    a('s_lshl_b32 s3, s%d, 13' % S_W)
    a('s_add_u32 s3, s3, s%d' % S_IN)
    a('s_mul_i32 s45, s%d, 163840' % S_TEAM)
    a('s_add_u32 s45, s45, s3')
    a('s_mul_i32 s46, s25, 163840')
    a('s_add_u32 s46, s46, s3')
    a('s_add_u32 s46, s46, 7168')
    ACC, CS = gemm_nsplit(a, 9, True)
    compute_stats(a, 9, RAW, MEAN, RSTD)
    a('s_barrier')
    a('v_and_b32 v2, 15, v0')
    a('v_mul_u32_u24 v2, 272, v2')
    a('v_lshrrev_b32 v3, 4, v0')
    a('v_lshl_add_u32 v2, v3, 4, v2')
    a('s_lshl_b32 s3, s%d, 6' % S_W)
    a('v_add_u32 v2, s3, v2')
    for i in range(9):
        for t in range(2):
            for e in range(4):
                r = ACC + (i * 2 + t) * 4 + e
                a('v_fma_f32 v%d, -v%d, v%d, v%d' % (r, MEAN + i, CS + 4 * t + e, r))
                a('v_mul_f32 v%d, v%d, v%d' % (r, r, RSTD + i))
        b = ACC + i * 8
        P = 96 + 4 * i
        for q in range(4):
            a('v_cvt_pk_bf16_f32 v%d, v%d, v%d' % (P + q, b + 2 * q, b + 2 * q + 1))
        a('ds_write_b128 v2, %s offset:%d' % (vr(P, 4), i * 16 * 272))
    a.wait_lg_all()
    a('s_barrier')
    a('s_and_b32 s25, s%d, 1' % S_W)
    a('s_lshl_b32 s25, s25, 6')
    a('s_lshr_b32 s26, s%d, 1' % S_W)
    a('v_add_u32 v2, s25, v0')
    a('v_mul_u32_u24 v3, 272, v2')
    a('s_lshl_b32 s3, s26, 5')
    a('v_add_u32 v4, s3, v3')
    a('s_lshl_b32 s3, s26, 3')
    a('v_add_u32 v5, s3, v3')
    a('s_mul_i32 s3, s26, 80')
    a('v_add_u32 v6, s3, v3')
    Q = 16
    KV = 32
    a('ds_read_b128 %s, v4 offset:%d' % (vr(Q, 4), 16 * 272), tag='q')
    a('ds_read_b128 %s, v4 offset:%d' % (vr(Q + 4, 4), 16 * 272 + 16), tag='q')
    a('ds_read_b64 %s, v5 offset:%d' % (vr(Q + 8, 2), 16 * 272 + 64), tag='q')
    SC = 200
    for w in range(8):
        base = (16 - w) * 272 + 80
        r = KV + 20 * w
        a('ds_read_b128 %s, v6 offset:%d' % (vr(r, 4), base), tag='k%d' % w)
        a('ds_read_b128 %s, v6 offset:%d' % (vr(r + 4, 4), base + 16), tag='k%d' % w)
        a('ds_read_b128 %s, v6 offset:%d' % (vr(r + 16, 4), base + 64), tag='k%d' % w)
    for w in range(8):
        base = (16 - w) * 272 + 80
        r = KV + 20 * w
        a('ds_read_b128 %s, v6 offset:%d' % (vr(r + 8, 4), base + 32), tag='v%d' % w)
        a('ds_read_b128 %s, v6 offset:%d' % (vr(r + 12, 4), base + 48), tag='v%d' % w)
    a('s_and_b32 s3, s%d, 7' % S_TEAM)
    a('s_lshl_b32 s3, s3, 7')
    a('v_add_u32 v7, s3, v2')
    a.wait_lg(['k%d' % w for w in range(8)])
    for i in range(10):
        for w in range(8):
            r = KV + 20 * w
            kr = r + i if i < 8 else r + 16 + (i - 8)
            a('v_dot2_f32_bf16 v%d, v%d, v%d, %s' % (SC + w, Q + i, kr, '0' if i == 0 else 'v%d' % (SC + w)))
    a('v_mov_b32 v8, 0x%x' % f32bits(-1e30))
    for w in range(1, 8):
        a('v_cmp_le_u32 vcc, %d, v7' % w)
        a('v_cndmask_b32 v%d, v8, v%d, vcc' % (SC + w, SC + w))
    a('v_max3_f32 v9, v%d, v%d, v%d' % (SC, SC + 1, SC + 2))
    a('v_max3_f32 v10, v%d, v%d, v%d' % (SC + 3, SC + 4, SC + 5))
    a('v_max3_f32 v9, v9, v%d, v%d' % (SC + 6, SC + 7))
    a('v_max_f32 v9, v9, v10')
    c = (20 ** -0.5) * math.log2(math.e)
    a('s_mov_b32 s27, 0x%x' % f32bits(c))
    a('v_mul_f32 v9, s27, v9')
    for w in range(8):
        a('v_fma_f32 v%d, v%d, s27, -v9' % (SC + w, SC + w))
    for w in range(8):
        a('v_exp_f32 v%d, v%d' % (SC + w, SC + w))
    a('v_add_f32 v9, v%d, v%d' % (SC, SC + 1))
    a('v_add_f32 v10, v%d, v%d' % (SC + 2, SC + 3))
    a('v_add_f32 v11, v%d, v%d' % (SC + 4, SC + 5))
    a('v_add_f32 v12, v%d, v%d' % (SC + 6, SC + 7))
    a('v_add_f32 v9, v9, v10')
    a('v_add_f32 v11, v11, v12')
    a('v_add_f32 v9, v9, v11')
    a('v_rcp_f32 v9, v9')
    PL, PH = 208, 216
    for w in range(8):
        a('v_mul_f32 v%d, v%d, v9' % (SC + w, SC + w))
    for w in range(8):
        a('v_cvt_pk_bf16_f32 v%d, v%d, 0' % (PL + w, SC + w))
        a('v_cvt_pk_bf16_f32 v%d, 0, v%d' % (PH + w, SC + w))
    OA = 224
    a.wait_lg_all()
    for w in range(8):
        r = KV + 20 * w
        for i in range(10):
            vreg = r + 8 + i if i < 8 else r + 18 + (i - 8)
            a('v_dot2_f32_bf16 v%d, v%d, v%d, %s' % (OA + 2 * i, vreg, PL + w, '0' if w == 0 else 'v%d' % (OA + 2 * i)))
            a('v_dot2_f32_bf16 v%d, v%d, v%d, %s' % (OA + 2 * i + 1, vreg, PH + w, '0' if w == 0 else 'v%d' % (OA + 2 * i + 1)))
    OP = 16
    for i in range(10):
        a('v_cvt_pk_bf16_f32 v%d, v%d, v%d' % (OP + i, OA + 2 * i, OA + 2 * i + 1))
    a('v_lshrrev_b32 v3, 4, v2')
    a('v_lshlrev_b32 v3, 10, v3')
    a('v_and_b32 v4, 15, v2')
    a('v_lshl_add_u32 v3, v4, 4, v3')
    a('s_mul_i32 s28, s%d, 40' % S_J)
    a('s_mul_i32 s3, s26, 20')
    a('s_add_u32 s28, s28, s3')
    a('s_mul_i32 s29, s%d, 163840' % S_TEAM)
    a('s_add_u32 s29, s29, s%d' % S_OUT)
    for q in range(5):
        a('s_add_u32 s30, s28, %d' % (4 * q))
        a('s_lshr_b32 s31, s30, 5')
        a('s_lshl_b32 s31, s31, 13')
        a('s_add_u32 s31, s31, s29')
        a('s_bfe_u32 s3, s30, 0x20002')
        a('s_lshl_b32 s3, s3, 8')
        a('s_add_u32 s31, s31, s3')
        a('s_bfe_u32 s3, s30, 0x10004')
        a('s_lshl_b32 s3, s3, 3')
        a('s_add_u32 s31, s31, s3')
        a('buffer_store_dwordx2 %s, v3, s[4:7], s31 offen' % vr(OP + 2 * q, 2))
    a.label(END)
    a('s_endpgm')


def gen_p3(a):
    END = 'p3_end'
    for L in range(2):
        kernel_begin(a, 'p3l%d_kernel' % L)
        a('s_mov_b32 s%d, %d' % (S_IN, XB[2 * L + 1]))
        a('s_mov_b32 s%d, %d' % (S_ST, STB[2 * L + 1]))
        a('s_mov_b32 s%d, %d' % (S_OUT, HB[L]))
        if L == 0:
            a('s_branch p3_body')
    a.label('p3_body')
    prologue(a, END, loads=[(S_A, 40, 1728 * 2)])
    a('s_cmp_ge_u32 s%d, 14' % S_J)
    a('s_cbranch_scc1 %s' % END)
    RAW, MEAN, RSTD = 180, 216, 226
    BI = 236
    a('s_lshl_b32 s40, s%d, 13' % S_TEAM)
    a('s_add_u32 s40, s40, s%d' % S_ST)
    load_stats(a, 8, False, RAW)
    a('s_lshl_b32 s25, s%d, 2' % S_J)
    a('s_add_u32 s25, s25, s%d' % S_W)
    a('s_min_u32 s25, s25, 53')
    a('v_lshrrev_b32 v2, 4, v0')
    a('v_lshlrev_b32 v2, 3, v2')
    a('s_lshl_b32 s3, s25, 6')
    a('buffer_load_dwordx2 %s, v2, s[8:11], s3 offen' % vr(BI, 2), tag='st')
    a('buffer_load_dwordx2 %s, v2, s[8:11], s3 offen offset:32' % vr(BI + 2, 2), tag='st')
    a('s_mul_i32 s44, s25, 40960')
    a('s_add_u32 s44, s44, %d' % W1_T)
    a('s_lshl_b32 s3, s%d, 13' % S_W)
    a('s_add_u32 s3, s3, s%d' % S_IN)
    a('s_mul_i32 s45, s%d, 163840' % S_TEAM)
    a('s_add_u32 s45, s45, s3')
    ACC, CS = gemm_nsplit(a, 8, False)
    compute_stats(a, 8, RAW, MEAN, RSTD)
    for q in range(4):
        a('v_lshlrev_b32 v%d, 16, v%d' % (240 + 2 * q, BI + q))
        a('v_and_b32 v%d, 0xffff0000, v%d' % (241 + 2 * q, BI + q))
    a('s_mul_i32 s26, s%d, 54' % S_TEAM)
    a('s_add_u32 s26, s26, s25')
    a('s_lshl_b32 s26, s26, 13')
    a('s_add_u32 s26, s26, s%d' % S_OUT)
    for i in range(8):
        for t in range(2):
            for e in range(4):
                r = ACC + (i * 2 + t) * 4 + e
                a('v_fma_f32 v%d, -v%d, v%d, v%d' % (r, MEAN + i, CS + 4 * t + e, r))
                a('v_fma_f32 v%d, v%d, v%d, v%d' % (r, r, RSTD + i, 240 + 4 * t + e))
                a('v_max_f32 v%d, 0, v%d' % (r, r))
                a('v_mul_f32 v%d, v%d, v%d' % (r, r, r))
        b = ACC + i * 8
        P = 96 + 4 * i
        for q in range(4):
            a('v_cvt_pk_bf16_f32 v%d, v%d, v%d' % (P + q, b + 2 * q, b + 2 * q + 1))
        if i == 4:
            a('s_add_u32 s26, s26, 4096')
        a('buffer_store_dwordx4 %s, v1, s[4:7], s26 offen offset:%d' % (vr(P, 4), (i & 3) * 1024))
    a.label(END)
    a('s_endpgm')


def gen_ksplit(a, which):
    END = 'p%d_end' % which
    for L in range(2):
        kernel_begin(a, 'p%dl%d_kernel' % (which, L))
        if which == 2:
            a('s_mov_b32 s%d, %d' % (S_IN, OB[L]))
            a('s_mov_b32 s%d, %d' % (S_RES, XB[2 * L]))
            a('s_mov_b32 s%d, %d' % (S_OUT, XB[2 * L + 1]))
            a('s_mov_b32 s%d, %d' % (S_STO, STB[2 * L + 1]))
            a('s_mov_b32 s%d, 0' % S_LAST)
        else:
            a('s_mov_b32 s%d, %d' % (S_IN, HB[L]))
            a('s_mov_b32 s%d, %d' % (S_RES, XB[2 * L + 1]))
            a('s_mov_b32 s%d, %d' % (S_OUT, XB[2]))
            a('s_mov_b32 s%d, %d' % (S_STO, STB[2]))
            a('s_mov_b32 s%d, %d' % (S_LAST, L))
        if L == 0:
            a('s_branch p%d_body' % which)
    a.label('p%d_body' % which)
    loads = []
    if which == 4:
        loads = [(S_A, 56, 640 * 2), (S_B, 64, 2048 * 1280)]
    prologue(a, END, loads=loads)
    tile_scalars(a)
    KS = 20 if which == 2 else 54
    NMAIN = 5 if which == 2 else 13
    WT = WO_T if which == 2 else W2_T
    ACC = 16
    RES = 96
    BI = 108
    VO = 120
    a('s_add_u32 s36, s%d, s29' % S_RES)
    a('s_add_u32 s37, s36, 8192')
    a('s_add_u32 s38, s%d, s30' % S_RES)
    a('buffer_load_dwordx4 %s, v1, s[4:7], s36 offen' % vr(RES, 4), tag='res')
    a('buffer_load_dwordx4 %s, v1, s[4:7], s37 offen' % vr(RES + 4, 4), tag='res')
    a('buffer_load_dwordx2 %s, v1, s[4:7], s38 offen' % vr(RES + 8, 2), tag='res')
    if which == 4:
        a('v_lshrrev_b32 v2, 4, v0')
        a('v_lshlrev_b32 v2, 3, v2')
        for s in range(4):
            a('buffer_load_dwordx2 %s, v2, s[8:11], s34 offen offset:%d' % (vr(BI + 2 * s, 2), 32 * s), tag='res')
        a('buffer_load_dwordx2 %s, v2, s[8:11], s35 offen' % vr(BI + 8, 2), tag='res')
    if which == 2:
        a('s_mul_i32 s40, s%d, 5' % S_W)
    else:
        a('s_mul_i32 s40, s%d, 13' % S_W)
        a('s_min_u32 s3, s%d, 1' % S_W)
        a('s_add_u32 s40, s40, s3')
        a('s_add_u32 s40, s40, 1')
    a('s_mul_i32 s41, s%d, %d' % (S_TEAM, KS))
    a('s_add_u32 s41, s41, s40')
    a('s_lshl_b32 s41, s41, 13')
    a('s_lshr_b32 s3, s%d, 3' % S_J)
    a('s_lshl_b32 s3, s3, 12')
    a('s_add_u32 s41, s41, s3')
    a('s_add_u32 s41, s41, s%d' % S_IN)
    a('s_mul_i32 s42, s25, %d' % KS)
    a('s_add_u32 s42, s42, s40')
    a('s_mul_i32 s42, s42, 5120')
    a('s_add_u32 s42, s42, %d' % WT)
    for i in range(4):
        a('s_add_u32 s3, s%d, %d' % (S_W, i))
        a('s_and_b32 s3, s3, 3')
        a('s_lshl_b32 s3, s3, 10')
        a('v_add_u32 v%d, s3, v1' % (VO + i))
    RING = 7 if which == 4 else 5

    def load_step(step, slot):
        base = slot * 36
        a('s_add_u32 s43, s41, %d' % ((step * 8192) & 0xffffffff))
        a('s_add_u32 s44, s42, %d' % ((step * 5120) & 0xffffffff))
        a('s_add_u32 s45, s44, 4096')
        for i in range(4):
            a('buffer_load_dwordx4 %s, v%d, s[4:7], s43 offen' % (ar(base + 4 * i, 4), VO + i), tag='s%d' % step)
        for s in range(4):
            a('buffer_load_dwordx4 %s, v1, s[4:7], s44 offen offset:%d' % (ar(base + 16 + 4 * s, 4), 1024 * s), tag='s%d' % step)
        a('buffer_load_dwordx4 %s, v1, s[4:7], s45 offen' % ar(base + 32, 4), tag='s%d' % step)

    def mfma_step(slot, first):
        base = slot * 36
        for i in range(4):
            for s in range(5):
                d = vr(ACC + (i * 5 + s) * 4, 4)
                a('v_mfma_f32_16x16x32_bf16 %s, %s, %s, %s' % (d, ar(base + 16 + 4 * s, 4), ar(base + 4 * i, 4), '0' if first else d))

    if which == 2:
        for st in range(5):
            load_step(st, st)
        for st in range(5):
            a.wait_vm('s%d' % st)
            mfma_step(st, st == 0)
    else:
        for r in range(80):
            a('v_mov_b32 v%d, 0' % (ACC + r))
        LS = a.newlabel('p4_skipld')
        a('s_cmp_ge_u32 s%d, 2' % S_W)
        a('s_cbranch_scc1 %s' % LS)
        load_step(-1, 6)
        a.label(LS)
        for st in range(6):
            load_step(st, st)
        LS2 = a.newlabel('p4_skipmm')
        a('s_cmp_ge_u32 s%d, 2' % S_W)
        a('s_cbranch_scc1 %s' % LS2)
        a.wait_vm('s-1')
        mfma_step(6, False)
        a.label(LS2)
        load_step(6, 6)
        for st in range(NMAIN):
            a.wait_vm('s%d' % st)
            mfma_step(st % RING, False)
            if st + RING < NMAIN:
                load_step(st + RING, st % RING)
    for i in range(1, 4):
        a('s_add_u32 s3, s%d, %d' % (S_W, i))
        a('s_and_b32 s3, s3, 3')
        a('s_mul_i32 s3, s3, 15360')
        a('v_add_u32 v%d, s3, v1' % (VO + i))
        for s in range(5):
            a('ds_write_b128 v%d, %s offset:%d' % (VO + i, vr(ACC + (i * 5 + s) * 4, 4), ((i - 1) * 5 + s) * 1024))
    a('s_mul_i32 s3, s%d, 15360' % S_W)
    a('v_add_u32 v%d, s3, v1' % VO)
    a.wait_lg_all()
    a('s_barrier')
    RD = 128
    for i in range(3):
        for s in range(5):
            a('ds_read_b128 %s, v%d offset:%d' % (vr(RD + (i * 5 + s) * 4, 4), VO, (i * 5 + s) * 1024), tag='r%d' % i)
    a.wait_vm('res')
    TMP = 190
    for q in range(10):
        a('v_lshlrev_b32 v%d, 16, v%d' % (TMP, RES + q))
        a('v_and_b32 v%d, 0xffff0000, v%d' % (TMP + 1, RES + q))
        a('v_add_f32 v%d, v%d, v%d' % (ACC + 2 * q, ACC + 2 * q, TMP))
        a('v_add_f32 v%d, v%d, v%d' % (ACC + 2 * q + 1, ACC + 2 * q + 1, TMP + 1))
        if which == 4:
            a('v_lshlrev_b32 v%d, 16, v%d' % (TMP + 2, BI + q))
            a('v_and_b32 v%d, 0xffff0000, v%d' % (TMP + 3, BI + q))
            a('v_add_f32 v%d, v%d, v%d' % (ACC + 2 * q, ACC + 2 * q, TMP + 2))
            a('v_add_f32 v%d, v%d, v%d' % (ACC + 2 * q + 1, ACC + 2 * q + 1, TMP + 3))
    for i in range(3):
        a.wait_lg('r%d' % i)
        for r in range(20):
            a('v_add_f32 v%d, v%d, v%d' % (ACC + r, ACC + r, RD + i * 20 + r))
    P = 196
    for q in range(10):
        a('v_cvt_pk_bf16_f32 v%d, v%d, v%d' % (P + q, ACC + 2 * q, ACC + 2 * q + 1))
    if which == 4:
        LF = a.newlabel('p4_final')
        a('s_cmp_eq_u32 s%d, 1' % S_LAST)
        a('s_cbranch_scc1 %s' % LF)
    finish_tile(a, P, 208, S_OUT, S_STO)
    if which == 4:
        a('s_branch %s' % END)
        a.label(LF)
        rowmajor_voff(a, 2, 3)
        for s in range(4):
            a('buffer_store_dwordx2 %s, v2, s[12:15], s32 offen offset:%d' % (vr(P + 2 * s, 2), 32 * s))
        a('buffer_store_dwordx2 %s, v2, s[12:15], s33 offen' % vr(P + 8, 2))
    a.label(END)
    a('s_endpgm')


def descriptor(a, name, vgpr=512, accum=256):
    a.raw('.amdhsa_kernel %s' % name)
    a.raw('  .amdhsa_next_free_vgpr %d' % vgpr)
    a.raw('  .amdhsa_next_free_sgpr 102')
    a.raw('  .amdhsa_accum_offset %d' % accum)
    a.raw('  .amdhsa_group_segment_fixed_size 0')
    a.raw('  .amdhsa_kernarg_size 88')
    a.raw('  .amdhsa_user_sgpr_count 2')
    a.raw('  .amdhsa_user_sgpr_kernarg_segment_ptr 1')
    a.raw('  .amdhsa_system_sgpr_workgroup_id_x 1')
    a.raw('.end_amdhsa_kernel')


def main(out):
    a = Asm()
    launches = [('prep_kernel', 32768)]
    for L in range(2):
        launches += [('p1l%d_kernel' % L, 147456), ('p2l%d_kernel' % L, 61440), ('p3l%d_kernel' % L, 131072), ('p4l%d_kernel' % L, 61440)]
    for n, lds in launches:
        a.raw('; @launch kernel=%s grid=(256,1,1) block=(256,1,1) lds=%d' % (n, lds))
    a.raw('.amdgcn_target "amdgcn-amd-amdhsa--gfx950"')
    a.raw('.text')
    gen_prep(a)
    gen_p1(a)
    gen_ksplit(a, 2)
    gen_p3(a)
    gen_ksplit(a, 4)
    a.raw('.section .rodata,"a"')
    for n, lds in launches:
        a.raw('.p2align 6')
        descriptor(a, n)
    open(out, 'w').write(a.text())
    print('instructions:', a.nins, 'ws end', WS_END)


if __name__ == '__main__':
    main(sys.argv[1] if len(sys.argv) > 1 else 'cdna_kernels/%s.s' % KNAME)
```

```python
import re

_REG_RE = re.compile(r'^(-|abs\()?([vas])(\d+|\[(\d+):(\d+)\])\)?$')

TRANS = ('v_exp_f32', 'v_log_f32', 'v_rcp_f32', 'v_rsq_f32', 'v_sqrt_f32', 'v_sin_f32', 'v_cos_f32')


def parse_reg(tok):
    tok = tok.strip()
    if tok == 'vcc':
        return [('s', 106), ('s', 107)]
    if tok == 'exec':
        return [('s', 126), ('s', 127)]
    if tok == 'm0':
        return [('s', 124)]
    m = _REG_RE.match(tok)
    if not m:
        return []
    kind = m.group(2)
    if m.group(4) is not None:
        return [(kind, i) for i in range(int(m.group(4)), int(m.group(5)) + 1)]
    return [(kind, int(m.group(3)))]


class Ins:
    __slots__ = ('text', 'op', 'dst', 'src', 'srcs', 'kind', 'mods', 'states')

    def __init__(self, text):
        self.text = text
        t = text.split(';')[0].strip()
        parts = t.split(None, 1)
        self.op = parts[0]
        rest = parts[1] if len(parts) > 1 else ''
        bmods = ' '.join(re.findall(r'\s(?:op_sel|op_sel_hi|neg_lo|neg_hi):\[[^\]]*\]', rest))
        rest = re.sub(r'\s(?:op_sel|op_sel_hi|neg_lo|neg_hi):\[[^\]]*\]', '', rest)
        ops = [o.strip() for o in rest.split(',')] if rest else []
        self.mods = bmods
        if ops:
            last = ops[-1].split(None, 1)
            ops[-1] = last[0]
            if len(last) > 1:
                self.mods += ' ' + last[1]
        clean = []
        for o in ops:
            clean.append(o)
        regs = [parse_reg(o) for o in clean]
        op = self.op
        self.dst = []
        self.srcs = []
        self.states = 1
        if op == 's_nop':
            self.kind = 'nop'
            self.states = int(ops[0], 0) + 1
        elif op.startswith('v_mfma'):
            self.kind = 'mfma'
            self.dst = regs[0]
            self.srcs = regs[1:4]
        elif op.startswith('v_permlane'):
            self.kind = 'valu'
            self.dst = regs[0] + regs[1]
            self.srcs = [regs[0], regs[1]]
        elif op.startswith('v_'):
            self.kind = 'valu'
            self.dst = regs[0]
            self.srcs = regs[1:]
            if op.startswith('v_fmac') or op.startswith('v_dot2c'):
                self.srcs = self.srcs + [regs[0]]
            if op.startswith('v_cndmask') and len(regs) == 3:
                self.srcs = self.srcs + [parse_reg('vcc')]
        elif op.startswith('buffer_load') or op.startswith('global_load'):
            self.kind = 'vmem'
            if ' lds' in (' ' + self.mods) or '_lds_' in op:
                self.srcs = regs + [parse_reg('m0')]
            else:
                self.dst = regs[0]
                self.srcs = regs[1:]
        elif op.startswith('buffer_store') or op.startswith('global_store'):
            self.kind = 'vmem'
            self.srcs = regs
        elif op.startswith('buffer_atomic') or op.startswith('global_atomic'):
            self.kind = 'vmem'
            self.srcs = regs
            if 'sc0' in self.mods:
                self.dst = regs[0]
        elif op.startswith('buffer_'):
            self.kind = 'vmem'
        elif op.startswith('ds_read') or op.startswith('ds_bpermute') or op.startswith('ds_swizzle'):
            self.kind = 'ds'
            self.dst = regs[0]
            self.srcs = regs[1:]
        elif op.startswith('ds_'):
            self.kind = 'ds'
            self.srcs = regs
        elif op.startswith('s_'):
            self.kind = 'salu'
            nodst = ('s_cmp', 's_waitcnt', 's_barrier', 's_branch', 's_cbranch', 's_bitcmp', 's_sleep', 's_setprio',
                     's_endpgm', 's_setpc')
            if any(op.startswith(p) for p in nodst):
                self.srcs = regs
            else:
                self.dst = regs[0] if regs else []
                self.srcs = regs[1:]
                if 'saveexec' in op:
                    self.dst = self.dst + parse_reg('exec')
        else:
            raise ValueError('unknown instruction ' + text)
        self.src = [r for s in self.srcs for r in s]


def need_states(p, c):
    n = 0
    pd = set(p.dst)
    cs = set(c.src)
    cd = set(c.dst)
    raw = pd & cs
    waw = pd & cd
    if p.kind == 'valu':
        vraw = {r for r in raw if r[0] in 'va'}
        sraw = {r for r in raw if r[0] == 's'}
        if vraw:
            if c.kind == 'mfma':
                n = max(n, 2)
            if c.op.startswith('v_permlane') or 'dpp' in c.op or 'row_' in c.mods or 'quad_perm' in c.mods:
                n = max(n, 2)
            if c.op.startswith('v_readlane') or c.op.startswith('v_readfirstlane'):
                n = max(n, 1)
            if p.op in TRANS and c.kind == 'valu' and c.op not in TRANS:
                n = max(n, 1)
            if p.op in TRANS:
                n = max(n, 1)
        if p.op.startswith('v_dot2'):
            if c.op == p.op:
                ab = set(c.srcs[0]) | set(c.srcs[1])
                if pd & ab:
                    n = max(n, 3)
            elif raw or waw:
                n = max(n, 3)
        if sraw:
            if c.kind == 'valu':
                n = max(n, 4 if c.op.startswith('v_readlane') or c.op.startswith('v_writelane') else 2)
            if c.kind == 'vmem':
                n = max(n, 5)
            if c.kind == 'salu':
                n = max(n, 1)
    elif p.kind == 'mfma':
        passes = 8 if '32x32' in p.op else 4
        full = {4: 8, 8: 12}[passes]
        part = {4: 6, 8: 10}[passes]
        war = {4: 3, 8: 7}[passes]
        if c.kind == 'mfma':
            if pd & (set(c.srcs[0]) | set(c.srcs[1])):
                n = max(n, full)
            sc = c.srcs[2]
            if pd & set(sc):
                if list(sc) != list(p.dst):
                    n = max(n, part)
            elif waw:
                n = max(n, full)
        else:
            if raw or waw:
                n = max(n, full)
            if c.kind == 'valu' and (set(p.srcs[2]) & cd):
                n = max(n, war)
    elif p.kind == 'salu':
        if ('s', 124) in pd and c.kind == 'vmem' and ('s', 124) in cs:
            n = max(n, 1)
    elif p.kind == 'vmem':
        if ('store' in p.op) and (p.op.endswith('x4') or p.op.endswith('x3')):
            data = set(p.srcs[0]) if p.op.startswith('buffer') else set(p.srcs[1])
            if data & cd:
                n = max(n, 2)
    return n


class Asm:
    def __init__(self):
        self.lines = []
        self.win = []
        self.vm = []
        self.lg = []
        self.nlabel = 0
        self.nins = 0

    def raw(self, text):
        self.lines.append(text)

    def comment(self, text):
        self.lines.append('    ; ' + text)

    def label(self, name):
        self.fence()
        self.lines.append(name + ':')

    def fence(self):
        need = 0
        dist = 0
        for p in reversed(self.win):
            mx = {'mfma': 12 if '32x32' in p.op else 8, 'valu': 5, 'vmem': 2, 'salu': 1}.get(p.kind, 0)
            need = max(need, mx - dist)
            dist += p.states
        if need > 0:
            self._emit(Ins('s_nop %d' % (need - 1)))
        self.win = []

    def newlabel(self, base='L'):
        self.nlabel += 1
        return '%s_%d' % (base, self.nlabel)

    def _emit(self, ins):
        self.lines.append('    ' + ins.text)
        self.win.append(ins)
        if len(self.win) > 16:
            self.win.pop(0)
        self.nins += 1

    def __call__(self, text, tag=None):
        ins = Ins(text)
        need = 0
        dist = 0
        for p in reversed(self.win):
            n = need_states(p, ins)
            need = max(need, n - dist)
            dist += p.states
            if dist > 14:
                break
        if need > 0:
            self._emit(Ins('s_nop %d' % (need - 1)))
        self._emit(ins)
        if ins.kind == 'vmem':
            self.vm.append(tag)
        elif ins.kind == 'ds':
            self.lg.append(tag)
        if ins.op.startswith('s_branch') or ins.op.startswith('s_cbranch') or ins.op.startswith('s_setpc'):
            pass
        return ins

    def wait_vm(self, tag):
        tags = tag if isinstance(tag, (list, tuple, set)) else [tag]
        idx = -1
        for i, t in enumerate(self.vm):
            if t in tags:
                idx = i
        if idx < 0:
            return
        n = len(self.vm) - 1 - idx
        n = min(n, 63)
        self('s_waitcnt vmcnt(%d)' % n)
        self.vm = self.vm[len(self.vm) - n:] if n > 0 else []

    def wait_lg(self, tag):
        tags = tag if isinstance(tag, (list, tuple, set)) else [tag]
        idx = -1
        for i, t in enumerate(self.lg):
            if t in tags:
                idx = i
        if idx < 0:
            return
        n = len(self.lg) - 1 - idx
        n = min(n, 15)
        self('s_waitcnt lgkmcnt(%d)' % n)
        self.lg = self.lg[len(self.lg) - n:] if n > 0 else []

    def wait_vm_all(self):
        self('s_waitcnt vmcnt(0)')
        self.vm = []

    def wait_lg_all(self):
        self('s_waitcnt lgkmcnt(0)')
        self.lg = []

    def text(self):
        return '\n'.join(self.lines) + '\n'


def vr(base, n=1, k='v'):
    if n == 1:
        return '%s%d' % (k, base)
    return '%s[%d:%d]' % (k, base, base + n - 1)


def ar(base, n=1):
    return vr(base, n, 'a')


def sr(base, n=1):
    return vr(base, n, 's')


def kind_of(text):
    op = text.split()[0]
    if op.startswith('ds_write'):
        return 'DW'
    if op.startswith('ds_'):
        return 'D'
    if op.startswith('buffer_') or op.startswith('global_'):
        return 'M'
    if op in TRANS or op.startswith('v_permlane'):
        return 'E'
    if op.startswith('v_mfma'):
        return 'X'
    if op.startswith('v_'):
        return 'V'
    return 'S'


class Rec:
    def __init__(self):
        self.items = []

    def __call__(self, text, tag=None):
        self.items.append(('i', text, tag))

    def wait_vm(self, tag):
        self.items.append(('wv', tag, None))

    def wait_lg(self, tag):
        self.items.append(('wl', tag, None))

    def delay(self, n):
        self.items.append(['dl', n, None])


class Sched(Asm):
    def __init__(self):
        super().__init__()
        self.qv = []
        self.qm = []
        self.since_m = 99
        self.pace = 4
        self.quiet = False
        self.qa = []

    def emit_item(self, it):
        if it[0] == 'i':
            self(it[1], tag=it[2])
        elif it[0] == 'wv':
            self.wait_vm(it[1])
        elif it[0] == 'wl':
            self.wait_lg(it[1])

    @staticmethod
    def item_kind(it):
        return kind_of(it[1]) if it[0] == 'i' else 'S'

    COST = {'S': 4, 'V': 4, 'E': 8, 'D': 8, 'M': 8, 'DW': 12, 'X': 16}

    def mfma(self, text, fg=(), wait=None):
        self(text)
        self.since_m += 1
        st = {'t': 4, 'vseen': False, 'end': 12 if wait else 16}
        cost = self.COST

        def fits(k):
            tt = max(st['t'], 8) if k in ('V', 'E') else st['t']
            if k in ('D', 'M', 'DW') and st['vseen']:
                return None
            if k == 'X':
                return None
            if tt + cost[k] > st['end']:
                return None
            return tt + cost[k]

        def put(it, k, nt):
            self.emit_item(it)
            st['t'] = nt
            if k in ('V', 'E'):
                st['vseen'] = True
            if k == 'M':
                self.since_m = 0

        for it in fg:
            k = self.item_kind(it)
            tt = max(st['t'], 8) if k in ('V', 'E') else st['t']
            put(it, k, tt + cost[k])
        while self.qm:
            g = self.qm[0]
            it = g[0]
            k = self.item_kind(it)
            if self.quiet and not g[-1][2].startswith('d'):
                break
            if k == 'M' and self.since_m < self.pace:
                break
            nt = fits(k)
            if nt is None:
                break
            put(it, k, nt)
            g.pop(0)
            if not g:
                self.qm.pop(0)
                break
        heads = [self.item_kind(q[0]) for q in (self.qv, self.qa) if q]
        if wait and st['t'] == 4 and not (heads and heads[0] in ('D', 'M')):
            self.emit_item(wait)
            st['t'] = 8
            st['end'] = 16
            wait = None
        for q in (self.qv, self.qa):
            while q:
                it = q[0]
                if it[0] == 'dl':
                    it[1] -= 1
                    if it[1] <= 0:
                        q.pop(0)
                    break
                k = self.item_kind(it)
                if k == 'X':
                    if wait:
                        self.emit_item(wait)
                    q.pop(0)
                    self.mfma(it[1])
                    return
                nt = fits(k)
                if nt is None:
                    break
                put(it, k, nt)
                q.pop(0)
        if wait:
            self.emit_item(wait)

    def flush_v(self):
        while self.qv:
            self.emit_item(self.qv.pop(0))

    def flush_a(self):
        while self.qa:
            self.emit_item(self.qa.pop(0))

    def flush_m(self, n=10 ** 9, pred=None):
        while self.qm and n > 0:
            if pred is not None and not any(pred(g) for g in self.qm):
                break
            for it in self.qm.pop(0):
                self.emit_item(it)
            n -= 1

    def run(self, rec, every=14):
        c = 0
        for it in rec.items:
            self.emit_item(it)
            c += 1
            if every and c % every == 0:
                self.flush_m(1)
```

```python
import sys, math, struct
sys.path.insert(0, 'work')
from asmlib import Sched, Rec, vr, ar, sr

KNAME = 'interleave_layers__sliding_local_dilated__dense_activation_squared_relu__prompt'

OPT = dict(stamps=False, fake_xcc=0, force_slow=False, gsleep=2, quiet1=50, quiet3=50, quiet4=40,
           burst1=0, burst2=0, pace=4, tstamp=0, attn_loop=1, ldsc1=1, wnt=0)

WS_SIZE = 268435456
WQKV_T = 0
WO_T = WQKV_T + 16 * 163840
W1_T = WO_T + 8 * 20 * 5 * 1024
W2_T = W1_T + 54 * 20 * 2 * 1024
XSZ = 16 * 8 * 20 * 1024
X0 = W2_T + 8 * 54 * 5 * 1024
XB = [X0 + i * XSZ for i in range(4)]
OB = [X0 + (4 + i) * XSZ for i in range(2)]
HSZ = 16 * 8 * 54 * 1024
HB = [X0 + 6 * XSZ + i * HSZ for i in range(2)]
STSZ = 16 * 8 * 1024
ST0 = HB[1] + HSZ
STB = [ST0 + i * STSZ for i in range(4)]
FL = ST0 + 4 * STSZ
HF = FL + 4096
MB = HF + 2048
WS_END = MB + 256 * 128
STAMP_BASE = 64 << 20
OOB = 0x40000000
ONES = 0x3F803F80

SLOT = 20480
NSLOT = 6
L_SCR = NSLOT * SLOT
TP = 16 * 272
L_STAT = L_SCR + 144 * 272
L_ROLE = L_STAT + 1536
LDS_SIZE = 163840

S_TEAM, S_J, S_W, S_FAST, S_PASS = 20, 21, 22, 23, 24
S_CG, S_MT = 25, 26
S_XT = 29
S_STT = 31
S_RM = 32
S_COL = 34
S_PF, S_DMA, S_QV, S_QA = 58, 57, 56, 55
S_KS0 = 59
S_FLAG, S_TFL = 60, 61
S_WQ, S_WO, S_W1, S_W2 = 62, 63, 88, 89
S_W2X, S_XOFF, S_BLK = 90, 91, 92
S_HSRC, S_HSTS = 93, 94
S_PH, S_MB = 95, 100

CS1, CS3, B1R, B2R, XRES = 2, 10, 18, 26, 36
BIASC, BIASP, BIASP0, MASKP, MASKC = 46, 50, 54, 58, 60
VL4 = 62
VZ = 63


def slot_reg(i):
    return ar(4 * i, 4) if i < 64 else vr(164 + 4 * (i - 64), 4)


_G = {}
_p = 0
for _n, _c in (('y', 25), ('z', 17), ('x', 1), ('u', 22), ('v', 22)):
    _G[_n] = list(range(_p, _p + _c))
    _p += _c
WQ_SL = _G['z'] + _G['x'] + _G['u']
WO_SL = _G['y']
W1_SL = _G['v'] + _G['x'] + _G['z']
W2_SL = _G['u'] + _G['y'] + _G['x'] + _G['v']


def xorder(sig):
    cg, i = divmod(sig, 10)
    if i < 8:
        f = 80 * cg + 32 * (i >> 2) + 4 * (i & 3)
        return f, f + 16
    f = 80 * cg + 8 * i
    return f, f + 4


def oorder(sig):
    j, i = divmod(sig, 5)
    f = 40 * j + 4 * i
    return f, f + 20


def horder(sig):
    f = 32 * (sig >> 2) + 4 * (sig & 3)
    return f, f + 16


def f32bits(x):
    return struct.unpack('<I', struct.pack('<f', x))[0]


def LDM():
    return ' sc1' if OPT['ldsc1'] else ''


def stamp(a, idx):
    if not OPT['stamps']:
        return
    if idx in (11, 12, 31, 32, 40, 41):
        stamp2(a, 52 + (11, 12, 31, 32, 40, 41).index(idx), 's_memtime')
    stamp2(a, idx, 's_memrealtime')


def stamp2(a, idx, ins):
    a('%s s[96:97]' % ins)
    a('s_lshl_b32 s99, s2, 2')
    a('s_add_u32 s99, s99, s%d' % S_W)
    a('s_lshl_b32 s99, s99, 9')
    a('s_lshl_b32 s98, s%d, 8' % S_PASS)
    a('s_add_u32 s99, s99, s98')
    a('s_add_u32 s99, s99, %d' % (STAMP_BASE + idx * 4))
    a('s_waitcnt lgkmcnt(0)')
    a.lg = []
    a('v_mov_b32 v163, s96')
    a('s_mov_b64 exec, 1')
    a('buffer_store_dword v163, v%d, s[4:7], s99 offen' % VZ, tag='stamp')
    a('s_mov_b64 exec, -1')


def make_srd(a, dst, src, nbytes):
    a('s_mov_b32 s%d, s%d' % (dst, src))
    a('s_and_b32 s%d, s%d, 0xffff' % (dst + 1, src + 1))
    a('s_mov_b32 s%d, %d' % (dst + 2, nbytes))
    a('s_mov_b32 s%d, 0x20000' % (dst + 3))


def tile_scalars(a):
    a('s_and_b32 s%d, s%d, 7' % (S_CG, S_J))
    a('s_lshr_b32 s%d, s%d, 3' % (S_MT, S_J))
    a('s_lshl_b32 s%d, s%d, 2' % (S_MT, S_MT))
    a('s_add_u32 s%d, s%d, s%d' % (S_MT, S_MT, S_W))
    a('s_lshl_b32 s%d, s%d, 3' % (S_STT, S_TEAM))
    a('s_add_u32 s%d, s%d, s%d' % (S_STT, S_STT, S_MT))
    a('s_mul_i32 s%d, s%d, 20480' % (S_XT, S_STT))
    a('s_mul_i32 s3, s%d, 2560' % S_CG)
    a('s_add_u32 s%d, s%d, s3' % (S_XT, S_XT))
    a('s_lshl_b32 s%d, s%d, 10' % (S_STT, S_STT))
    a('s_lshl_b32 s3, s%d, 7' % S_CG)
    a('s_add_u32 s%d, s%d, s3' % (S_STT, S_STT))
    a('s_mul_i32 s%d, s%d, 160' % (S_COL, S_CG))
    a('s_and_b32 s3, s%d, 7' % S_TEAM)
    a('s_lshl_b32 s3, s3, 7')
    a('s_lshl_b32 s%d, s%d, 4' % (S_RM, S_MT))
    a('s_add_u32 s3, s3, s%d' % S_RM)
    a('s_lshl_b32 s3, s3, 1')
    a('s_lshr_b32 s%d, s%d, 3' % (S_RM, S_TEAM))
    a('s_add_u32 s3, s3, s%d' % S_RM)
    a('s_mul_i32 s3, s3, 1280')
    a('s_add_u32 s%d, s3, s%d' % (S_RM, S_COL))


def rowmajor_voff(a, dst, tmp):
    a('v_and_b32 v%d, 15, v0' % dst)
    a('v_mul_u32_u24 v%d, 2560, v%d' % (dst, dst))
    a('v_lshrrev_b32 v%d, 4, v0' % tmp)
    a('v_lshl_add_u32 v%d, v%d, 3, v%d' % (dst, tmp, dst))


def tile5_voff(a, dst, tmp):
    a('v_and_b32 v%d, 15, v0' % dst)
    a('v_lshlrev_b32 v%d, 4, v%d' % (dst, dst))
    a('v_lshrrev_b32 v%d, 5, v0' % tmp)
    a('v_lshl_add_u32 v%d, v%d, 8, v%d' % (dst, tmp, dst))
    a('v_bfe_u32 v%d, v0, 4, 1' % tmp)
    a('v_lshl_add_u32 v%d, v%d, 3, v%d' % (dst, tmp, dst))


def stat_voff(a, dst, tmp):
    a('v_lshlrev_b32 v%d, 3, v0' % dst)
    a('v_mov_b32 v%d, 0x%x' % (tmp, OOB))
    a('v_cmp_gt_u32 vcc, 16, v0')
    a('v_cndmask_b32 v%d, v%d, v%d, vcc' % (dst, tmp, dst))


def two_ways(a, fn):
    LS = a.newlabel('slow')
    LJ = a.newlabel('join')
    a('s_cmp_eq_u32 s%d, 0' % S_FAST)
    a('s_cbranch_scc1 %s' % LS)
    vm0 = list(a.vm)
    fn('')
    a('s_branch %s' % LJ)
    a.label(LS)
    a.vm = vm0
    fn(' sc1')
    a.label(LJ)


def tile_stats(a, P, T):
    a('s_mov_b32 s39, 0x%x' % ONES)
    for i in range(10):
        a('v_dot2_f32_bf16 v%d, v%d, s39, %s' % (T, P + i, '0' if i == 0 else 'v%d' % T))
        a('v_dot2_f32_bf16 v%d, v%d, v%d, %s' % (T + 1, P + i, P + i, '0' if i == 0 else 'v%d' % (T + 1)))
    a('v_mov_b32 v%d, v%d' % (T + 2, T))
    a('v_mov_b32 v%d, v%d' % (T + 3, T + 1))
    a('v_permlane16_swap_b32 v%d, v%d' % (T, T + 2))
    a('v_permlane16_swap_b32 v%d, v%d' % (T + 1, T + 3))
    a('v_pk_add_f32 %s, %s, %s' % (vr(T, 2), vr(T, 2), vr(T + 2, 2)))
    a('v_mov_b32 v%d, v%d' % (T + 2, T))
    a('v_mov_b32 v%d, v%d' % (T + 3, T + 1))
    a('v_permlane32_swap_b32 v%d, v%d' % (T, T + 2))
    a('v_permlane32_swap_b32 v%d, v%d' % (T + 1, T + 3))
    a('v_pk_add_f32 %s, %s, %s' % (vr(T, 2), vr(T, 2), vr(T + 2, 2)))


def store_tile(a, P, sa, V5, tag='pub'):
    a('buffer_store_dwordx4 %s, v1, s[4:7], s%d offen sc1' % (vr(P, 4), sa), tag=tag)
    a('buffer_store_dwordx4 %s, v1, s[4:7], s%d offen offset:1024 sc1' % (vr(P + 4, 4), sa), tag=tag)
    a('buffer_store_dwordx2 %s, v%d, s[4:7], s%d offen offset:2048 sc1' % (vr(P + 8, 2), V5, sa), tag=tag)


def qkv_sg(ch, hf):
    Q, K, V = 0, 1, 2
    if ch < 4:
        h, lo = ch >> 1, (ch & 1) * 2
        return Q * 10 + h * 5 + lo + hf
    if ch == 4:
        return Q * 10 + 4
    if ch == 15:
        return Q * 10 + 5 + 4
    h = (ch - 5) // 5
    c = (ch - 5) % 5
    if c < 2:
        return K * 10 + h * 5 + c * 2 + hf
    if c < 4:
        return V * 10 + h * 5 + (c - 2) * 2 + hf
    return (K if hf == 0 else V) * 10 + h * 5 + 4


def poll(a, sbase, sval, lanes=None, sleep=0, off=0):
    if lanes:
        a('s_mov_b64 exec, 0x%x' % lanes)
    a('s_mov_b32 s3, 0')
    LP = a.newlabel('poll')
    LD = a.newlabel('polld')
    a.label(LP)
    if sleep:
        a('s_sleep %d' % sleep)
    a('buffer_load_dword v162, v%d, s[4:7], s%d offen offset:%d sc1' % (VL4, sbase, off))
    a('s_add_u32 s3, s3, 1')
    a('s_waitcnt vmcnt(0)')
    a('v_cmp_gt_u32 vcc, %s, v162' % sval)
    a('s_cmp_gt_u32 s3, 200000')
    a('s_cbranch_scc1 %s' % LD)
    a('s_cbranch_vccnz %s' % LP)
    a.label(LD)
    if lanes:
        a('s_mov_b64 exec, -1')
    a.vm = []


def publish(a):
    a('s_add_u32 s%d, s%d, 1' % (S_PH, S_PH))
    a('v_mov_b32 v162, s%d' % S_PH)
    a('s_mov_b64 exec, 1')

    def f(mod):
        a.wait_vm('pub')
        a('buffer_store_dword v162, v%d, s[4:7], s%d offen%s' % (VZ, S_FLAG, mod), tag='fl')
    two_ways(a, f)
    a('s_mov_b64 exec, -1')


def gen_prologue(a, END):
    a('s_cmp_ge_u32 s2, 256')
    a('s_cbranch_scc1 %s' % END)
    a('s_load_dwordx16 s[64:79], s[0:1], 0')
    a('s_load_dwordx4 s[80:83], s[0:1], 64')
    a('s_load_dwordx2 s[4:5], s[0:1], 80')
    a('v_lshrrev_b32 v1, 6, v0')
    a('v_and_b32 v0, 63, v0')
    a('v_readfirstlane_b32 s%d, v1' % S_W)
    a('v_lshlrev_b32 v1, 4, v0')
    a('v_lshlrev_b32 v%d, 2, v0' % VL4)
    a('v_mov_b32 v%d, 0' % VZ)
    a('s_mov_b32 s%d, 0' % S_PASS)
    a('s_lshr_b32 s%d, s2, 4' % S_TEAM)
    a('s_and_b32 s%d, s2, 15' % S_J)
    tile_scalars(a)
    rowmajor_voff(a, 64, 65)
    a('s_waitcnt lgkmcnt(0)')
    make_srd(a, 12, 64, 2048 * 1280)
    a('s_and_b32 s5, s5, 0xffff')
    a('s_mov_b32 s6, %d' % WS_SIZE)
    a('s_mov_b32 s7, 0x20000')


def broadcast(a, val, off):
    a('v_mov_b32 v92, %s' % val)
    a('v_lshlrev_b32 v93, 7, v0')
    for i in range(4):
        a('s_mov_b32 s45, %d' % (MB + i * 8192 + off))
        a('buffer_store_dword v92, v93, s[4:7], s45 offen sc1')


def s_xorder(a, sig, first, d2, t):
    a('s_mul_i32 s%d, s%d, 205' % (t, sig))
    a('s_lshr_b32 s%d, s%d, 11' % (t, t))
    a('s_mul_i32 s%d, s%d, 10' % (first, t))
    a('s_sub_u32 s%d, s%d, s%d' % (d2, sig, first))
    a('s_mul_i32 s%d, s%d, 80' % (t, t))
    a('s_lshr_b32 s%d, s%d, 2' % (first, d2))
    a('s_lshl_b32 s%d, s%d, 4' % (first, first))
    a('s_lshl_b32 s3, s%d, 2' % d2)
    a('s_add_u32 s%d, s%d, s3' % (first, first))
    a('s_lshl_b32 s3, s%d, 3' % d2)
    a('s_cmp_lt_u32 s%d, 8' % d2)
    a('s_cselect_b32 s%d, s%d, s3' % (first, first))
    a('s_cselect_b32 s%d, 16, 4' % d2)
    a('s_add_u32 s%d, s%d, s%d' % (first, first, t))


def v_order(a, kind, sig, first, d2, t):
    if kind == 'x':
        a('v_mul_u32_u24 v%d, 205, v%d' % (t, sig))
        a('v_lshrrev_b32 v%d, 11, v%d' % (t, t))
        a('v_mul_u32_u24 v%d, 10, v%d' % (first, t))
        a('v_sub_u32 v%d, v%d, v%d' % (d2, sig, first))
        a('v_mul_u32_u24 v%d, 80, v%d' % (t, t))
        a('v_lshrrev_b32 v%d, 2, v%d' % (first, d2))
        a('v_lshlrev_b32 v%d, 4, v%d' % (first, first))
        a('v_lshl_add_u32 v%d, v%d, 2, v%d' % (first, d2, first))
        a('v_lshlrev_b32 v%d, 3, v%d' % (t + 1, d2))
        a('v_cmp_gt_u32 vcc, 8, v%d' % d2)
        a('v_cndmask_b32 v%d, v%d, v%d, vcc' % (first, t + 1, first))
        a('v_cndmask_b32 v%d, 4, 16, vcc' % d2)
        a('v_add_u32 v%d, v%d, v%d' % (first, first, t))
    elif kind == 'o':
        a('v_mul_u32_u24 v%d, 205, v%d' % (t, sig))
        a('v_lshrrev_b32 v%d, 10, v%d' % (t, t))
        a('v_mul_u32_u24 v%d, 20, v%d' % (t, t))
        a('v_lshl_add_u32 v%d, v%d, 2, v%d' % (first, sig, t))
        a('v_mov_b32 v%d, 20' % d2)
    else:
        a('v_lshrrev_b32 v%d, 2, v%d' % (t, sig))
        a('v_lshlrev_b32 v%d, 4, v%d' % (t, t))
        a('v_lshl_add_u32 v%d, v%d, 2, v%d' % (first, sig, t))
        a('v_mov_b32 v%d, 16' % d2)


def gen_prep(a):
    XP = 40
    R0 = 96
    for s in range(5):
        a('buffer_load_dwordx2 %s, v64, s[12:15], s%d offen offset:%d' % (vr(XP + 2 * s, 2), S_RM, 32 * s), tag='x')
    stamp(a, 0)
    make_srd(a, 16, 4, WS_SIZE)
    make_srd(a, 84, 82, 256)
    a('s_lshl_b32 s48, s%d, 8' % S_W)
    a('s_add_u32 s48, s48, s2')
    a('s_lshl_b32 s49, s%d, 13' % S_W)
    a('v_lshrrev_b32 v88, 2, v0')
    a('v_and_b32 v89, 3, v0')
    a('s_lshl_b32 s3, s2, 7')
    a('s_add_u32 s%d, s3, %d' % (S_MB, MB))

    def xconv():
        tile5_voff(a, 68, 69)
        stat_voff(a, 69, 64)
        a('s_add_u32 s36, s%d, %d' % (S_XT, XB[0]))
        a('s_add_u32 s37, s%d, %d' % (S_STT, STB[0]))
        a.wait_vm('x')
        store_tile(a, XP, 36, 68, tag='xs')
        tile_stats(a, XP, 64)
        a('buffer_store_dwordx2 v[64:65], v69, s[4:7], s37 offen sc1', tag='xs')

    LG = 'prep_generic'
    LE = 'prep_end'
    a('s_cmp_ge_u32 s48, 320')
    a('s_cbranch_scc1 %s' % LG)
    vm0 = list(a.vm)
    a('s_mul_i32 s50, s48, 3277')
    a('s_lshr_b32 s50, s50, 16')
    a('s_mul_i32 s51, s50, 20')
    a('s_sub_u32 s51, s48, s51')
    make_srd(a, 8, 66, 640 * 3840)
    a('v_and_b32 v70, 15, v0')
    a('v_lshrrev_b32 v71, 4, v0')
    a('v_mul_u32_u24 v71, 3840, v71')
    a('v_lshl_add_u32 v71, v70, 4, v71')
    a('v_mov_b32 v72, 1200')
    a('v_cmp_le_u32 vcc, 5, v70')
    a('v_cndmask_b32 v73, 0, v72, vcc')
    a('v_add_u32 v71, v71, v73')
    a('v_cmp_le_u32 vcc, 10, v70')
    a('v_cndmask_b32 v73, 0, v72, vcc')
    a('v_add_u32 v71, v71, v73')
    a('s_mul_i32 s52, s50, 80')
    for g in range(4):
        a('s_lshl_b32 s40, s51, 2')
        a('s_add_u32 s40, s40, %d' % g)
        s_xorder(a, 40, 41, 42, 43)
        for half in range(2):
            if half:
                a('s_add_u32 s41, s41, s42')
            a('s_mul_i32 s53, s41, 3840')
            a('s_add_u32 m0, s49, %d' % (1024 * (half * 4 + g)))
            a('s_add_u32 s53, s53, s52')
            a('buffer_load_dwordx4 v71, s[8:11], s53 offen lds', tag='u')
    a('s_lshl_b32 s3, s2, 4')
    a('s_add_u32 s36, s3, %d' % FL)
    a('s_lshl_b32 s3, s2, 3')
    a('s_add_u32 s37, s3, %d' % HF)
    if OPT['fake_xcc'] == 1:
        a('s_lshr_b32 s40, s2, 2')
        a('s_mul_i32 s40, s40, 5')
        a('s_lshr_b32 s40, s40, 5')
    else:
        a('s_getreg_b32 s40, hwreg(HW_REG_XCC_ID)')
    a('s_and_b32 s40, s40, 15')
    a('s_lshl_b32 s41, s40, 2')
    a('s_cmp_eq_u32 s%d, 0' % S_W)
    a('s_cselect_b32 s36, s36, %d' % OOB)
    a('s_cselect_b32 s37, s37, %d' % OOB)
    a('s_cselect_b32 s38, s%d, %d' % (S_MB, OOB))
    a('s_cselect_b32 s41, s41, 0x1000')
    a('v_mov_b32 v90, 1')
    a('s_mov_b64 exec, 0xf')
    a('buffer_store_dword v%d, v%d, s[4:7], s36 offen sc1' % (VZ, VL4))
    a('s_mov_b64 exec, 0x3')
    a('buffer_store_dword v%d, v%d, s[4:7], s37 offen sc1' % (VZ, VL4))
    a('buffer_store_dword v%d, v%d, s[4:7], s38 offen sc1' % (VZ, VL4))
    a('s_mov_b64 exec, 1')
    a('buffer_atomic_add v90, v%d, s[84:87], s41 offen sc0 sc1' % VZ, tag='tk')
    a('s_mov_b64 exec, -1')
    a('v_lshlrev_b32 v74, 8, v88')
    a('v_add_u32 v74, s49, v74')
    a('v_lshlrev_b32 v75, 3, v89')
    a('s_mul_i32 s54, s50, 163840')
    a('s_lshl_b32 s3, s51, 11')
    a('s_add_u32 s54, s54, s3')
    a('s_add_u32 s54, s54, %d' % WQKV_T)
    for T in range(8):
        b, hf = T >> 1, T & 1
        const = 0
        for c in range(4):
            const |= qkv_sg(4 * b + c, hf) << (8 * c)
        a('s_mov_b32 s3, 0x%x' % const)
        a('v_bfe_u32 v%d, s3, v75, 8' % (76 + T))
        a('v_lshl_add_u32 v%d, v%d, 3, v74' % (76 + T, 76 + T))
    xconv()
    a.wait_vm('u')
    stamp(a, 5)
    for T in range(8):
        a('ds_read_b64_tr_b16 %s, v%d' % (vr(R0 + 4 * T, 2), 76 + T))
        a('ds_read_b64_tr_b16 %s, v%d offset:4096' % (vr(R0 + 2 + 4 * T, 2), 76 + T))
    a('v_cmp_le_u32 s[50:51], 4, v70')
    a('v_cmp_gt_u32 s[52:53], 12, v70')
    a.wait_lg_all()
    for q in range(4):
        a('v_cndmask_b32 v%d, 0, v%d, s[50:51]' % (R0 + 12 + q, R0 + 12 + q))
        a('v_cndmask_b32 v%d, 0, v%d, s[52:53]' % (R0 + 28 + q, R0 + 28 + q))
    for T in range(8):
        a('s_add_u32 s55, s54, %d' % ((T >> 1) * 40960 + (T & 1) * 1024))
        a('buffer_store_dwordx4 %s, v1, s[4:7], s55 offen sc1' % vr(R0 + 4 * T, 4))
    a.wait_vm_all()
    stamp(a, 1)
    a('s_barrier')
    a('s_cmp_lg_u32 s%d, 0' % S_W)
    a('s_cbranch_scc1 %s' % LE)
    a('v_readfirstlane_b32 s42, v90')
    a('s_cmp_ge_u32 s42, 32')
    a('s_cselect_b32 s43, 0x10001, 1')
    a('s_cmp_ge_u32 s40, 8')
    a('s_cselect_b32 s43, 0x10001, s43')
    a('v_mov_b32 v91, s43')
    a('s_mov_b64 exec, 1')
    a('buffer_atomic_add v91, v%d, s[84:87], 0 offen offset:128 sc0 sc1' % VZ)
    a('s_mov_b64 exec, -1')
    a.wait_vm_all()
    a('v_readfirstlane_b32 s44, v91')
    a('s_add_u32 s44, s44, s43')
    a('s_and_b32 s3, s44, 0xffff')
    a('s_cmp_lg_u32 s3, 256')
    a('s_cbranch_scc1 %s' % LE)
    a('s_lshr_b32 s3, s44, 16')
    a('s_cmp_eq_u32 s3, 0')
    a('s_cselect_b32 s3, 1, 2')
    broadcast(a, 's3', 0)
    a('s_branch %s' % LE)
    a.label(LG)
    a.vm = vm0
    a('s_sub_u32 s3, s48, 512')
    a('s_add_u32 s48, s48, 192')
    a('s_cmp_eq_u32 s%d, 1' % S_W)
    a('s_cselect_b32 s48, s48, s3')
    a('s_lshl_b32 s48, s48, 1')
    a('s_cmp_ge_u32 s48, 1280')
    a('s_cselect_b32 s55, %d, 0' % OOB)
    a('s_cselect_b32 s48, 0, s48')
    a('v_bfe_u32 v70, v0, 3, 2')
    a('v_and_b32 v71, 7, v0')
    a('v_lshlrev_b32 v71, 4, v71')
    a('v_lshrrev_b32 v72, 5, v0')
    a('v_lshlrev_b32 v74, 7, v88')
    a('v_lshl_add_u32 v74, v89, 3, v74')
    a('v_add_u32 v74, s49, v74')
    L1 = a.newlabel('pg_w1')
    L2 = a.newlabel('pg_w2')
    LD = a.newlabel('pg_go')
    a('s_cmp_ge_u32 s48, 740')
    a('s_cbranch_scc1 %s' % L2)
    a('s_cmp_ge_u32 s48, 200')
    a('s_cbranch_scc1 %s' % L1)
    KG = ((45, 46), (47, 59))
    for (lab, sub, src, nb, gpr, magic, pitch, dest, KS, kind) in (
            (None, 0, 68, 640 * 1280, 10, 6554, 1280, WO_T, 20, 'o'),
            (L1, 200, 72, 640 * 3456, 27, 2428, 3456, W1_T, 0, 'x'),
            (L2, 740, 76, 1728 * 1280, 10, 6554, 1280, W2_T, 54, 'h')):
        if lab:
            a.label(lab)
        if sub:
            a('s_sub_u32 s48, s48, %d' % sub)
        make_srd(a, 8, src, nb)
        a('s_mov_b32 s42, %d' % pitch)
        a('s_mov_b32 s43, %d' % dest)
        a('s_mov_b32 s44, %d' % KS)
        for uu in range(2):
            ks, G = KG[uu]
            a('s_add_u32 s3, s48, %d' % uu)
            a('s_mul_i32 s%d, s3, %d' % (ks, magic))
            a('s_lshr_b32 s%d, s%d, 16' % (ks, ks))
            a('s_mul_i32 s50, s%d, %d' % (ks, gpr))
            a('s_sub_u32 s%d, s3, s50' % G)
            for gh in range(2):
                a('s_lshl_b32 s3, s%d, 2' % ks)
                a('s_add_u32 s3, s3, %d' % (2 * gh))
                a('v_add_u32 v73, s3, v72')
                idx = uu * 2 + gh
                v_order(a, kind, 73, 76 + 2 * idx, 77 + 2 * idx, 84)
        if lab != L2:
            a('s_branch %s' % LD)
    a.label(LD)
    a('s_add_u32 s43, s43, s55')
    for uu in range(2):
        for i in range(4):
            idx = uu * 2 + (i & 1)
            d = 128 + uu * 4 + i
            a('v_add_u32 v%d, v%d, v70' % (d, 76 + 2 * idx))
            if i >> 1:
                a('v_add_u32 v%d, v%d, v%d' % (d, d, 77 + 2 * idx))
            a('v_mul_lo_u32 v%d, v%d, s42' % (d, d))
            a('v_add_u32 v%d, v%d, v71' % (d, d))
    xconv()
    for uu in range(2):
        ks, G = KG[uu]
        a('s_lshl_b32 s50, s%d, 7' % G)
        a('s_add_u32 s50, s50, s55')
        for i in range(4):
            a('s_add_u32 m0, s49, %d' % (4096 * uu + 1024 * i))
            a('buffer_load_dwordx4 v%d, s[8:11], s50 offen lds' % (128 + uu * 4 + i), tag='u')
    a.wait_vm('xs')
    stamp(a, 1)
    a('s_barrier')
    a.wait_vm_all()
    stamp(a, 6)
    for uu in range(2):
        for q in range(4):
            r = R0 + 16 * uu + 4 * q
            a('ds_read_b64_tr_b16 %s, v74 offset:%d' % (vr(r, 2), 4096 * uu + 32 * q))
            a('ds_read_b64_tr_b16 %s, v74 offset:%d' % (vr(r + 2, 2), 4096 * uu + 32 * q + 2048))
    first = True
    for uu in range(2):
        ks, G = KG[uu]
        for q in range(4):
            r = R0 + 16 * uu + 4 * q
            a('s_lshl_b32 s50, s%d, 2' % G)
            a('s_add_u32 s50, s50, %d' % q)
            a('s_lshr_b32 s51, s50, 1')
            a('s_mul_i32 s51, s51, 20')
            a('s_add_u32 s51, s51, s%d' % ks)
            a('s_lshl_b32 s51, s51, 1')
            a('s_add_u32 s51, s51, %d' % (q & 1))
            a('s_mul_i32 s52, s50, 205')
            a('s_lshr_b32 s52, s52, 10')
            a('s_mul_i32 s53, s52, 5')
            a('s_sub_u32 s53, s50, s53')
            a('s_mul_i32 s52, s52, s44')
            a('s_add_u32 s52, s52, s%d' % ks)
            a('s_mul_i32 s52, s52, 5')
            a('s_add_u32 s52, s52, s53')
            a('s_cmp_eq_u32 s44, 0')
            a('s_cselect_b32 s51, s51, s52')
            a('s_lshl_b32 s51, s51, 10')
            a('s_add_u32 s51, s51, s43')
            if first:
                a.wait_lg_all()
                first = False
            a('buffer_store_dwordx4 %s, v1, s[4:7], s51 offen sc1' % vr(r, 4))
    a.wait_vm_all()
    a.label(LE)
    a.vm = []
    stamp(a, 2)
    a('s_barrier')


def gen_roles(a):
    LO = a.newlabel('role_other')
    a('s_cmp_lg_u32 s%d, 0' % S_W)
    a('s_cbranch_scc1 %s' % LO)
    a('v_mov_b32 v91, 1')
    a('s_mov_b64 exec, 1')
    a('buffer_atomic_add v91, v%d, s[84:87], 0 offen offset:132 sc0 sc1' % VZ)
    a('s_mov_b64 exec, -1')
    poll(a, S_MB, '1', lanes=1, sleep=OPT['gsleep'])
    a('v_readfirstlane_b32 s43, v162')
    a('s_lshl_b32 s41, s40, 5')
    a('s_add_u32 s41, s41, s42')
    a('s_or_b32 s41, s41, 0x%x' % (0 if OPT['force_slow'] else 0x100))
    a('s_cmp_eq_u32 s43, 1')
    a('s_cselect_b32 s41, s41, s2')
    a('v_mov_b32 v64, s41')
    a('v_mov_b32 v65, %d' % L_ROLE)
    a('ds_write_b32 v65, v64')
    a('v_readfirstlane_b32 s44, v91')
    LN = a.newlabel('notlast')
    a('s_cmp_lg_u32 s44, 255')
    a('s_cbranch_scc1 %s' % LN)
    broadcast(a, '1', 4)
    a.label(LN)
    a('s_waitcnt lgkmcnt(0)')
    a.label(LO)
    a('s_barrier')
    a('v_mov_b32 v65, %d' % L_ROLE)
    a('ds_read_b32 v64, v65')
    a('s_waitcnt lgkmcnt(0)')
    a.lg = []
    a.vm = []
    a('v_readfirstlane_b32 s41, v64')
    a('s_bfe_u32 s%d, s41, 0x40004' % S_TEAM)
    a('s_and_b32 s%d, s41, 15' % S_J)
    a('s_bfe_u32 s%d, s41, 0x10008' % S_FAST)
    stamp(a, 3)


def wloads(base_sgpr, slots, frags, srd='s[4:7]', tagp='w', special=None):
    gs = wloads0(base_sgpr, slots, frags, srd, tagp, special)
    bit = {'wq': 1, 'wo': 2, 'w1': 4, 'w2': 8}[tagp]
    if OPT['wnt'] & bit:
        for g in gs:
            g[-1] = ('i', g[-1][1] + ' nt', g[-1][2])
    return gs


def wloads0(base_sgpr, slots, frags, srd='s[4:7]', tagp='w', special=None):
    groups = []
    cur = None
    for f in frags:
        g = []
        if special and f in special:
            sreg, off = special[f]
            g.append(('i', 'buffer_load_dwordx4 %s, v1, %s, s%d offen offset:%d' % (slot_reg(slots[f]), srd, sreg, off), tagp))
            groups.append(g)
            continue
        blk = f // 4
        if blk != cur:
            g.append(('i', 's_add_u32 s%d, s%d, %d' % (S_PF, base_sgpr, blk * 4096), None))
            cur = blk
        g.append(('i', 'buffer_load_dwordx4 %s, v1, %s, s%d offen offset:%d' % (slot_reg(slots[f]), srd, S_PF, (f % 4) * 1024), tagp))
        groups.append(g)
    return groups


def w2loads(frags):
    sp = {65 + q: (S_W2X, q * 1024) for q in range(4)}
    groups = wloads(S_W2, W2_SL, [f for f in frags if f != 69], tagp='w2', special=sp)
    if 69 in frags:
        groups.append([('i', 's_add_u32 s%d, s%d, 4096' % (S_PF, S_W2X), None),
                       ('i', 'buffer_load_dwordx4 %s, v1, s[4:7], s%d offen' % (slot_reg(W2_SL[69]), S_PF), 'w2')])
    return groups


def now(a, gs):
    for g in gs:
        for it in g:
            a.emit_item(it)


def gen_setup(a):
    a('s_lshl_b32 s40, s%d, 2' % S_J)
    a('s_add_u32 s40, s40, s%d' % S_W)
    a('s_mul_i32 s%d, s40, 40960' % S_WQ)
    a('s_add_u32 s%d, s%d, %d' % (S_WQ, S_WQ, WQKV_T))
    wq = wloads(S_WQ, WQ_SL, range(40), tagp='wq')
    now(a, wq[:8])
    tile_scalars(a)
    make_srd(a, 12, 80, 2048 * 1280)
    a('s_min_u32 s%d, s40, 53' % S_BLK)
    a('s_mul_i32 s%d, s%d, 40960' % (S_W1, S_BLK))
    a('s_add_u32 s%d, s%d, %d' % (S_W1, S_W1, W1_T))
    a('s_mul_i32 s41, s%d, 20' % S_CG)
    a('s_mul_i32 s3, s%d, 5' % S_W)
    a('s_add_u32 s41, s41, s3')
    a('s_mul_i32 s41, s41, 5120')
    a('s_add_u32 s%d, s41, %d' % (S_WO, WO_T))
    a('s_mul_i32 s%d, s%d, 14' % (S_KS0, S_W))
    a('s_cmp_eq_u32 s%d, 3' % S_W)
    a('s_cselect_b32 s3, 1, 0')
    a('s_sub_u32 s%d, s%d, s3' % (S_KS0, S_KS0))
    a('s_mul_i32 s41, s%d, 54' % S_CG)
    a('s_add_u32 s41, s41, s%d' % S_KS0)
    a('s_mul_i32 s41, s41, 5120')
    a('s_add_u32 s%d, s41, %d' % (S_W2, W2_T))
    a('s_add_u32 s41, s%d, %d' % (S_W2, 65 * 1024))
    a('s_cmp_ge_u32 s%d, 2' % S_W)
    a('s_cselect_b32 s%d, %d, s41' % (S_W2X, OOB))
    a('s_lshl_b32 s%d, s%d, 8' % (S_TFL, S_TEAM))
    a('s_add_u32 s%d, s%d, %d' % (S_TFL, S_TFL, FL))
    a('s_lshl_b32 s3, s40, 2')
    a('s_add_u32 s%d, s%d, s3' % (S_FLAG, S_TFL))
    a('s_mov_b32 s%d, 0' % S_PH)
    a('s_mov_b32 s%d, 0' % S_XOFF)
    a('s_and_b32 s3, s%d, 7' % S_TEAM)
    a('s_cmp_eq_u32 s3, 0')
    a('s_cselect_b32 s41, 0, 1')
    a('s_sub_u32 s41, s%d, s41' % S_TEAM)
    a('s_lshl_b32 s41, s41, 3')
    a('s_add_u32 s41, s41, 7')
    a('s_mul_i32 s%d, s41, 20480' % S_HSRC)
    a('s_add_u32 s%d, s%d, %d' % (S_HSRC, S_HSRC, XB[0]))
    a('s_lshl_b32 s%d, s41, 10' % S_HSTS)
    a('s_add_u32 s%d, s%d, %d' % (S_HSTS, S_HSTS, STB[0]))
    now(a, wq[8:16])
    a('v_and_b32 v70, 15, v0')
    a('v_lshrrev_b32 v71, 4, v0')
    a('v_lshlrev_b32 v71, 2, v71')
    a('v_sub_u32 v71, v71, v70')
    a('v_mov_b32 v72, 0x%x' % f32bits(-1e30))
    a('v_mov_b32 v73, 0xffff')
    a('v_mov_b32 v74, 0xffff0000')
    a('s_and_b32 s3, s%d, 7' % S_TEAM)
    a('s_or_b32 s3, s3, s%d' % S_W)
    a('s_cmp_lg_u32 s3, 0')
    a('s_cselect_b64 s[42:43], -1, 0')
    for e in range(4):
        a('v_add_u32 v75, %d, v71' % (e + 7))
        a('v_cmp_ge_u32 vcc, 7, v75')
        a('v_cndmask_b32 v%d, v72, 0, vcc' % (BIASC + e))
        a('v_cndmask_b32 v76, 0, v%d, vcc' % (73 + (e & 1)))
        if e & 1:
            a('v_or_b32 v%d, v%d, v76' % (MASKC + (e >> 1), MASKC + (e >> 1)))
        else:
            a('v_mov_b32 v%d, v76' % (MASKC + (e >> 1)))
        a('v_cmp_le_i32 vcc, 16, v75')
        a('v_cndmask_b32 v%d, v72, 0, vcc' % (BIASP + e))
        a('v_cndmask_b32 v76, 0, v%d, vcc' % (73 + (e & 1)))
        if e & 1:
            a('v_or_b32 v%d, v%d, v76' % (MASKP + (e >> 1), MASKP + (e >> 1)))
        else:
            a('v_mov_b32 v%d, v76' % (MASKP + (e >> 1)))
        a('v_cndmask_b32 v%d, v72, v%d, s[42:43]' % (BIASP0 + e, BIASP + e))
        now(a, wq[16 + 2 * e:18 + 2 * e])
    a('v_mul_u32_u24 v70, 272, v0')
    a('s_mul_i32 s3, s%d, %d' % (S_W, 32 * 272))
    a('s_add_u32 s3, s3, %d' % (L_SCR + 16 * 272 + 256))
    a('v_add_u32 v70, s3, v70')
    for q in range(4):
        a('v_mov_b32 v%d, 0' % (72 + q))
    a('s_mov_b64 exec, 0xffffffff')
    a('ds_write_b128 v70, v[72:75]')
    a('s_mov_b64 exec, -1')
    now(a, wq[24:])


def late_consts(a):
    a('v_lshrrev_b32 v162, 4, v0')
    a('v_lshlrev_b32 v162, 3, v162')
    make_srd(a, 8, 74, 1728 * 2)
    a('s_lshl_b32 s3, s%d, 6' % S_BLK)
    a('buffer_load_dwordx2 %s, v162, s[8:11], s3 offen' % vr(B1R, 2))
    a('buffer_load_dwordx2 %s, v162, s[8:11], s3 offen offset:32' % vr(B1R + 2, 2))
    make_srd(a, 8, 78, 640 * 2)
    for s in range(5):
        a('buffer_load_dwordx2 %s, v162, s[8:11], s%d offen offset:%d' % (vr(B2R + 2 * s, 2), S_COL, 32 * s))
    tile5_voff(a, 162, 163)
    a('s_add_u32 s36, s%d, %d' % (S_XT, XB[0]))
    a('buffer_load_dwordx4 %s, v1, s[4:7], s36 offen sc1' % vr(XRES, 4))
    a('buffer_load_dwordx4 %s, v1, s[4:7], s36 offen offset:1024 sc1' % vr(XRES + 4, 4))
    a('buffer_load_dwordx2 %s, v162, s[4:7], s36 offen offset:2048 sc1' % vr(XRES + 8, 2))


AQ0, AQ1, AK, AV1, AV2, AO2 = 128, 129, 130, 131, 132, 133
C_SCALE = (20 ** -0.5) * math.log2(math.e)


def attn_addr(a, T):
    a('s_mul_i32 s47, s%d, %d' % (S_W, TP))
    a('s_add_u32 s47, s47, %d' % L_SCR)
    a('v_and_b32 v%d, 15, v0' % T)
    a('v_mul_u32_u24 v%d, 272, v%d' % (T, T))
    a('v_add_u32 v%d, s47, v%d' % (T, T))
    a('v_lshrrev_b32 v%d, 4, v0' % (T + 1))
    a('v_lshlrev_b32 v%d, 3, v%d' % (T + 1, T + 1))
    for reg, tab in ((AQ0, (0, 1, 4, 16)), (AQ1, (2, 3, 15, 16)), (AK, (5, 6, 9, 9))):
        c = sum(t << (8 * i) for i, t in enumerate(tab))
        a('s_mov_b32 s3, 0x%x' % c)
        a('v_bfe_u32 v%d, s3, v%d, 8' % (reg, T + 1))
        a('v_lshl_add_u32 v%d, v%d, 4, v%d' % (reg, reg, T))
    a('v_lshrrev_b32 v%d, 2, v0' % AV2)
    a('v_mul_u32_u24 v%d, 272, v%d' % (AV2, AV2))
    a('v_add_u32 v%d, s47, v%d' % (AV2, AV2))
    a('v_and_b32 v%d, 3, v0' % T)
    a('v_lshl_add_u32 v%d, v%d, 3, v%d' % (AV1, T, AV2))
    a('v_mov_b32 v%d, 0x%x' % (T, OOB))
    a('v_cmp_gt_u32 vcc, 16, v0')
    a('v_cndmask_b32 v%d, v%d, v1, vcc' % (AO2, T))
    a('s_lshl_b32 s47, s%d, 3' % S_TEAM)
    a('s_add_u32 s47, s47, s%d' % S_W)
    a('s_mul_i32 s47, s47, 20480')
    a('s_mul_i32 s3, s%d, 1280' % S_J)
    a('s_add_u32 s47, s47, s3')
    a('s_mul_i32 s3, s%d, %d' % (S_PASS, XSZ))
    a('s_add_u32 s47, s47, s3')
    a('s_add_u32 s47, s47, %d' % OB[0])
    a('s_mov_b32 s48, 0x%x' % f32bits(C_SCALE))


def attn_units(r, batch, units, OUT, bg):
    off = batch * 4 * TP
    tg = 'b%d' % batch
    bp = BIASP0 if batch == 0 else BIASP
    for (h, Q, K, S) in units:
        r('ds_read_b128 %s, v%d offset:%d' % (vr(Q, 4), AQ1 if h else AQ0, off + TP), tag=tg + 'q%d' % h)
        r('ds_read_b128 %s, v%d offset:%d' % (vr(K, 4), AK, off + 80 * h), tag=tg + 'q%d' % h)
        r('ds_read_b128 %s, v%d offset:%d' % (vr(K + 4, 4), AK, off + 80 * h + TP), tag=tg + 'q%d' % h)
    if bg:
        r.delay(8)
    for (h, Q, K, S) in units:
        r.wait_lg(tg + 'q%d' % h)
        r('v_mfma_f32_16x16x32_bf16 %s, %s, %s, %s' % (vr(S, 4), vr(K, 4), vr(Q, 4), vr(bp, 4)))
        r('v_mfma_f32_16x16x32_bf16 %s, %s, %s, %s' % (vr(S + 4, 4), vr(K + 4, 4), vr(Q, 4), vr(BIASC, 4)))
    for (h, Q, K, S) in units:
        for i in range(2):
            r('ds_read_b64_tr_b16 %s, v%d offset:%d' % (vr(K + 2 * i, 2), AV1, off + i * TP + 112 + 80 * h), tag=tg + 'v%d' % h)
            r('ds_read_b64_tr_b16 %s, v%d offset:%d' % (vr(K + 4 + 2 * i, 2), AV2, off + i * TP + 152 + 80 * h), tag=tg + 'v%d' % h)

    def each(fn):
        for u in units:
            fn(*u)
    for e in range(4):
        each(lambda h, Q, K, S: r('v_max_f32 v%d, v%d, v%d' % (S + e, S + e, S + 4 + e)))
    each(lambda h, Q, K, S: r('v_max3_f32 v%d, v%d, v%d, v%d' % (S + 4, S, S + 1, S + 2)))
    each(lambda h, Q, K, S: r('v_max_f32 v%d, v%d, v%d' % (S + 4, S + 4, S + 3)))
    for sw in ('v_permlane16_swap_b32', 'v_permlane32_swap_b32'):
        each(lambda h, Q, K, S: r('v_mov_b32 v%d, v%d' % (S + 5, S + 4)))
        if bg:
            r.delay(1)
        each(lambda h, Q, K, S: r('%s v%d, v%d' % (sw, S + 4, S + 5)))
        each(lambda h, Q, K, S: r('v_max_f32 v%d, v%d, v%d' % (S + 4, S + 4, S + 5)))
    each(lambda h, Q, K, S: r('v_mul_f32 v%d, s48, v%d' % (S + 4, S + 4)))
    for e in range(4):
        each(lambda h, Q, K, S: r('v_fma_f32 v%d, v%d, s48, -v%d' % (S + e, S + e, S + 4)))
    for e in range(4):
        each(lambda h, Q, K, S: r('v_exp_f32 v%d, v%d' % (S + e, S + e)))
    each(lambda h, Q, K, S: r('v_add_f32 v%d, v%d, v%d' % (S + 4, S, S + 1)))
    each(lambda h, Q, K, S: r('v_add_f32 v%d, v%d, v%d' % (S + 5, S + 2, S + 3)))
    each(lambda h, Q, K, S: r('v_add_f32 v%d, v%d, v%d' % (S + 4, S + 4, S + 5)))
    for sw in ('v_permlane16_swap_b32', 'v_permlane32_swap_b32'):
        each(lambda h, Q, K, S: r('v_mov_b32 v%d, v%d' % (S + 5, S + 4)))
        if bg:
            r.delay(1)
        each(lambda h, Q, K, S: r('%s v%d, v%d' % (sw, S + 4, S + 5)))
        each(lambda h, Q, K, S: r('v_add_f32 v%d, v%d, v%d' % (S + 4, S + 4, S + 5)))
    each(lambda h, Q, K, S: r('v_rcp_f32 v%d, v%d' % (S + 4, S + 4)))
    for e in range(4):
        each(lambda h, Q, K, S: r('v_mul_f32 v%d, v%d, v%d' % (S + e, S + e, S + 4)))
    for q in range(2):
        each(lambda h, Q, K, S: r('v_cvt_pk_bf16_f32 v%d, v%d, v%d' % (S + 4 + q, S + 2 * q, S + 2 * q + 1)))
    for q, (m, x) in enumerate(((MASKP, 0), (MASKP + 1, 1), (MASKC, 0), (MASKC + 1, 1))):
        each(lambda h, Q, K, S: r('v_and_b32 v%d, v%d, v%d' % (Q + q, S + 4 + x, m)))
    if bg:
        r.delay(1)
    for (h, Q, K, S) in units:
        r.wait_lg(tg + 'v%d' % h)
        r('v_mfma_f32_16x16x32_bf16 %s, %s, %s, 0' % (vr(S, 4), vr(K, 4), vr(Q, 4)))
        r('v_mfma_f32_16x16x32_bf16 %s, %s, %s, 0' % (vr(S + 4, 4), vr(K + 4, 4), vr(Q, 4)))
    if bg:
        r.delay(4)
    for (h, Q, K, S) in units:
        for t in range(2):
            for q in range(2):
                r('v_cvt_pk_bf16_f32 v%d, v%d, v%d' % (OUT + 4 * t + 2 * h + q, S + 4 * t + 2 * q, S + 4 * t + 2 * q + 1))


def attn_store(r, batch, OUT):
    r('s_add_u32 s%d, s47, %d' % (S_QA, batch * 4 * 20480))
    r('buffer_store_dwordx4 %s, v1, s[4:7], s%d offen sc1' % (vr(OUT, 4), S_QA), tag='pub')
    r('buffer_store_dwordx4 %s, v%d, s[4:7], s%d offen offset:1024 sc1' % (vr(OUT + 4, 4), AO2, S_QA), tag='pub')


P3_PENDING_W2 = []


def gen_nsplit(a, which):
    p1 = which == 1
    WSL = WQ_SL if p1 else W1_SL
    wtag = 'wq' if p1 else 'w1'
    CS = CS1 if p1 else CS3
    ACC = [64, 72]
    FR = 80
    STP = 112
    PK = 116
    VB = 124
    VSW, VSR = 126, 127
    SR = 136
    T0 = 152
    st_i = 10 if p1 else 30
    NT = 9 if p1 else 8
    xin = XB[0] if p1 else XB[1]
    stin = STB[0] if p1 else STB[1]
    LEAD = 3
    a.flush_m(pred=lambda g: g[-1][2] == wtag)
    a('s_mul_i32 s44, s%d, 5120' % S_W)
    a('s_mul_i32 s45, s%d, 163840' % S_TEAM)
    a('s_add_u32 s45, s45, s%d' % S_XOFF)
    a('s_add_u32 s45, s45, s44')
    if p1:
        a('s_add_u32 s46, s%d, s44' % S_HSRC)
        attn_addr(a, T0)
    a('v_lshrrev_b32 v%d, 4, v0' % T0)
    a('s_lshl_b32 s3, s%d, 2' % S_W)
    a('v_add_u32 v%d, s3, v%d' % (T0, T0))
    a('v_and_b32 v%d, 15, v0' % (T0 + 1))
    a('v_lshlrev_b32 v%d, 3, v%d' % (VSR, T0 + 1))
    a('v_lshl_add_u32 v%d, v%d, 10, v%d' % (T0 + 3, T0, VSR))
    a('v_add_u32 v%d, %d, v%d' % (VSR, L_STAT, VSR))
    a('v_min_u32 v%d, 11, v%d' % (T0 + 2, T0))
    a('v_lshl_add_u32 v%d, v%d, 7, v%d' % (T0 + 2, T0 + 2, VSR))
    a('s_lshl_b32 s40, s%d, 13' % S_TEAM)
    a('s_lshl_b32 s3, s%d, 18' % S_PASS)
    a('s_add_u32 s40, s40, s3')
    a('s_add_u32 s40, s40, %d' % (stin - (1024 if p1 else 0)))
    a('v_mov_b32 v%d, s40' % (T0 + 4))
    if p1:
        a('v_mov_b32 v%d, s%d' % (T0 + 5, S_HSTS))
        a('v_cmp_eq_u32 vcc, 0, v%d' % T0)
        a('v_cndmask_b32 v%d, v%d, v%d, vcc' % (T0 + 4, T0 + 4, T0 + 5))
    a('v_mov_b32 v%d, 0x%x' % (T0 + 5, OOB))
    a('v_cmp_gt_u32 vcc, %d, v%d' % (NT, T0))
    a('v_cndmask_b32 v%d, v%d, v%d, vcc' % (T0 + 4, T0 + 5, T0 + 4))
    a('v_add_u32 v%d, v%d, v%d' % (T0 + 3, T0 + 3, T0 + 4))
    a('v_mov_b32 v%d, v1' % VB)
    a('v_add_u32 v%d, %d, v1' % (VB + 1, 3 * SLOT))
    if p1:
        a('v_mul_u32_u24 v%d, 272, v%d' % (VSW, T0 + 1))
        a('v_lshl_add_u32 v%d, v%d, 4, v%d' % (VSW, T0, VSW))
        a('v_add_u32 v%d, %d, v%d' % (VSW, L_SCR, VSW))
    else:
        a('s_lshl_b32 s41, s%d, 3' % S_TEAM)
        a('s_mul_i32 s41, s41, 54')
        a('s_add_u32 s41, s41, s%d' % S_BLK)
        a('s_lshl_b32 s41, s41, 10')
        a('s_mul_i32 s3, s%d, %d' % (S_PASS, HSZ))
        a('s_add_u32 s41, s41, s3')
        a('s_add_u32 s41, s41, %d' % HB[0])
    a('s_mov_b32 s42, 0x%x' % f32bits(-1.0 / 640.0))
    a('s_mov_b32 s43, 0x%x' % f32bits(1e-5))

    def colsum():
        for q in range(4):
            a('v_mov_b32 v%d, 0x%x' % (PK + 4 + q, ONES))
        if not p1:
            for q in (3, 2, 1, 0):
                a('v_and_b32 v%d, 0xffff0000, v%d' % (B1R + 1 + 2 * q, B1R + q))
                a('v_lshlrev_b32 v%d, 16, v%d' % (B1R + 2 * q, B1R + q))
        a.wait_vm(wtag)
        for ks in range(20):
            for t in range(2):
                d = vr(ACC[1] + 4 * t, 4)
                a('v_mfma_f32_16x16x32_bf16 %s, %s, %s, %s' % (d, slot_reg(WSL[ks * 2 + t]), vr(PK + 4, 4), '0' if ks == 0 else d))
        for q in range(8):
            a('v_mov_b32 v%d, v%d' % (CS + q, ACC[1] + q))

    if p1:
        LS = a.newlabel('p1_nowait')
        a('s_cmp_eq_u32 s%d, 0' % S_PASS)
        a('s_cbranch_scc1 %s' % LS)
        poll(a, S_TFL, 's%d' % S_PH)
        LH = a.newlabel('p1_nohalo')
        a('s_and_b32 s49, s%d, 7' % S_TEAM)
        a('s_cmp_eq_u32 s49, 0')
        a('s_cbranch_scc1 %s' % LH)
        a('s_lshl_b32 s49, s%d, 7' % S_TEAM)
        a('s_add_u32 s49, s49, %d' % (HF - 128))
        poll(a, 49, '1', lanes=0xff)
        a.label(LH)
        a.label(LS)
        a.vm = ['wq'] * 40
    else:
        LC = a.newlabel('nocs')
        a('s_cmp_lg_u32 s%d, 0' % S_PASS)
        a('s_cbranch_scc1 %s' % LC)
        colsum()
        a.label(LC)
        poll(a, S_TFL, 's%d' % S_PH)
    stamp(a, st_i)
    LSKIP = None
    if not p1:
        LSKIP = a.newlabel('p3_skip')
        a('s_cmp_ge_u32 s%d, 14' % S_J)
        a('s_cbranch_scc1 %s' % LSKIP)

    def tile_dma(T):
        gs = []
        if p1 and T == 0:
            sb, go = 46, 0
        else:
            sb, go = 45, xin + (T - 1 if p1 else T) * SLOT
        for i in range(5):
            g = []
            if i % 4 == 0:
                g.append(('i', 's_add_u32 m0, s44, %d' % ((T % NSLOT) * SLOT + i * 1024), None))
                g.append(('i', 's_add_u32 s%d, s%d, %d' % (S_DMA, sb, go + i * 1024), None))
            g.append(('i', 'buffer_load_dwordx4 v1, s[4:7], s%d offen offset:%d%s lds' % (S_DMA, (i % 4) * 1024, LDM()), 'd%d' % T))
            gs.append(g)
        return gs

    now(a, tile_dma(0))
    for q in range(8):
        a('buffer_load_dwordx2 %s, v%d, s[4:7], 0 offen offset:%d%s' % (vr(SR + 2 * q, 2), T0 + 3, 128 * q, LDM()), tag='st')
    now(a, tile_dma(1))
    if p1:
        LC = a.newlabel('nocs')
        a('s_cmp_lg_u32 s%d, 0' % S_PASS)
        a('s_cbranch_scc1 %s' % LC)
        vm0 = list(a.vm)
        colsum()
        a.label(LC)
        a.vm = vm0
    r = Rec()
    r.wait_vm('st')
    for lvl in (8, 4, 2):
        for q in range(lvl):
            r('v_add_f32 v%d, v%d, v%d' % (SR + q, SR + q, SR + lvl + q))
    r('v_mul_f32 v%d, s42, v%d' % (SR, SR))
    r('v_mul_f32 v%d, s42, v%d' % (SR + 1, SR + 1))
    r('v_fma_f32 v%d, v%d, v%d, v%d' % (SR + 1, SR, SR, SR + 1))
    r('v_min_f32 v%d, 0, v%d' % (SR + 1, SR + 1))
    r('v_sub_f32 v%d, s43, v%d' % (SR + 1, SR + 1))
    r('v_rsq_f32 v%d, v%d' % (SR + 1, SR + 1))
    r('ds_write_b64 v%d, %s' % (T0 + 2, vr(SR, 2)), tag='stw')
    stats_items = r.items
    a.wait_vm(wtag)
    a.wait_vm('d0')
    a.wait_lg_all()
    a('s_barrier')
    stamp(a, st_i + 1)
    held = []
    if p1:
        held = wloads(S_WO, WO_SL, range(25), tagp='wo') + wloads(S_W1, W1_SL, range(22), tagp='w1')
    a.qm = tile_dma(2) + tile_dma(3) + a.qm

    NF = NT * 20
    DEPTH = 6

    def rd(n):
        T, ks = divmod(n, 20)
        sl = T % NSLOT
        return ('i', 'ds_read_b128 %s, v%d offset:%d' % (vr(FR + 4 * (n % 8), 4), VB + sl // 3, (sl % 3) * SLOT + ks * 1024), 'f%d' % n)

    def sp_read(T):
        return ('i', 'ds_read_b64 %s, v%d offset:%d' % (vr(STP + 2 * (T & 1), 2), VSR, T * 128), 'sp%d' % T)

    def epilogue(r, T, pk):
        b = ACC[T & 1]
        sp = STP + 2 * (T & 1)
        P = PK + 4 * (T & 1)
        if not p1:
            r('s_add_u32 s%d, s41, %d' % (S_QV, T * 55296))
        r.wait_lg('sp%d' % T)
        if pk:
            for q in range(4):
                r('v_pk_fma_f32 %s, %s, %s, %s op_sel_hi:[0,1,1]' % (vr(b + 2 * q, 2), vr(sp, 2), vr(CS + 2 * q, 2), vr(b + 2 * q, 2)))
            if p1:
                for q in range(4):
                    r('v_pk_mul_f32 %s, %s, %s op_sel:[1,0]' % (vr(b + 2 * q, 2), vr(sp, 2), vr(b + 2 * q, 2)))
            else:
                for q in range(4):
                    r('v_pk_fma_f32 %s, %s, %s, %s op_sel:[1,0,0]' % (vr(b + 2 * q, 2), vr(sp, 2), vr(b + 2 * q, 2), vr(B1R + 2 * q, 2)))
                for e in range(8):
                    r('v_max_f32 v%d, 0, v%d' % (b + e, b + e))
                for q in range(4):
                    r('v_pk_mul_f32 %s, %s, %s' % (vr(b + 2 * q, 2), vr(b + 2 * q, 2), vr(b + 2 * q, 2)))
        else:
            for e in range(8):
                r('v_fmac_f32 v%d, v%d, v%d' % (b + e, sp, CS + e))
            if p1:
                for e in range(8):
                    r('v_mul_f32 v%d, v%d, v%d' % (b + e, b + e, sp + 1))
            else:
                for e in range(8):
                    r('v_fma_f32 v%d, v%d, v%d, v%d' % (b + e, b + e, sp + 1, B1R + e))
                for e in range(8):
                    r('v_max_f32 v%d, 0, v%d' % (b + e, b + e))
                for e in range(8):
                    r('v_mul_f32 v%d, v%d, v%d' % (b + e, b + e, b + e))
        for q in range(4):
            r('v_cvt_pk_bf16_f32 v%d, v%d, v%d' % (P + q, b + 2 * q, b + 2 * q + 1))
        if p1:
            r('ds_write_b128 v%d, %s offset:%d' % (VSW, vr(P, 4), T * TP), tag='sw')
        else:
            r('buffer_store_dwordx4 %s, v1, s[4:7], s%d offen sc1' % (vr(P, 4), S_QV), tag='pub')

    if OPT['tstamp'] // 10 == which:
        a('s_memtime s[64:65]')
    for n in range(DEPTH):
        a.emit_item(rd(n))
    a.wait_lg('f1')
    nread = DEPTH
    quiet = OPT['quiet1'] if p1 else OPT['quiet3']
    a.pace = OPT['pace']
    OUT = 154
    for n in range(NF):
        T, ks = divmod(n, 20)
        acc = ACC[T & 1]
        if ks == 0:
            a.flush_v()
            if p1 and T == 2:
                LW = a.newlabel('w_ready')
                a('s_cmp_lg_u32 s%d, 0' % S_PASS)
                a('s_cbranch_scc1 %s' % LW)
                vm0 = list(a.vm)
                late_consts(a)
                poll(a, S_MB, '1', lanes=1, off=4)
                a.label(LW)
                a.vm = vm0
                a.qm += held
        a.quiet = (NF - n) * 2 <= quiet
        for t in range(2):
            fg = []
            wait = None
            d = vr(acc + 4 * t, 4)
            if t == 0 and nread < NF:
                if nread % 20 == 0:
                    Tn = nread // 20
                    if Tn == 1:
                        a.flush_v()
                        a.wait_lg('stw')
                    if p1 and Tn == 6 and OPT['attn_loop']:
                        a.flush_v()
                        a.wait_lg('sw')
                    a.flush_m(pred=lambda g: g[-1][2] == 'd%d' % Tn)
                    a.wait_vm('d%d' % Tn)
                    a('s_barrier')
                    if OPT['tstamp'] == which * 10 + 3:
                        a('s_memtime s[%d:%d]' % (64 + 2 * Tn, 65 + 2 * Tn))
                    if Tn + LEAD < NT:
                        pos = max([i + 1 for i, g in enumerate(a.qm) if g[-1][2].startswith('d')] + [0])
                        a.qm[pos:pos] = tile_dma(Tn + LEAD)
                    if p1 and Tn == 6 and OPT['attn_loop']:
                        r = Rec()
                        for h in range(2):
                            attn_units(r, 0, [(h, 134, 138, 146)], OUT, True)
                        attn_store(r, 0, OUT)
                        a.qa += r.items
                fg.append(rd(nread))
                nread += 1
            if t == 1 and (n & 1) == 1 and n + 1 < NF:
                wait = ('wl', 'f%d' % min(n + 2, NF - 1), None)
            if t == 1 and ks == 16:
                fg.append(sp_read(T))
            a.mfma('v_mfma_f32_16x16x32_bf16 %s, %s, %s, %s' % (d, slot_reg(WSL[ks * 2 + t]), vr(FR + 4 * (n % 8), 4), '0' if ks == 0 else d), fg, wait)
        if ks == 1:
            if T == 0:
                a.qv += stats_items
            else:
                r = Rec()
                epilogue(r, T - 1, False)
                a.qv += r.items
    a.quiet = False
    a.flush_v()
    a.flush_a()
    if OPT['tstamp'] // 10 == which:
        a('s_memtime s[82:83]')
        a('s_waitcnt lgkmcnt(0)')
        a.lg = []
        a('s_lshl_b32 s99, s2, 2')
        a('s_add_u32 s99, s99, s%d' % S_W)
        a('s_lshl_b32 s99, s99, 9')
        a('s_lshl_b32 s98, s%d, 8' % S_PASS)
        a('s_add_u32 s99, s99, s98')
        a('s_add_u32 s99, s99, %d' % STAMP_BASE)
        a('s_mov_b64 exec, 1')
        for q in range(10):
            a('v_mov_b32 v163, s%d' % (64 + 2 * q))
            a('buffer_store_dword v163, v%d, s[4:7], s99 offen offset:%d' % (VZ, 4 * q), tag='stamp')
        a('s_mov_b64 exec, -1')
    stamp(a, st_i + 2)
    if p1:
        a.qm += wloads(S_W1, W1_SL, range(22, 40), tagp='w1') + w2loads(range(22))
    else:
        a.qm += w2loads(range(47, 70)) + wloads(S_WQ, WQ_SL, range(17), srd='s[16:19]', tagp='wq')
    r = Rec()
    epilogue(r, NT - 1, True)
    a.run(r, every=0)
    if p1:
        a.wait_lg_all()
        a('s_barrier')
        stamp(a, st_i + 3)
        r = Rec()
        for b in range(1 if OPT['attn_loop'] else 0, 2):
            o = 104 + 8 * b
            attn_units(r, b, [(0, 64, 68, 76), (1, 84, 88, 96)], o, False)
            attn_store(r, b, o)
        a.run(r, every=0)
        stamp(a, st_i + 4)
        publish(a)
        a.flush_m(OPT['burst1'])
    else:
        LJ = a.newlabel('p3_join')
        stamp(a, st_i + 4)
        publish(a)
        a.flush_m(pred=lambda g: g[-1][2] == 'w2')
        a('s_branch %s' % LJ)
        vm_main = list(a.vm)
        a.label(LSKIP)
        a.vm = []
        publish(a)
        now(a, w2loads(P3_PENDING_W2 + list(range(47, 70))))
        a.label(LJ)
        a.vm = vm_main
    stamp(a, st_i + 5)


def gen_ksplit(a, which):
    p2 = which == 2
    NK = 5 if p2 else 14
    KS = 20 if p2 else 54
    WSL = WO_SL if p2 else W2_SL
    wtag = 'wo' if p2 else 'w2'
    ACC = [64, 84]
    RING = 104
    NR = 14
    VW = 160
    VRD = 161
    st_i = 20 if p2 else 40
    a.flush_m(pred=lambda g: g[-1][2] == wtag)
    a('s_lshl_b32 s40, s%d, 3' % S_TEAM)
    a('s_lshr_b32 s3, s%d, 3' % S_J)
    a('s_lshl_b32 s3, s3, 2')
    a('s_add_u32 s40, s40, s3')
    a('s_mul_i32 s40, s40, %d' % KS)
    if p2:
        a('s_mul_i32 s3, s%d, 5' % S_W)
        a('s_add_u32 s40, s40, s3')
    else:
        a('s_add_u32 s40, s40, s%d' % S_KS0)
    a('s_lshl_b32 s40, s40, 10')
    a('s_mul_i32 s3, s%d, %d' % (S_PASS, XSZ if p2 else HSZ))
    a('s_add_u32 s40, s40, s3')
    a('s_add_u32 s40, s40, %d' % (OB[0] if p2 else HB[0]))
    for i in range(4):
        a('s_add_u32 s3, s%d, %d' % (S_W, 1 + i))
        a('s_and_b32 s3, s3, 3')
        a('s_mul_i32 s%d, s3, %d' % (41 + i, KS * 1024))
        a('s_add_u32 s%d, s%d, s40' % (41 + i, 41 + i))
        if i < 3:
            a('s_mul_i32 s%d, s3, 15360' % (52 + i))
        if not p2:
            a('s_add_u32 s%d, s%d, %d' % (48 + i, 41 + i, 13 * 1024))
            a('s_cmp_ge_u32 s%d, 2' % S_W)
            a('s_cselect_b32 s%d, %d, s%d' % (48 + i, OOB, 48 + i))
    a('s_mul_i32 s3, s%d, 15360' % S_W)
    a('v_add_u32 v%d, s3, v1' % VRD)
    xout = XB[1] if p2 else XB[2]
    stout = STB[1] if p2 else STB[2]
    a('s_add_u32 s36, s%d, s%d' % (S_XT, S_XOFF))
    a('s_add_u32 s36, s36, %d' % xout)
    a('s_lshl_b32 s3, s%d, 18' % S_PASS)
    a('s_add_u32 s37, s%d, s3' % S_STT)
    a('s_add_u32 s37, s37, %d' % stout)
    if not p2:
        a('s_lshl_b32 s38, s%d, 7' % S_TEAM)
        a('s_lshl_b32 s3, s%d, 2' % S_CG)
        a('s_add_u32 s38, s38, s3')
        a('s_add_u32 s38, s38, %d' % HF)
        a('s_cmp_eq_u32 s%d, 7' % S_MT)
        a('s_cselect_b32 s38, s38, %d' % OOB)
    poll(a, S_TFL, 's%d' % S_PH)
    stamp(a, st_i)
    seq = [(i, k) for i in range(4) for k in range(NK)]

    def ld(n):
        i, k = seq[n]
        g = []
        reg = vr(RING + 4 * (n % NR), 4)
        if (not p2) and k == 13:
            g.append(('i', 'buffer_load_dwordx4 %s, v1, s[4:7], s%d offen%s' % (reg, 48 + i, LDM()), 'a%d' % n))
            return g
        if k % 4 == 0:
            g.append(('i', 's_add_u32 s%d, s%d, %d' % (S_DMA, 41 + i, k * 1024), None))
        g.append(('i', 'buffer_load_dwordx4 %s, v1, s[4:7], s%d offen offset:%d%s' % (reg, S_DMA, (k % 4) * 1024, LDM()), 'a%d' % n))
        return g

    nld = min(NR, len(seq))
    for n in range(nld):
        for it in ld(n):
            a.emit_item(it)
    own = ACC[1]
    ini = Rec()
    for q in range(10):
        ini('v_lshlrev_b32 v%d, 16, v%d' % (own + 2 * q, XRES + q))
        ini('v_and_b32 v%d, 0xffff0000, v%d' % (own + 2 * q + 1, XRES + q))
    if not p2:
        for q in range(10):
            ini('v_lshlrev_b32 v162, 16, v%d' % (B2R + q))
            ini('v_add_f32 v%d, v%d, v162' % (own + 2 * q, own + 2 * q))
            ini('v_and_b32 v162, 0xffff0000, v%d' % (B2R + q))
            ini('v_add_f32 v%d, v%d, v162' % (own + 2 * q + 1, own + 2 * q + 1))
    n = 0
    PS = ACC[0]
    for i in range(4):
        acc = ACC[i & 1]
        cnt = 0
        a.flush_v()
        for k in range(NK):
            a.quiet = (len(seq) - n) * 5 <= OPT['quiet4']
            a.wait_vm('a%d' % n)
            for s in range(5):
                d = vr(acc + 4 * s, 4)
                fg = []
                if s == 4 and nld < len(seq):
                    fg = ld(nld)
                    nld += 1
                first = (k == 0 and i != 3)
                a.mfma('v_mfma_f32_16x16x32_bf16 %s, %s, %s, %s' % (d, slot_reg(WSL[k * 5 + s]), vr(RING + 4 * (n % NR), 4), '0' if first else d), fg)
                cnt += 1
                if cnt == 3 and i >= 1:
                    pacc = ACC[(i - 1) & 1]
                    r = Rec()
                    r('v_add_u32 v%d, s%d, v1' % (VW, 52 + i - 1))
                    for s2 in range(5):
                        r('ds_write_b128 v%d, %s offset:%d' % (VW, vr(pacc + 4 * s2, 4), ((i - 1) * 5 + s2) * 1024), tag='pw')
                    if i == 2:
                        r.delay(3)
                        r.wait_lg('pw')
                        r.items += ini.items
                    a.qv += r.items
                if i == 3 and cnt == (14 if p2 else 30):
                    a.flush_v()
                    a.wait_lg_all()
                    a('s_barrier')
                    r = Rec()
                    for s2 in range(5):
                        r('ds_read_b128 %s, v%d offset:%d' % (vr(PS + 4 * s2, 4), VRD, s2 * 1024), tag='pr0')
                    a.qv += r.items
            n += 1
    a.quiet = False
    a.flush_v()
    stamp(a, st_i + 1)
    if p2:
        a.qm += w2loads(range(22, 47))
    else:
        a.qm += wloads(S_WQ, WQ_SL, range(17, 40), srd='s[16:19]', tagp='wq')
    for src in (1, 2):
        for s2 in range(5):
            a('ds_read_b128 %s, v%d offset:%d' % (vr(RING + (src - 1) * 20 + 4 * s2, 4), VRD, (src * 5 + s2) * 1024), tag='pr%d' % src)
    tile5_voff(a, 144, 145)
    stat_voff(a, 145, 146)
    a.wait_lg('pr0')
    for q in range(10):
        a('v_pk_add_f32 %s, %s, %s' % (vr(own + 2 * q, 2), vr(own + 2 * q, 2), vr(PS + 2 * q, 2)))
    for src in (1, 2):
        a.wait_lg('pr%d' % src)
        for q in range(10):
            a('v_pk_add_f32 %s, %s, %s' % (vr(own + 2 * q, 2), vr(own + 2 * q, 2), vr(RING + (src - 1) * 20 + 2 * q, 2)))
    for q in range(10):
        a('v_cvt_pk_bf16_f32 v%d, v%d, v%d' % (XRES + q, own + 2 * q, own + 2 * q + 1))
    LF = None
    if not p2:
        LF = a.newlabel('final')
        a('s_cmp_eq_u32 s%d, 1' % S_PASS)
        a('s_cbranch_scc1 %s' % LF)
    store_tile(a, XRES, 36, 144)
    tile_stats(a, XRES, 64)
    a('buffer_store_dwordx2 v[64:65], v145, s[4:7], s37 offen sc1', tag='pub')
    stamp(a, st_i + 2)
    publish(a)
    if not p2:
        a('s_mov_b64 exec, 1')
        a('buffer_store_dword v162, v%d, s[4:7], s38 offen sc1' % VZ)
        a('s_mov_b64 exec, -1')
    else:
        a.flush_m(OPT['burst2'])
    stamp(a, st_i + 3)
    return LF


def main(out):
    global P3_PENDING_W2
    a = Sched()
    name = KNAME + '_kernel'
    a.raw('; @launch grid=(256,1,1) block=(256,1,1) lds=%d' % LDS_SIZE)
    a.raw('.amdgcn_target "amdgcn-amd-amdhsa--gfx950"')
    a.raw('.text')
    a.raw('.globl %s' % name)
    a.raw('.p2align 8')
    a.raw('.type %s,@function' % name)
    a.raw('%s:' % name)
    END = 'k_end'
    gen_prologue(a, END)
    gen_prep(a)
    gen_roles(a)
    gen_setup(a)
    stamp(a, 4)
    a.label('pass_loop')
    gen_nsplit(a, 1)
    gen_ksplit(a, 2)
    a.flush_m(pred=lambda g: g[-1][2] == 'w1')
    pend = []
    for g in a.qm:
        reg = g[-1][1].split()[1].rstrip(',')
        pend.append([i for i in range(70) if slot_reg(W2_SL[i]) == reg][0])
    P3_PENDING_W2 = pend
    a.qm = w2loads(pend)
    gen_nsplit(a, 3)
    LF = gen_ksplit(a, 4)
    a.flush_m()
    a('s_mov_b32 s%d, 1' % S_PASS)
    a('s_mov_b32 s%d, %d' % (S_XOFF, 2 * XSZ))
    a('s_mov_b32 s18, 0')
    a('s_add_u32 s%d, s%d, %d' % (S_HSRC, S_HSRC, 2 * XSZ))
    a('s_add_u32 s%d, s%d, %d' % (S_HSTS, S_HSTS, 2 * STSZ))
    a('s_branch pass_loop')
    a.label(LF)
    rowmajor_voff(a, 64, 65)
    for s in range(5):
        a('buffer_store_dwordx2 %s, v64, s[12:15], s%d offen offset:%d' % (vr(XRES + 2 * s, 2), S_RM, 32 * s))
    stamp(a, 50)
    a.label(END)
    a('s_endpgm')
    a.raw('.section .rodata,"a"')
    a.raw('.p2align 6')
    a.raw('.amdhsa_kernel %s' % name)
    a.raw('  .amdhsa_next_free_vgpr 512')
    a.raw('  .amdhsa_next_free_sgpr 102')
    a.raw('  .amdhsa_accum_offset 256')
    a.raw('  .amdhsa_group_segment_fixed_size 0')
    a.raw('  .amdhsa_kernarg_size 88')
    a.raw('  .amdhsa_user_sgpr_count 2')
    a.raw('  .amdhsa_user_sgpr_kernarg_segment_ptr 1')
    a.raw('  .amdhsa_system_sgpr_workgroup_id_x 1')
    a.raw('.end_amdhsa_kernel')
    open(out, 'w').write(a.text())
    print('instructions:', a.nins, 'ws end', WS_END)


if __name__ == '__main__':
    out = sys.argv[1] if len(sys.argv) > 1 else 'cdna_kernels/%s.s' % KNAME
    for o in sys.argv[2:]:
        if '=' in o:
            k, v = o.split('=')
            OPT[k] = int(v)
        else:
            OPT[o] = True
    main(out)
```

```python
import re

_REG_RE = re.compile(r'^(-|abs\()?([vas])(\d+|\[(\d+):(\d+)\])\)?$')

TRANS = ('v_exp_f32', 'v_log_f32', 'v_rcp_f32', 'v_rsq_f32', 'v_sqrt_f32', 'v_sin_f32', 'v_cos_f32')


def parse_reg(tok):
    tok = tok.strip()
    if tok == 'vcc':
        return [('s', 106), ('s', 107)]
    if tok == 'exec':
        return [('s', 126), ('s', 127)]
    if tok == 'm0':
        return [('s', 124)]
    m = _REG_RE.match(tok)
    if not m:
        return []
    kind = m.group(2)
    if m.group(4) is not None:
        return [(kind, i) for i in range(int(m.group(4)), int(m.group(5)) + 1)]
    return [(kind, int(m.group(3)))]


class Ins:
    __slots__ = ('text', 'op', 'dst', 'src', 'srcs', 'kind', 'mods', 'states')

    def __init__(self, text):
        self.text = text
        t = text.split(';')[0].strip()
        parts = t.split(None, 1)
        self.op = parts[0]
        rest = parts[1] if len(parts) > 1 else ''
        bmods = ' '.join(re.findall(r'\s(?:op_sel|op_sel_hi|neg_lo|neg_hi):\[[^\]]*\]', rest))
        rest = re.sub(r'\s(?:op_sel|op_sel_hi|neg_lo|neg_hi):\[[^\]]*\]', '', rest)
        ops = [o.strip() for o in rest.split(',')] if rest else []
        self.mods = bmods
        if ops:
            last = ops[-1].split(None, 1)
            ops[-1] = last[0]
            if len(last) > 1:
                self.mods += ' ' + last[1]
        clean = []
        for o in ops:
            clean.append(o)
        regs = [parse_reg(o) for o in clean]
        op = self.op
        self.dst = []
        self.srcs = []
        self.states = 1
        if op == 's_nop':
            self.kind = 'nop'
            self.states = int(ops[0], 0) + 1
        elif op.startswith('v_mfma'):
            self.kind = 'mfma'
            self.dst = regs[0]
            self.srcs = regs[1:4]
        elif op.startswith('v_permlane'):
            self.kind = 'valu'
            self.dst = regs[0] + regs[1]
            self.srcs = [regs[0], regs[1]]
        elif op.startswith('v_'):
            self.kind = 'valu'
            self.dst = regs[0]
            self.srcs = regs[1:]
            if op.startswith('v_fmac') or op.startswith('v_dot2c'):
                self.srcs = self.srcs + [regs[0]]
            if op.startswith('v_cndmask') and len(regs) == 3:
                self.srcs = self.srcs + [parse_reg('vcc')]
        elif op.startswith('buffer_load') or op.startswith('global_load'):
            self.kind = 'vmem'
            if ' lds' in (' ' + self.mods) or '_lds_' in op:
                self.srcs = regs + [parse_reg('m0')]
            else:
                self.dst = regs[0]
                self.srcs = regs[1:]
        elif op.startswith('buffer_store') or op.startswith('global_store'):
            self.kind = 'vmem'
            self.srcs = regs
        elif op.startswith('buffer_atomic') or op.startswith('global_atomic'):
            self.kind = 'vmem'
            self.srcs = regs
            if 'sc0' in self.mods:
                self.dst = regs[0]
        elif op.startswith('buffer_'):
            self.kind = 'vmem'
        elif op.startswith('ds_read') or op.startswith('ds_bpermute') or op.startswith('ds_swizzle'):
            self.kind = 'ds'
            self.dst = regs[0]
            self.srcs = regs[1:]
        elif op.startswith('ds_'):
            self.kind = 'ds'
            self.srcs = regs
        elif op.startswith('s_'):
            self.kind = 'salu'
            nodst = ('s_cmp', 's_waitcnt', 's_barrier', 's_branch', 's_cbranch', 's_bitcmp', 's_sleep', 's_setprio',
                     's_endpgm', 's_setpc')
            if any(op.startswith(p) for p in nodst):
                self.srcs = regs
            else:
                self.dst = regs[0] if regs else []
                self.srcs = regs[1:]
                if 'saveexec' in op:
                    self.dst = self.dst + parse_reg('exec')
        else:
            raise ValueError('unknown instruction ' + text)
        self.src = [r for s in self.srcs for r in s]


def need_states(p, c):
    n = 0
    pd = set(p.dst)
    cs = set(c.src)
    cd = set(c.dst)
    raw = pd & cs
    waw = pd & cd
    if p.kind == 'valu':
        vraw = {r for r in raw if r[0] in 'va'}
        sraw = {r for r in raw if r[0] == 's'}
        if vraw:
            if c.kind == 'mfma':
                n = max(n, 2)
            if c.op.startswith('v_permlane') or 'dpp' in c.op or 'row_' in c.mods or 'quad_perm' in c.mods:
                n = max(n, 2)
            if c.op.startswith('v_readlane') or c.op.startswith('v_readfirstlane'):
                n = max(n, 1)
            if p.op in TRANS and c.kind == 'valu' and c.op not in TRANS:
                n = max(n, 1)
            if p.op in TRANS:
                n = max(n, 1)
        if p.op.startswith('v_dot2'):
            if c.op == p.op:
                ab = set(c.srcs[0]) | set(c.srcs[1])
                if pd & ab:
                    n = max(n, 3)
            elif raw or waw:
                n = max(n, 3)
        if sraw:
            if c.kind == 'valu':
                n = max(n, 4 if c.op.startswith('v_readlane') or c.op.startswith('v_writelane') else 2)
            if c.kind == 'vmem':
                n = max(n, 5)
            if c.kind == 'salu':
                n = max(n, 1)
    elif p.kind == 'mfma':
        passes = 8 if '32x32' in p.op else 4
        full = {4: 8, 8: 12}[passes]
        part = {4: 6, 8: 10}[passes]
        war = {4: 3, 8: 7}[passes]
        if c.kind == 'mfma':
            if pd & (set(c.srcs[0]) | set(c.srcs[1])):
                n = max(n, full)
            sc = c.srcs[2]
            if pd & set(sc):
                if list(sc) != list(p.dst):
                    n = max(n, part)
            elif waw:
                n = max(n, full)
        else:
            if raw or waw:
                n = max(n, full)
            if c.kind == 'valu' and (set(p.srcs[2]) & cd):
                n = max(n, war)
    elif p.kind == 'salu':
        if ('s', 124) in pd and c.kind == 'vmem' and ('s', 124) in cs:
            n = max(n, 1)
    elif p.kind == 'vmem':
        if ('store' in p.op) and (p.op.endswith('x4') or p.op.endswith('x3')):
            data = set(p.srcs[0]) if p.op.startswith('buffer') else set(p.srcs[1])
            if data & cd:
                n = max(n, 2)
    return n


class Asm:
    def __init__(self):
        self.lines = []
        self.win = []
        self.vm = []
        self.lg = []
        self.nlabel = 0
        self.nins = 0
        self.vmlog = []
        self.body_start = 0

    def raw(self, text):
        self.lines.append(text)

    def comment(self, text):
        self.lines.append('    ; ' + text)

    def label(self, name):
        self.fence()
        self.lines.append(name + ':')

    def fence(self):
        need = 0
        dist = 0
        for p in reversed(self.win):
            mx = {'mfma': 12 if '32x32' in p.op else 8, 'valu': 5, 'vmem': 2, 'salu': 1}.get(p.kind, 0)
            need = max(need, mx - dist)
            dist += p.states
        if need > 0:
            self._emit(Ins('s_nop %d' % (need - 1)))
        self.win = []

    def newlabel(self, base='L'):
        self.nlabel += 1
        return '%s_%d' % (base, self.nlabel)

    def _emit(self, ins):
        self.lines.append('    ' + ins.text)
        self.win.append(ins)
        if len(self.win) > 16:
            self.win.pop(0)
        self.nins += 1

    def __call__(self, text, tag=None):
        ins = Ins(text)
        need = 0
        dist = 0
        for p in reversed(self.win):
            n = need_states(p, ins)
            need = max(need, n - dist)
            dist += p.states
            if dist > 14:
                break
        if need > 0:
            self._emit(Ins('s_nop %d' % (need - 1)))
        self._emit(ins)
        if ins.kind == 'vmem':
            self.vm.append(tag)
            self.vmlog.append(tag)
        elif ins.kind == 'ds':
            self.lg.append(tag)
        if ins.op.startswith('s_branch') or ins.op.startswith('s_cbranch') or ins.op.startswith('s_setpc'):
            pass
        return ins

    def wait_vm(self, tag):
        tags = tag if isinstance(tag, (list, tuple, set)) else [tag]
        idx = -1
        for i, t in enumerate(self.vm):
            if t in tags:
                idx = i
        if idx < 0:
            return
        n = len(self.vm) - 1 - idx
        n = min(n, 63)
        self('s_waitcnt vmcnt(%d)' % n)
        self.vm = self.vm[len(self.vm) - n:] if n > 0 else []

    def wait_lg(self, tag):
        tags = tag if isinstance(tag, (list, tuple, set)) else [tag]
        idx = -1
        for i, t in enumerate(self.lg):
            if t in tags:
                idx = i
        if idx < 0:
            return
        n = len(self.lg) - 1 - idx
        n = min(n, 15)
        self('s_waitcnt lgkmcnt(%d)' % n)
        self.lg = self.lg[len(self.lg) - n:] if n > 0 else []

    def wait_vm_all(self):
        self('s_waitcnt vmcnt(0)')
        self.vm = []

    def wait_lg_all(self):
        self('s_waitcnt lgkmcnt(0)')
        self.lg = []

    def text(self):
        return '\n'.join(self.lines) + '\n'


def vr(base, n=1, k='v'):
    if n == 1:
        return '%s%d' % (k, base)
    return '%s[%d:%d]' % (k, base, base + n - 1)


def ar(base, n=1):
    return vr(base, n, 'a')


def sr(base, n=1):
    return vr(base, n, 's')


def kind_of(text):
    op = text.split()[0]
    if op.startswith('ds_write'):
        return 'DW'
    if op.startswith('ds_'):
        return 'D'
    if op.startswith('buffer_') or op.startswith('global_'):
        return 'M'
    if op in TRANS or op.startswith('v_permlane'):
        return 'E'
    if op.startswith('v_mfma'):
        return 'X'
    if op.startswith('v_'):
        return 'V'
    return 'S'


class Rec:
    def __init__(self):
        self.items = []

    def __call__(self, text, tag=None):
        self.items.append(('i', text, tag))

    def wait_vm(self, tag):
        self.items.append(('wv', tag, None))

    def wait_lg(self, tag):
        self.items.append(('wl', tag, None))

    def delay(self, n):
        self.items.append(['dl', n, None])


class Sched(Asm):
    def __init__(self):
        super().__init__()
        self.qv = []
        self.qm = []
        self.since_m = 99
        self.pace = 4
        self.quiet = False
        self.qa = []

    def emit_item(self, it):
        if it[0] == 'i':
            self(it[1], tag=it[2])
        elif it[0] == 'wv':
            self.wait_vm(it[1])
        elif it[0] == 'wl':
            self.wait_lg(it[1])

    @staticmethod
    def item_kind(it):
        return kind_of(it[1]) if it[0] == 'i' else 'S'

    COST = {'S': 4, 'V': 4, 'E': 8, 'D': 8, 'M': 8, 'DW': 12, 'X': 16}

    def mfma(self, text, fg=(), wait=None):
        self(text)
        self.since_m += 1
        st = {'t': 4, 'vseen': False, 'end': 12 if wait else 16}
        cost = self.COST

        def fits(k):
            tt = max(st['t'], 8) if k in ('V', 'E') else st['t']
            if k in ('D', 'M', 'DW') and st['vseen']:
                return None
            if k == 'X':
                return None
            if tt + cost[k] > st['end']:
                return None
            return tt + cost[k]

        def put(it, k, nt):
            self.emit_item(it)
            st['t'] = nt
            if k in ('V', 'E'):
                st['vseen'] = True
            if k == 'M':
                self.since_m = 0

        for it in fg:
            k = self.item_kind(it)
            tt = max(st['t'], 8) if k in ('V', 'E') else st['t']
            put(it, k, tt + cost[k])
        while self.qm:
            g = self.qm[0]
            it = g[0]
            k = self.item_kind(it)
            if self.quiet and not (g[-1][2].startswith('d') or (g[-1][2][:2] == 'wq' and len(g[-1][2]) == 3)):
                break
            if k == 'M' and self.since_m < self.pace:
                break
            nt = fits(k)
            if nt is None:
                break
            put(it, k, nt)
            g.pop(0)
            if not g:
                self.qm.pop(0)
                break
        heads = [self.item_kind(q[0]) for q in (self.qv, self.qa) if q]
        if wait and st['t'] == 4 and not (heads and heads[0] in ('D', 'M')):
            self.emit_item(wait)
            st['t'] = 8
            st['end'] = 16
            wait = None
        for q in (self.qv, self.qa):
            while q:
                it = q[0]
                if it[0] == 'mark':
                    q.pop(0)
                    continue
                if it[0] == 'dl':
                    it[1] -= 1
                    if it[1] <= 0:
                        q.pop(0)
                    break
                k = self.item_kind(it)
                if k == 'X':
                    if wait:
                        self.emit_item(wait)
                    q.pop(0)
                    self.mfma(it[1])
                    return
                nt = fits(k)
                if nt is None:
                    break
                put(it, k, nt)
                q.pop(0)
        if wait:
            self.emit_item(wait)

    def flush_v(self):
        while self.qv:
            self.emit_item(self.qv.pop(0))

    def flush_a(self):
        while self.qa:
            self.emit_item(self.qa.pop(0))

    def flush_m(self, n=10 ** 9, pred=None):
        while self.qm and n > 0:
            if pred is not None and not any(pred(g) for g in self.qm):
                break
            for it in self.qm.pop(0):
                self.emit_item(it)
            n -= 1

    def run(self, rec, every=14):
        c = 0
        for it in rec.items:
            self.emit_item(it)
            c += 1
            if every and c % every == 0:
                self.flush_m(1)
```

```python
import sys, math, struct
sys.path.insert(0, 'work')
from asmlib import Sched, Rec, vr, ar, sr

KNAME = 'interleave_layers__sliding_local_dilated__dense_activation_squared_relu__prompt'

OPT = dict(stamps=False, fake_xcc=0, force_slow=False, gsleep=2, quiet1=0, quiet3=30, quiet4=20,
           burst1=8, burst2=8, pace=4, tstamp=0, attn_loop=1, ldsc1=1, wnt=0, gen_pos=0, burst4=8, g1=4, g3=1, tail1=8, tail2=4, tail4=4, aevery=20, lsu=4)

WS_SIZE = 268435456
WQKV_T = 0
WO_T = WQKV_T + 16 * 163840
W1_T = WO_T + 8 * 20 * 5 * 1024
W2_T = W1_T + 54 * 20 * 2 * 1024
XSZ = 16 * 8 * 20 * 1024
X0 = W2_T + 8 * 54 * 5 * 1024
XB = [X0 + i * XSZ for i in range(4)]
OB = [X0 + (4 + i) * XSZ for i in range(2)]
HSZ = 16 * 8 * 54 * 1024
HB = [X0 + 6 * XSZ + i * HSZ for i in range(2)]
STSZ = 16 * 8 * 1024
ST0 = HB[1] + HSZ
STB = [ST0 + i * STSZ for i in range(4)]
FL = ST0 + 4 * STSZ
HF = FL + 4096
PFQ = HF + 2048
PFX = PFQ + 16 * 256
PFG = PFX + 16 * 512
RXF = PFG + 1024 * 8
WS_END = RXF + 16 * 128
STAMP_BASE = 64 << 20
OOB = 0x40000000
ONES = 0x3F803F80

SLOT = 20480
NSLOT = 6
L_SCR = NSLOT * SLOT
TP = 16 * 272
L_STAT = L_SCR + 144 * 272
L_ROLE = L_STAT + 1536
LDS_SIZE = 163840

S_TEAM, S_J, S_W, S_FAST, S_PASS = 20, 21, 22, 23, 24
S_CG, S_MT = 25, 26
S_XT = 29
S_STT = 31
S_RM = 32
S_COL = 34
S_PF, S_DMA, S_QV, S_QA = 58, 57, 56, 55
S_KS0 = 59
S_FLAG, S_TFL = 60, 61
S_WQ, S_WO, S_W1, S_W2 = 62, 63, 88, 89
S_W2X, S_XOFF, S_BLK = 90, 91, 92
S_HSRC, S_HSTS = 93, 94
S_PH = 95
S_XCC, S_PFGA = 27, 28
S_N0, S_N1 = 100, 101

CS1, CS3, B1R, B2R, XRES = 2, 10, 18, 26, 36
BIASC, BIASP, BIASP0, MASKP, MASKC = 46, 50, 54, 58, 60
VL4 = 62
VZ = 63
VL8 = 161


def slot_reg(i):
    return ar(4 * i, 4) if i < 64 else vr(164 + 4 * (i - 64), 4)


_G = {}
_p = 0
for _n, _c in (('y', 25), ('z', 17), ('x', 1), ('u', 22), ('v', 22)):
    _G[_n] = list(range(_p, _p + _c))
    _p += _c
WQ_SL = _G['z'] + _G['x'] + _G['u']
WO_SL = _G['y']
W1_SL = _G['v'] + _G['x'] + _G['z']
W2_SL = _G['u'] + _G['y'] + _G['x'] + _G['v']


def xorder(sig):
    cg, i = divmod(sig, 10)
    if i < 8:
        f = 80 * cg + 32 * (i >> 2) + 4 * (i & 3)
        return f, f + 16
    f = 80 * cg + 8 * i
    return f, f + 4


def oorder(sig):
    j, i = divmod(sig, 5)
    f = 40 * j + 4 * i
    return f, f + 20


def horder(sig):
    f = 32 * (sig >> 2) + 4 * (sig & 3)
    return f, f + 16


def f32bits(x):
    return struct.unpack('<I', struct.pack('<f', x))[0]


def LDM():
    return ' sc1' if OPT['ldsc1'] else ''


def stamp(a, idx):
    if not OPT['stamps']:
        return
    if idx in (11, 12, 31, 32, 40, 41):
        stamp2(a, 52 + (11, 12, 31, 32, 40, 41).index(idx), 's_memtime')
    stamp2(a, idx, 's_memrealtime')


def stamp2(a, idx, ins):
    a('%s s[96:97]' % ins)
    a('s_lshl_b32 s99, s2, 2')
    a('s_add_u32 s99, s99, s%d' % S_W)
    a('s_lshl_b32 s99, s99, 9')
    a('s_lshl_b32 s98, s%d, 8' % S_PASS)
    a('s_add_u32 s99, s99, s98')
    a('s_add_u32 s99, s99, %d' % (STAMP_BASE + idx * 4))
    a('s_waitcnt lgkmcnt(0)')
    a.lg = []
    a('v_mov_b32 v163, s96')
    a('s_mov_b64 exec, 1')
    a('buffer_store_dword v163, v%d, s[4:7], s99 offen' % VZ, tag='stamp')
    a('s_mov_b64 exec, -1')


def make_srd(a, dst, src, nbytes):
    a('s_mov_b32 s%d, s%d' % (dst, src))
    a('s_and_b32 s%d, s%d, 0xffff' % (dst + 1, src + 1))
    a('s_mov_b32 s%d, %d' % (dst + 2, nbytes))
    a('s_mov_b32 s%d, 0x20000' % (dst + 3))


def tile_scalars(a):
    a('s_and_b32 s%d, s%d, 7' % (S_CG, S_J))
    a('s_lshr_b32 s%d, s%d, 3' % (S_MT, S_J))
    a('s_lshl_b32 s%d, s%d, 2' % (S_MT, S_MT))
    a('s_add_u32 s%d, s%d, s%d' % (S_MT, S_MT, S_W))
    a('s_lshl_b32 s%d, s%d, 3' % (S_STT, S_TEAM))
    a('s_add_u32 s%d, s%d, s%d' % (S_STT, S_STT, S_MT))
    a('s_mul_i32 s%d, s%d, 20480' % (S_XT, S_STT))
    a('s_mul_i32 s3, s%d, 2560' % S_CG)
    a('s_add_u32 s%d, s%d, s3' % (S_XT, S_XT))
    a('s_lshl_b32 s%d, s%d, 10' % (S_STT, S_STT))
    a('s_lshl_b32 s3, s%d, 7' % S_CG)
    a('s_add_u32 s%d, s%d, s3' % (S_STT, S_STT))
    a('s_mul_i32 s%d, s%d, 160' % (S_COL, S_CG))
    a('s_and_b32 s3, s%d, 7' % S_TEAM)
    a('s_lshl_b32 s3, s3, 7')
    a('s_lshl_b32 s%d, s%d, 4' % (S_RM, S_MT))
    a('s_add_u32 s3, s3, s%d' % S_RM)
    a('s_lshl_b32 s3, s3, 1')
    a('s_lshr_b32 s%d, s%d, 3' % (S_RM, S_TEAM))
    a('s_add_u32 s3, s3, s%d' % S_RM)
    a('s_mul_i32 s3, s3, 1280')
    a('s_add_u32 s%d, s3, s%d' % (S_RM, S_COL))


def rowmajor_voff(a, dst, tmp):
    a('v_and_b32 v%d, 15, v0' % dst)
    a('v_mul_u32_u24 v%d, 2560, v%d' % (dst, dst))
    a('v_lshrrev_b32 v%d, 4, v0' % tmp)
    a('v_lshl_add_u32 v%d, v%d, 3, v%d' % (dst, tmp, dst))


def tile5_voff(a, dst, tmp):
    a('v_and_b32 v%d, 15, v0' % dst)
    a('v_lshlrev_b32 v%d, 4, v%d' % (dst, dst))
    a('v_lshrrev_b32 v%d, 5, v0' % tmp)
    a('v_lshl_add_u32 v%d, v%d, 8, v%d' % (dst, tmp, dst))
    a('v_bfe_u32 v%d, v0, 4, 1' % tmp)
    a('v_lshl_add_u32 v%d, v%d, 3, v%d' % (dst, tmp, dst))


def stat_voff(a, dst, tmp):
    a('v_lshlrev_b32 v%d, 3, v0' % dst)
    a('v_mov_b32 v%d, 0x%x' % (tmp, OOB))
    a('v_cmp_gt_u32 vcc, 16, v0')
    a('v_cndmask_b32 v%d, v%d, v%d, vcc' % (dst, tmp, dst))


def two_ways(a, fn):
    LS = a.newlabel('slow')
    LJ = a.newlabel('join')
    a('s_cmp_eq_u32 s%d, 0' % S_FAST)
    a('s_cbranch_scc1 %s' % LS)
    vm0 = list(a.vm)
    fn('')
    a('s_branch %s' % LJ)
    a.label(LS)
    a.vm = vm0
    fn(' sc1')
    a.label(LJ)


def tile_stats(a, P, T):
    a('s_mov_b32 s39, 0x%x' % ONES)
    for i in range(10):
        a('v_dot2_f32_bf16 v%d, v%d, s39, %s' % (T, P + i, '0' if i == 0 else 'v%d' % T))
        a('v_dot2_f32_bf16 v%d, v%d, v%d, %s' % (T + 1, P + i, P + i, '0' if i == 0 else 'v%d' % (T + 1)))
    a('v_mov_b32 v%d, v%d' % (T + 2, T))
    a('v_mov_b32 v%d, v%d' % (T + 3, T + 1))
    a('v_permlane16_swap_b32 v%d, v%d' % (T, T + 2))
    a('v_permlane16_swap_b32 v%d, v%d' % (T + 1, T + 3))
    a('v_pk_add_f32 %s, %s, %s' % (vr(T, 2), vr(T, 2), vr(T + 2, 2)))
    a('v_mov_b32 v%d, v%d' % (T + 2, T))
    a('v_mov_b32 v%d, v%d' % (T + 3, T + 1))
    a('v_permlane32_swap_b32 v%d, v%d' % (T, T + 2))
    a('v_permlane32_swap_b32 v%d, v%d' % (T + 1, T + 3))
    a('v_pk_add_f32 %s, %s, %s' % (vr(T, 2), vr(T, 2), vr(T + 2, 2)))


def store_tile(a, P, sa, V5, tag='pub'):
    a('buffer_store_dwordx4 %s, v1, s[4:7], s%d offen sc1' % (vr(P, 4), sa), tag=tag)
    a('buffer_store_dwordx4 %s, v1, s[4:7], s%d offen offset:1024 sc1' % (vr(P + 4, 4), sa), tag=tag)
    a('buffer_store_dwordx2 %s, v%d, s[4:7], s%d offen offset:2048 sc1' % (vr(P + 8, 2), V5, sa), tag=tag)


def qkv_sg(ch, hf):
    Q, K, V = 0, 1, 2
    if ch < 4:
        h, lo = ch >> 1, (ch & 1) * 2
        return Q * 10 + h * 5 + lo + hf
    if ch == 4:
        return (Q * 10 + 4) if hf == 0 else 30
    if ch == 15:
        return (Q * 10 + 5 + 4) if hf == 0 else 30
    h = (ch - 5) // 5
    c = (ch - 5) % 5
    if c < 2:
        return K * 10 + h * 5 + c * 2 + hf
    if c < 4:
        return V * 10 + h * 5 + (c - 2) * 2 + hf
    return (K if hf == 0 else V) * 10 + h * 5 + 4


def poll(a, sbase, sval, lanes=None, sleep=0, off=0):
    if lanes:
        a('s_mov_b64 exec, 0x%x' % lanes)
    a('s_mov_b32 s3, 0')
    LP = a.newlabel('poll')
    LD = a.newlabel('polld')
    a.label(LP)
    if sleep:
        a('s_sleep %d' % sleep)
    a('buffer_load_dword v162, v%d, s[4:7], s%d offen offset:%d sc1' % (VL4, sbase, off))
    a('s_add_u32 s3, s3, 1')
    a('s_waitcnt vmcnt(0)')
    a('v_cmp_gt_u32 vcc, %s, v162' % sval)
    a('s_cmp_gt_u32 s3, 200000')
    a('s_cbranch_scc1 %s' % LD)
    a('s_cbranch_vccnz %s' % LP)
    a.label(LD)
    if lanes:
        a('s_mov_b64 exec, -1')
    a.vm = []


def poll64(a, items, sleep=0, rbase=64):
    a('s_mov_b32 s3, 0')
    LP = a.newlabel('poll')
    LD = a.newlabel('polld')
    a.label(LP)
    if sleep:
        a('s_sleep %d' % sleep)
    regs = []
    r = rbase
    for (sb, off, w, lanes) in items:
        a('buffer_load_dwordx%d %s, v%d, s[4:7], s%d offen offset:%d sc1' % (w, vr(r, w), 1 if w == 4 else VL8, sb, off))
        regs.append(r)
        r += w
    a('s_add_u32 s3, s3, 1')
    a('s_mov_b64 s[50:51], 0')
    a('s_waitcnt vmcnt(0)')
    for (sb, off, w, lanes), r in zip(items, regs):
        for q in range(0, w, 2):
            a('v_cmp_ne_u64 vcc, s[%d:%d], %s' % (S_N0, S_N1, vr(r + q, 2)))
            if lanes is not None:
                a('s_and_b64 vcc, vcc, %s' % lanes)
            a('s_or_b64 s[50:51], s[50:51], vcc')
    a('s_cmp_gt_u32 s3, 100000')
    a('s_cbranch_scc1 %s' % LD)
    a('s_cmp_lg_u64 s[50:51], 0')
    a('s_cbranch_scc1 %s' % LP)
    a.label(LD)
    a.vm = []


def flag64(a, saddr, lo=None, R=94):
    a('v_mov_b32 v%d, s%d' % (R, S_N0 if lo is None else lo))
    a('v_mov_b32 v%d, s%d' % (R + 1, S_N1))
    a('s_mov_b64 exec, 1')
    a('buffer_store_dwordx2 %s, v%d, s[4:7], s%d offen sc1' % (vr(R, 2), VZ, saddr))
    a('s_mov_b64 exec, -1')


def get_nonce(a):
    a('s_mov_b32 s3, 0')
    LP = a.newlabel('nonce')
    LD = a.newlabel('nonced')
    a.label(LP)
    a('buffer_load_dwordx2 v[94:95], v%d, s[84:87], 0 offen offset:128 sc1' % VZ)
    a('s_add_u32 s3, s3, 1')
    a('s_waitcnt vmcnt(0)')
    a('v_readfirstlane_b32 s%d, v94' % S_N0)
    a('v_readfirstlane_b32 s%d, v95' % S_N1)
    a('s_cmp_gt_u32 s3, 100000')
    a('s_cbranch_scc1 %s' % LD)
    a('s_cmp_eq_u32 s%d, 0' % S_N1)
    a('s_cbranch_scc1 %s' % LP)
    a.label(LD)
    a.vm = []


def publish(a):
    a('s_add_u32 s%d, s%d, 1' % (S_PH, S_PH))
    a('v_mov_b32 v162, s%d' % S_PH)
    a('s_mov_b64 exec, 1')

    def f(mod):
        a.wait_vm('pub')
        a('buffer_store_dword v162, v%d, s[4:7], s%d offen%s' % (VZ, S_FLAG, mod), tag='fl')
    two_ways(a, f)
    a('s_mov_b64 exec, -1')


def gen_prologue(a, END):
    a('s_cmp_ge_u32 s2, 256')
    a('s_cbranch_scc1 %s' % END)
    a('s_load_dwordx16 s[64:79], s[0:1], 0')
    a('s_load_dwordx4 s[80:83], s[0:1], 64')
    a('s_load_dwordx2 s[4:5], s[0:1], 80')
    a('v_lshrrev_b32 v1, 6, v0')
    a('v_and_b32 v0, 63, v0')
    a('v_readfirstlane_b32 s%d, v1' % S_W)
    a('v_lshlrev_b32 v1, 4, v0')
    a('v_lshlrev_b32 v%d, 2, v0' % VL4)
    a('v_mov_b32 v%d, 0' % VZ)
    a('s_mov_b32 s%d, 0' % S_PASS)
    a('s_and_b32 s3, s2, 7')
    a('s_lshr_b32 s%d, s2, 3' % S_J)
    a('s_lshr_b32 s%d, s%d, 4' % (S_TEAM, S_J))
    a('s_lshl_b32 s3, s3, 1')
    a('s_add_u32 s%d, s%d, s3' % (S_TEAM, S_TEAM))
    a('s_and_b32 s%d, s%d, 15' % (S_J, S_J))
    a('s_mov_b32 s%d, 0' % S_FAST)
    tile_scalars(a)
    rowmajor_voff(a, 64, 65)
    a('s_getreg_b32 s%d, hwreg(HW_REG_XCC_ID)' % S_XCC)
    a('s_and_b32 s%d, s%d, 15' % (S_XCC, S_XCC))
    a('s_waitcnt lgkmcnt(0)')
    make_srd(a, 12, 64, 2048 * 1280)
    a('s_and_b32 s5, s5, 0xffff')
    a('s_mov_b32 s6, %d' % WS_SIZE)
    a('s_mov_b32 s7, 0x20000')
    make_srd(a, 84, 82, 256)
    LN = a.newlabel('no_nonce')
    a('s_lshl_b32 s3, s2, 2')
    a('s_add_u32 s3, s3, s%d' % S_W)
    a('s_cmp_lg_u32 s3, 0')
    a('s_cbranch_scc1 %s' % LN)
    a('s_memrealtime s[40:41]')
    a('s_waitcnt lgkmcnt(0)')
    a('s_lshl_b32 s41, s41, 1')
    a('s_or_b32 s41, s41, 1')
    a('v_mov_b32 v94, s40')
    a('v_mov_b32 v95, s41')
    a('s_mov_b64 exec, 1')
    a('buffer_store_dwordx2 v[94:95], v%d, s[84:87], 0 offen offset:128 sc1' % VZ)
    a('s_mov_b64 exec, -1')
    a.label(LN)
    a.vm = []


def s_xorder(a, sig, first, d2, t):
    a('s_mul_i32 s%d, s%d, 205' % (t, sig))
    a('s_lshr_b32 s%d, s%d, 11' % (t, t))
    a('s_mul_i32 s%d, s%d, 10' % (first, t))
    a('s_sub_u32 s%d, s%d, s%d' % (d2, sig, first))
    a('s_mul_i32 s%d, s%d, 80' % (t, t))
    a('s_lshr_b32 s%d, s%d, 2' % (first, d2))
    a('s_lshl_b32 s%d, s%d, 4' % (first, first))
    a('s_lshl_b32 s3, s%d, 2' % d2)
    a('s_add_u32 s%d, s%d, s3' % (first, first))
    a('s_lshl_b32 s3, s%d, 3' % d2)
    a('s_cmp_lt_u32 s%d, 8' % d2)
    a('s_cselect_b32 s%d, s%d, s3' % (first, first))
    a('s_cselect_b32 s%d, 16, 4' % d2)
    a('s_add_u32 s%d, s%d, s%d' % (first, first, t))


def v_order(a, kind, sig, first, d2, t):
    if kind == 'x':
        a('v_mul_u32_u24 v%d, 205, v%d' % (t, sig))
        a('v_lshrrev_b32 v%d, 11, v%d' % (t, t))
        a('v_mul_u32_u24 v%d, 10, v%d' % (first, t))
        a('v_sub_u32 v%d, v%d, v%d' % (d2, sig, first))
        a('v_mul_u32_u24 v%d, 80, v%d' % (t, t))
        a('v_lshrrev_b32 v%d, 2, v%d' % (first, d2))
        a('v_lshlrev_b32 v%d, 4, v%d' % (first, first))
        a('v_lshl_add_u32 v%d, v%d, 2, v%d' % (first, d2, first))
        a('v_lshlrev_b32 v%d, 3, v%d' % (t + 1, d2))
        a('v_cmp_gt_u32 vcc, 8, v%d' % d2)
        a('v_cndmask_b32 v%d, v%d, v%d, vcc' % (first, t + 1, first))
        a('v_cndmask_b32 v%d, 4, 16, vcc' % d2)
        a('v_add_u32 v%d, v%d, v%d' % (first, first, t))
    elif kind == 'o':
        a('v_mul_u32_u24 v%d, 205, v%d' % (t, sig))
        a('v_lshrrev_b32 v%d, 10, v%d' % (t, t))
        a('v_mul_u32_u24 v%d, 20, v%d' % (t, t))
        a('v_lshl_add_u32 v%d, v%d, 2, v%d' % (first, sig, t))
        a('v_mov_b32 v%d, 20' % d2)
    else:
        a('v_lshrrev_b32 v%d, 2, v%d' % (t, sig))
        a('v_lshlrev_b32 v%d, 4, v%d' % (t, t))
        a('v_lshl_add_u32 v%d, v%d, 2, v%d' % (first, sig, t))
        a('v_mov_b32 v%d, 16' % d2)


G_STG = 0


def gen_prep(a):
    R0 = 96
    for s in range(5):
        a('buffer_load_dwordx2 %s, v64, s[12:15], s%d offen offset:%d' % (vr(XRES + 2 * s, 2), S_RM, 32 * s), tag='x')
    a('buffer_load_dwordx2 v[94:95], v%d, s[84:87], 0 offen offset:128 sc1' % VZ, tag='x')
    stamp(a, 0)
    a('s_lshl_b32 s48, s%d, 8' % S_W)
    a('s_add_u32 s48, s48, s2')
    a('s_lshl_b32 s49, s%d, 13' % S_W)
    a('v_lshrrev_b32 v88, 2, v0')
    a('v_and_b32 v89, 3, v0')
    a('s_cmp_lt_u32 s48, 320')
    a('s_cselect_b32 s55, 0, %d' % OOB)
    a('s_cselect_b32 s48, s48, 0')
    a('s_mul_i32 s50, s48, 3277')
    a('s_lshr_b32 s50, s50, 16')
    a('s_mul_i32 s51, s50, 20')
    a('s_sub_u32 s51, s48, s51')
    make_srd(a, 8, 66, 640 * 3840)
    LNQ = a.newlabel('no_wq')
    a('s_cmp_lg_u32 s55, 0')
    a('s_cbranch_scc1 %s' % LNQ)
    vm0 = list(a.vm)
    a('v_and_b32 v70, 15, v0')
    a('v_lshrrev_b32 v71, 4, v0')
    a('v_mul_u32_u24 v71, 3840, v71')
    a('v_lshl_add_u32 v71, v70, 4, v71')
    a('v_mov_b32 v72, 1200')
    a('v_cmp_le_u32 vcc, 5, v70')
    a('v_cndmask_b32 v73, 0, v72, vcc')
    a('v_add_u32 v71, v71, v73')
    a('v_cmp_le_u32 vcc, 10, v70')
    a('v_cndmask_b32 v73, 0, v72, vcc')
    a('v_add_u32 v71, v71, v73')
    a('v_mov_b32 v72, 0x%x' % OOB)
    a('v_cmp_eq_u32 vcc, 15, v70')
    a('v_cndmask_b32 v71, v71, v72, vcc')
    a('s_mul_i32 s52, s50, 80')
    for g in range(4):
        a('s_lshl_b32 s40, s51, 2')
        a('s_add_u32 s40, s40, %d' % g)
        s_xorder(a, 40, 41, 42, 43)
        for half in range(2):
            if half:
                a('s_add_u32 s41, s41, s42')
            a('s_mul_i32 s53, s41, 3840')
            a('s_add_u32 m0, s49, %d' % (1024 * (half * 4 + g)))
            a('s_add_u32 s53, s53, s52')
            a('buffer_load_dwordx4 v71, s[8:11], s53 offen lds')
    a('v_lshlrev_b32 v74, 8, v88')
    a('v_add_u32 v74, s49, v74')
    a('v_lshlrev_b32 v75, 3, v89')
    for T in range(8):
        b, hf = T >> 1, T & 1
        const = sum(qkv_sg(4 * b + c, hf) << (8 * c) for c in range(4))
        a('s_mov_b32 s3, 0x%x' % const)
        a('v_bfe_u32 v%d, s3, v75, 8' % (76 + T))
        a('v_lshl_add_u32 v%d, v%d, 3, v74' % (76 + T, 76 + T))
    a('s_waitcnt vmcnt(8)')
    LX = a.newlabel('xgo')
    a('s_branch %s' % LX)
    a.label(LNQ)
    a('s_waitcnt vmcnt(0)')
    a.label(LX)
    a.vm = []
    make_srd(a, 16, 4, WS_SIZE)
    tile5_voff(a, 68, 69)
    stat_voff(a, 69, 64)
    a('s_add_u32 s36, s%d, %d' % (S_XT, XB[0]))
    a('s_add_u32 s37, s%d, %d' % (S_STT, STB[0]))
    store_tile(a, XRES, 36, 68, tag='xs')
    tile_stats(a, XRES, 64)
    a('buffer_store_dwordx2 v[64:65], v69, s[4:7], s37 offen sc1', tag='xs')
    a('v_readfirstlane_b32 s%d, v94' % S_N0)
    a('v_readfirstlane_b32 s%d, v95' % S_N1)
    LH = a.newlabel('have_nonce')
    a('s_cmp_lg_u32 s%d, 0' % S_N1)
    a('s_cbranch_scc1 %s' % LH)
    get_nonce(a)
    a.label(LH)
    a('s_lshl_b32 s38, s%d, 4' % S_TEAM)
    a('s_add_u32 s38, s38, s%d' % S_J)
    a('s_lshl_b32 s44, s38, 3')
    a('s_add_u32 s44, s44, %d' % RXF)
    a('s_lshl_b32 s45, s38, 4')
    a('s_add_u32 s45, s45, %d' % FL)
    a('s_lshl_b32 s46, s38, 3')
    a('s_add_u32 s46, s46, %d' % HF)
    a('s_cmp_eq_u32 s%d, 2' % S_W)
    a('s_cselect_b32 s44, s44, %d' % OOB)
    a('s_cselect_b32 s45, s45, %d' % OOB)
    a('s_cselect_b32 s46, s46, %d' % OOB)
    a('s_lshl_b32 s38, s38, 2')
    a('s_add_u32 s38, s38, s%d' % S_W)
    a('s_lshl_b32 s38, s38, 3')
    a('s_add_u32 s%d, s38, %d' % (S_PFGA, PFG))
    a('s_add_u32 s38, s38, %d' % PFX)
    LNQ2 = a.newlabel('no_wq2')
    a('s_cmp_lg_u32 s55, 0')
    a('s_cbranch_scc1 %s' % LNQ2)
    a('s_mul_i32 s54, s50, 163840')
    a('s_lshl_b32 s3, s51, 11')
    a('s_add_u32 s54, s54, s3')
    a('s_add_u32 s54, s54, %d' % WQKV_T)
    a('s_waitcnt vmcnt(4)')
    stamp(a, 5)
    for T in range(8):
        a('ds_read_b64_tr_b16 %s, v%d' % (vr(R0 + 4 * T, 2), 76 + T))
        a('ds_read_b64_tr_b16 %s, v%d offset:4096' % (vr(R0 + 2 + 4 * T, 2), 76 + T))
    a('s_mul_i32 s3, s50, 12')
    a('s_add_u32 s3, s3, s48')
    a('s_lshl_b32 s3, s3, 3')
    a('s_add_u32 s39, s3, %d' % PFQ)
    a.wait_lg_all()
    for T in range(8):
        a('s_add_u32 s53, s54, %d' % ((T >> 1) * 40960 + (T & 1) * 1024))
        a('buffer_store_dwordx4 %s, v1, s[4:7], s53 offen sc1' % vr(R0 + 4 * T, 4))
    a('s_waitcnt vmcnt(0)')
    flag64(a, 39)
    a.label(LNQ2)
    a('s_waitcnt vmcnt(1)')
    a.vm = []
    LNQ3 = a.newlabel('no_wq3')
    a('s_cmp_eq_u32 s55, 0')
    a('s_cbranch_scc1 %s' % LNQ3)
    a('s_waitcnt vmcnt(0)')
    a.label(LNQ3)
    flag64(a, 38)
    stamp(a, 1)
    a('s_add_u32 s51, s%d, s%d' % (S_N0, S_XCC))
    a('s_add_u32 s51, s51, 1')
    flag64(a, 44, lo=51)
    a('s_mov_b64 exec, 0xf')
    a('buffer_store_dword v%d, v%d, s[4:7], s45 offen sc1' % (VZ, VL4))
    a('s_mov_b64 exec, 0x3')
    a('buffer_store_dword v%d, v%d, s[4:7], s46 offen sc1' % (VZ, VL4))
    a('s_mov_b64 exec, -1')


KG = ((45, 46), (47, 35))


def generic_addr(a):
    a('s_mul_i32 s48, s2, 5')
    a('v_bfe_u32 v70, v0, 3, 2')
    a('v_and_b32 v71, 7, v0')
    a('v_lshlrev_b32 v71, 4, v71')
    a('v_lshrrev_b32 v72, 5, v0')
    L1 = a.newlabel('pg_w1')
    L2 = a.newlabel('pg_w2')
    LD = a.newlabel('pg_go')
    a('s_cmp_ge_u32 s48, 740')
    a('s_cbranch_scc1 %s' % L2)
    a('s_cmp_ge_u32 s48, 200')
    a('s_cbranch_scc1 %s' % L1)
    for (lab, sub, src, nb, gpr, magic, pitch, dest, KS, kind) in (
            (None, 0, 68, 640 * 1280, 10, 6554, 1280, WO_T, 20, 'o'),
            (L1, 200, 72, 640 * 3456, 27, 2428, 3456, W1_T, 0, 'x'),
            (L2, 740, 76, 1728 * 1280, 10, 6554, 1280, W2_T, 54, 'h')):
        if lab:
            a.label(lab)
        if sub:
            a('s_sub_u32 s48, s48, %d' % sub)
        make_srd(a, 8, src, nb)
        a('s_mov_b32 s42, %d' % pitch)
        a('s_mov_b32 s43, %d' % dest)
        a('s_mov_b32 s44, %d' % KS)
        for uu in range(2):
            ks, G = KG[uu]
            a('s_add_u32 s3, s48, %s' % ('s%d' % S_W if uu == 0 else '4'))
            a('s_mul_i32 s%d, s3, %d' % (ks, magic))
            a('s_lshr_b32 s%d, s%d, 16' % (ks, ks))
            a('s_mul_i32 s50, s%d, %d' % (ks, gpr))
            a('s_sub_u32 s%d, s3, s50' % G)
            for gh in range(2):
                a('s_lshl_b32 s3, s%d, 2' % ks)
                a('s_add_u32 s3, s3, %d' % (2 * gh))
                a('v_add_u32 v73, s3, v72')
                idx = uu * 2 + gh
                v_order(a, kind, 73, 76 + 2 * idx, 77 + 2 * idx, 84)
        if lab != L2:
            a('s_branch %s' % LD)
    a.label(LD)
    a('s_cmp_eq_u32 s%d, 3' % S_W)
    a('s_cselect_b32 s55, 0, %d' % OOB)
    for uu in range(2):
        for i in range(4):
            idx = uu * 2 + (i & 1)
            d = 128 + uu * 4 + i
            a('v_add_u32 v%d, v%d, v70' % (d, 76 + 2 * idx))
            if i >> 1:
                a('v_add_u32 v%d, v%d, v%d' % (d, d, 77 + 2 * idx))
            a('v_mul_lo_u32 v%d, v%d, s42' % (d, d))
            a('v_add_u32 v%d, v%d, v71' % (d, d))
    a('s_lshl_b32 s49, s%d, 13' % S_W)
    a('s_add_u32 s49, s49, %d' % L_SCR)
    a('v_lshlrev_b32 v74, 7, v88')
    a('v_lshl_add_u32 v74, v89, 3, v74')
    a('v_add_u32 v74, s49, v74')


def generic_issue(a):
    for uu in range(2):
        ks, G = KG[uu]
        a('s_lshl_b32 s50, s%d, 7' % G)
        if uu:
            a('s_add_u32 s50, s50, s55')
        for i in range(4):
            a('s_add_u32 m0, s49, %d' % (4096 * uu + 1024 * i))
            a('buffer_load_dwordx4 v%d, s[8:11], s50 offen lds' % (128 + uu * 4 + i), tag='u')


def generic_finish(a):
    R0 = 96
    a.wait_vm('u')
    for uu in range(2):
        for q in range(4):
            r = R0 + 16 * uu + 4 * q
            a('ds_read_b64_tr_b16 %s, v74 offset:%d' % (vr(r, 2), 4096 * uu + 32 * q))
            a('ds_read_b64_tr_b16 %s, v74 offset:%d' % (vr(r + 2, 2), 4096 * uu + 32 * q + 2048))
    first = True
    for uu in range(2):
        ks, G = KG[uu]
        for q in range(4):
            r = R0 + 16 * uu + 4 * q
            a('s_lshl_b32 s50, s%d, 2' % G)
            a('s_add_u32 s50, s50, %d' % q)
            a('s_lshr_b32 s51, s50, 1')
            a('s_mul_i32 s51, s51, 20')
            a('s_add_u32 s51, s51, s%d' % ks)
            a('s_lshl_b32 s51, s51, 1')
            a('s_add_u32 s51, s51, %d' % (q & 1))
            a('s_mul_i32 s52, s50, 205')
            a('s_lshr_b32 s52, s52, 10')
            a('s_mul_i32 s53, s52, 5')
            a('s_sub_u32 s53, s50, s53')
            a('s_mul_i32 s52, s52, s44')
            a('s_add_u32 s52, s52, s%d' % ks)
            a('s_mul_i32 s52, s52, 5')
            a('s_add_u32 s52, s52, s53')
            a('s_cmp_eq_u32 s44, 0')
            a('s_cselect_b32 s51, s51, s52')
            a('s_lshl_b32 s51, s51, 10')
            a('s_add_u32 s51, s51, s43')
            if uu:
                a('s_add_u32 s51, s51, s55')
            if first:
                a.wait_lg_all()
                first = False
            a('buffer_store_dwordx4 %s, v1, s[4:7], s51 offen sc1' % vr(r, 4), tag='gs')


def gen_roles(a):
    late_consts(a)
    generic_addr(a)
    a('s_lshl_b32 s3, s%d, 2' % S_J)
    a('s_add_u32 s3, s3, s%d' % S_W)
    a('s_mul_i32 s%d, s3, 40960' % S_WQ)
    a('s_add_u32 s%d, s%d, %d' % (S_WQ, S_WQ, WQKV_T))
    stamp(a, 7)
    a('s_barrier')
    generic_issue(a)
    generic_finish(a)
    stamp(a, 2)


def first_deps(a):
    LO = a.newlabel('dep_other')
    a('s_cmp_lg_u32 s%d, 1' % S_W)
    a('s_cbranch_scc1 %s' % LO)
    a('v_lshlrev_b32 v%d, 3, v0' % VL8)
    a('s_lshl_b32 s36, s%d, 8' % S_J)
    a('s_add_u32 s36, s36, %d' % PFQ)
    a('s_lshl_b32 s37, s%d, 9' % S_TEAM)
    a('s_add_u32 s37, s37, %d' % PFX)
    a('s_and_b32 s3, s%d, 7' % S_TEAM)
    a('s_cmp_eq_u32 s3, 0')
    a('s_cselect_b32 s38, 0, 512')
    a('s_sub_u32 s38, s37, s38')
    a('s_mov_b32 s52, 0')
    a('s_mov_b32 s53, 0x88888888')
    poll64(a, [(36, 0, 2, '0xfffff'), (37, 0, 2, None), (38, 0, 2, 's[52:53]')], sleep=OPT['gsleep'])
    a.label(LO)
    a('s_barrier')
    stamp(a, 3)
    now(a, wloads(S_WQ, WQ_SL, range(10), tagp='wq'))


def first_unit1(a):
    flag64(a, S_PFGA, R=160)
    a('v_mul_u32_u24 v144, 272, v0')
    a('s_mul_i32 s3, s%d, %d' % (S_W, 32 * 272))
    a('s_add_u32 s3, s3, %d' % (L_SCR + 16 * 272 + 256))
    a('v_add_u32 v144, s3, v144')
    for q in range(4):
        a('v_mov_b32 v%d, 0' % (140 + q))
    a('s_mov_b64 exec, 0xffffffff')
    a('ds_write_b128 v144, v[140:143]')
    a('s_mov_b64 exec, -1')


def late_sync(a):
    a('s_lshl_b32 s36, s%d, 11' % S_W)
    a('s_add_u32 s36, s36, %d' % PFG)
    poll64(a, [(36, 1024 * q, 4, None) for q in range(2)], rbase=96)
    a('v_lshlrev_b32 v142, 3, v0')
    a('s_lshl_b32 s36, s%d, 7' % S_TEAM)
    a('s_add_u32 s36, s36, %d' % RXF)
    a('s_add_u32 s37, s%d, 1' % S_N0)
    a('s_mov_b64 exec, 0xffff')
    a('s_mov_b32 s3, 0')
    LP = a.newlabel('rx')
    LD = a.newlabel('rxd')
    a.label(LP)
    a('buffer_load_dwordx2 v[140:141], v142, s[4:7], s36 offen sc1')
    a('s_add_u32 s3, s3, 1')
    a('s_waitcnt vmcnt(0)')
    a('v_subrev_u32 v140, s37, v140')
    a('v_cmp_ne_u32 s[50:51], s%d, v141' % S_N1)
    a('v_cmp_lt_u32 vcc, 15, v140')
    a('s_or_b64 s[50:51], s[50:51], vcc')
    a('s_cmp_gt_u32 s3, 100000')
    a('s_cbranch_scc1 %s' % LD)
    a('s_cmp_lg_u64 s[50:51], 0')
    a('s_cbranch_scc1 %s' % LP)
    a.label(LD)
    a('v_cmp_ne_u32 vcc, s%d, v140' % S_XCC)
    a('s_mov_b64 exec, -1')
    a('s_cmp_eq_u64 vcc, 0')
    a('s_cselect_b32 s%d, %d, 0' % (S_FAST, 0 if OPT['force_slow'] else 1))
    a.vm = []


def wloads(base_sgpr, slots, frags, srd='s[4:7]', tagp='w', special=None):
    gs = wloads0(base_sgpr, slots, frags, srd, tagp, special)
    bit = {'wq': 1, 'wo': 2, 'w1': 4, 'w2': 8}[tagp]
    if OPT['wnt'] & bit:
        for g in gs:
            g[-1] = ('i', g[-1][1] + ' nt', g[-1][2])
    return gs


def wloads0(base_sgpr, slots, frags, srd='s[4:7]', tagp='w', special=None):
    groups = []
    cur = None
    for f in frags:
        g = []
        if special and f in special:
            sreg, off = special[f]
            g.append(('i', 'buffer_load_dwordx4 %s, v1, %s, s%d offen offset:%d' % (slot_reg(slots[f]), srd, sreg, off), tagp))
            groups.append(g)
            continue
        blk = f // 4
        if blk != cur:
            g.append(('i', 's_add_u32 s%d, s%d, %d' % (S_PF, base_sgpr, blk * 4096), None))
            cur = blk
        g.append(('i', 'buffer_load_dwordx4 %s, v1, %s, s%d offen offset:%d' % (slot_reg(slots[f]), srd, S_PF, (f % 4) * 1024), tagp))
        groups.append(g)
    return groups


def w2loads(frags):
    sp = {65 + q: (S_W2X, q * 1024) for q in range(4)}
    groups = wloads(S_W2, W2_SL, [f for f in frags if f != 69], tagp='w2', special=sp)
    if 69 in frags:
        groups.append([('i', 's_add_u32 s%d, s%d, 4096' % (S_PF, S_W2X), None),
                       ('i', 'buffer_load_dwordx4 %s, v1, s[4:7], s%d offen' % (slot_reg(W2_SL[69]), S_PF), 'w2')])
    return groups


def now(a, gs):
    for g in gs:
        for it in g:
            a.emit_item(it)


def gen_setup(a):
    a('s_lshl_b32 s40, s%d, 2' % S_J)
    a('s_add_u32 s40, s40, s%d' % S_W)
    make_srd(a, 12, 80, 2048 * 1280)
    a('s_min_u32 s%d, s40, 53' % S_BLK)
    a('s_mul_i32 s%d, s%d, 40960' % (S_W1, S_BLK))
    a('s_add_u32 s%d, s%d, %d' % (S_W1, S_W1, W1_T))
    a('s_mul_i32 s41, s%d, 20' % S_CG)
    a('s_mul_i32 s3, s%d, 5' % S_W)
    a('s_add_u32 s41, s41, s3')
    a('s_mul_i32 s41, s41, 5120')
    a('s_add_u32 s%d, s41, %d' % (S_WO, WO_T))
    a('s_mul_i32 s%d, s%d, 14' % (S_KS0, S_W))
    a('s_cmp_eq_u32 s%d, 3' % S_W)
    a('s_cselect_b32 s3, 1, 0')
    a('s_sub_u32 s%d, s%d, s3' % (S_KS0, S_KS0))
    a('s_mul_i32 s41, s%d, 54' % S_CG)
    a('s_add_u32 s41, s41, s%d' % S_KS0)
    a('s_mul_i32 s41, s41, 5120')
    a('s_add_u32 s%d, s41, %d' % (S_W2, W2_T))
    a('s_add_u32 s41, s%d, %d' % (S_W2, 65 * 1024))
    a('s_cmp_ge_u32 s%d, 2' % S_W)
    a('s_cselect_b32 s%d, %d, s41' % (S_W2X, OOB))
    a('s_lshl_b32 s%d, s%d, 8' % (S_TFL, S_TEAM))
    a('s_add_u32 s%d, s%d, %d' % (S_TFL, S_TFL, FL))
    a('s_lshl_b32 s3, s40, 2')
    a('s_add_u32 s%d, s%d, s3' % (S_FLAG, S_TFL))
    a('s_mov_b32 s%d, 0' % S_PH)
    a('s_mov_b32 s%d, 0' % S_XOFF)
    a('s_and_b32 s3, s%d, 7' % S_TEAM)
    a('s_cmp_eq_u32 s3, 0')
    a('s_cselect_b32 s41, 0, 1')
    a('s_sub_u32 s41, s%d, s41' % S_TEAM)
    a('s_lshl_b32 s41, s41, 3')
    a('s_add_u32 s41, s41, 7')
    a('s_mul_i32 s%d, s41, 20480' % S_HSRC)
    a('s_add_u32 s%d, s%d, %d' % (S_HSRC, S_HSRC, XB[0]))
    a('s_lshl_b32 s%d, s41, 10' % S_HSTS)
    a('s_add_u32 s%d, s%d, %d' % (S_HSTS, S_HSTS, STB[0]))
    a('v_and_b32 v70, 15, v0')
    a('v_lshrrev_b32 v71, 4, v0')
    a('v_lshlrev_b32 v71, 2, v71')
    a('v_sub_u32 v71, v71, v70')
    a('v_mov_b32 v72, 0x%x' % f32bits(-1e30))
    a('v_mov_b32 v73, 0xffff')
    a('v_mov_b32 v74, 0xffff0000')
    a('s_and_b32 s3, s%d, 7' % S_TEAM)
    a('s_or_b32 s3, s3, s%d' % S_W)
    a('s_cmp_lg_u32 s3, 0')
    a('s_cselect_b64 s[42:43], -1, 0')
    for e in range(4):
        a('v_add_u32 v75, %d, v71' % (e + 7))
        a('v_cmp_ge_u32 vcc, 7, v75')
        a('v_cndmask_b32 v%d, v72, 0, vcc' % (BIASC + e))
        a('v_cndmask_b32 v76, 0, v%d, vcc' % (73 + (e & 1)))
        if e & 1:
            a('v_or_b32 v%d, v%d, v76' % (MASKC + (e >> 1), MASKC + (e >> 1)))
        else:
            a('v_mov_b32 v%d, v76' % (MASKC + (e >> 1)))
        a('v_cmp_le_i32 vcc, 16, v75')
        a('v_cndmask_b32 v%d, v72, 0, vcc' % (BIASP + e))
        a('v_cndmask_b32 v76, 0, v%d, vcc' % (73 + (e & 1)))
        if e & 1:
            a('v_or_b32 v%d, v%d, v76' % (MASKP + (e >> 1), MASKP + (e >> 1)))
        else:
            a('v_mov_b32 v%d, v76' % (MASKP + (e >> 1)))
        a('v_cndmask_b32 v%d, v72, v%d, s[42:43]' % (BIASP0 + e, BIASP + e))


def late_consts(a):
    a('v_lshrrev_b32 v162, 4, v0')
    a('v_lshlrev_b32 v162, 3, v162')
    make_srd(a, 8, 74, 1728 * 2)
    a('s_lshl_b32 s3, s%d, 6' % S_BLK)
    a('buffer_load_dwordx2 %s, v162, s[8:11], s3 offen' % vr(B1R, 2))
    a('buffer_load_dwordx2 %s, v162, s[8:11], s3 offen offset:32' % vr(B1R + 2, 2))
    make_srd(a, 8, 78, 640 * 2)
    for s in range(5):
        a('buffer_load_dwordx2 %s, v162, s[8:11], s%d offen offset:%d' % (vr(B2R + 2 * s, 2), S_COL, 32 * s))


AQ0, AQ1, AK, AV1, AV2, AO2 = 152, 153, 154, 155, 156, 157
C_SCALE = (20 ** -0.5) * math.log2(math.e)


def attn_addr(a, T):
    a('s_mul_i32 s47, s%d, %d' % (S_W, TP))
    a('s_add_u32 s47, s47, %d' % L_SCR)
    a('v_and_b32 v%d, 15, v0' % T)
    a('v_mul_u32_u24 v%d, 272, v%d' % (T, T))
    a('v_add_u32 v%d, s47, v%d' % (T, T))
    a('v_lshrrev_b32 v%d, 4, v0' % (T + 1))
    a('v_lshlrev_b32 v%d, 3, v%d' % (T + 1, T + 1))
    for reg, tab in ((AQ0, (0, 1, 4, 16)), (AQ1, (2, 3, 15, 16)), (AK, (5, 6, 9, 9))):
        c = sum(t << (8 * i) for i, t in enumerate(tab))
        a('s_mov_b32 s3, 0x%x' % c)
        a('v_bfe_u32 v%d, s3, v%d, 8' % (reg, T + 1))
        a('v_lshl_add_u32 v%d, v%d, 4, v%d' % (reg, reg, T))
    a('v_lshrrev_b32 v%d, 2, v0' % AV2)
    a('v_mul_u32_u24 v%d, 272, v%d' % (AV2, AV2))
    a('v_add_u32 v%d, s47, v%d' % (AV2, AV2))
    a('v_and_b32 v%d, 3, v0' % T)
    a('v_lshl_add_u32 v%d, v%d, 3, v%d' % (AV1, T, AV2))
    a('v_mov_b32 v%d, 0x%x' % (T, OOB))
    a('v_cmp_gt_u32 vcc, 16, v0')
    a('v_cndmask_b32 v%d, v%d, v1, vcc' % (AO2, T))
    a('s_lshl_b32 s47, s%d, 3' % S_TEAM)
    a('s_add_u32 s47, s47, s%d' % S_W)
    a('s_mul_i32 s47, s47, 20480')
    a('s_mul_i32 s3, s%d, 1280' % S_J)
    a('s_add_u32 s47, s47, s3')
    a('s_mul_i32 s3, s%d, %d' % (S_PASS, XSZ))
    a('s_add_u32 s47, s47, s3')
    a('s_add_u32 s47, s47, %d' % OB[0])
    a('s_mov_b32 s48, 0x%x' % f32bits(C_SCALE))


def attn_units(r, units, OUTS):
    for (b, h, Q, K, S) in units:
        off = b * 4 * TP
        tg = 'q%d%d' % (b, h)
        r('ds_read_b128 %s, v%d offset:%d' % (vr(Q, 4), AQ1 if h else AQ0, off + TP), tag=tg)
        r('ds_read_b128 %s, v%d offset:%d' % (vr(K, 4), AK, off + 80 * h), tag=tg)
        r('ds_read_b128 %s, v%d offset:%d' % (vr(K + 4, 4), AK, off + 80 * h + TP), tag=tg)
    for (b, h, Q, K, S) in units:
        off = b * 4 * TP
        r.wait_lg('q%d%d' % (b, h))
        r('v_mfma_f32_16x16x32_bf16 %s, %s, %s, %s' % (vr(S, 4), vr(K, 4), vr(Q, 4), vr(BIASP0 if b == 0 else BIASP, 4)))
        r('v_mfma_f32_16x16x32_bf16 %s, %s, %s, %s' % (vr(S + 4, 4), vr(K + 4, 4), vr(Q, 4), vr(BIASC, 4)))
    for (b, h, Q, K, S) in units:
        off = b * 4 * TP
        for i in range(2):
            r('ds_read_b64_tr_b16 %s, v%d offset:%d' % (vr(K + 2 * i, 2), AV1, off + i * TP + 112 + 80 * h), tag='v%d%d' % (b, h))
            r('ds_read_b64_tr_b16 %s, v%d offset:%d' % (vr(K + 4 + 2 * i, 2), AV2, off + i * TP + 152 + 80 * h), tag='v%d%d' % (b, h))

    def each(fn):
        for (b, h, Q, K, S) in units:
            fn(Q, S)
    for e in range(4):
        each(lambda Q, S: r('v_max_f32 v%d, v%d, v%d' % (S + e, S + e, S + 4 + e)))
    each(lambda Q, S: r('v_max3_f32 v%d, v%d, v%d, v%d' % (S + 4, S, S + 1, S + 2)))
    each(lambda Q, S: r('v_max_f32 v%d, v%d, v%d' % (S + 4, S + 4, S + 3)))
    for sw in ('v_permlane16_swap_b32', 'v_permlane32_swap_b32'):
        each(lambda Q, S: r('v_mov_b32 v%d, v%d' % (S + 5, S + 4)))
        each(lambda Q, S: r('%s v%d, v%d' % (sw, S + 4, S + 5)))
        each(lambda Q, S: r('v_max_f32 v%d, v%d, v%d' % (S + 4, S + 4, S + 5)))
    each(lambda Q, S: r('v_mul_f32 v%d, s48, v%d' % (S + 4, S + 4)))
    for e in range(4):
        each(lambda Q, S: r('v_fma_f32 v%d, v%d, s48, -v%d' % (S + e, S + e, S + 4)))
    for e in range(4):
        each(lambda Q, S: r('v_exp_f32 v%d, v%d' % (S + e, S + e)))
    each(lambda Q, S: r('v_pk_add_f32 %s, %s, %s' % (vr(S + 4, 2), vr(S, 2), vr(S + 2, 2))))
    each(lambda Q, S: r('v_add_f32 v%d, v%d, v%d' % (S + 4, S + 4, S + 5)))
    for sw in ('v_permlane16_swap_b32', 'v_permlane32_swap_b32'):
        each(lambda Q, S: r('v_mov_b32 v%d, v%d' % (S + 5, S + 4)))
        each(lambda Q, S: r('%s v%d, v%d' % (sw, S + 4, S + 5)))
        each(lambda Q, S: r('v_add_f32 v%d, v%d, v%d' % (S + 4, S + 4, S + 5)))
    each(lambda Q, S: r('v_rcp_f32 v%d, v%d' % (S + 4, S + 4)))
    for q in range(2):
        each(lambda Q, S: r('v_pk_mul_f32 %s, %s, %s op_sel_hi:[1,0]' % (vr(S + 2 * q, 2), vr(S + 2 * q, 2), vr(S + 4, 2))))
    for q in range(2):
        each(lambda Q, S: r('v_cvt_pk_bf16_f32 v%d, v%d, v%d' % (S + 4 + q, S + 2 * q, S + 2 * q + 1)))
    for q, (m, x) in enumerate(((MASKP, 0), (MASKP + 1, 1), (MASKC, 0), (MASKC + 1, 1))):
        each(lambda Q, S: r('v_and_b32 v%d, v%d, v%d' % (Q + q, S + 4 + x, m)))
    for (b, h, Q, K, S) in units:
        r.wait_lg('v%d%d' % (b, h))
        r('v_mfma_f32_16x16x32_bf16 %s, %s, %s, 0' % (vr(S, 4), vr(K, 4), vr(Q, 4)))
        r('v_mfma_f32_16x16x32_bf16 %s, %s, %s, 0' % (vr(S + 4, 4), vr(K + 4, 4), vr(Q, 4)))
    for b in range(2):
        r('s_add_u32 s%d, s47, %d' % (S_QA - b, b * 4 * 20480))
    for bb in range(2):
        OUT = OUTS[bb]
        for (b, h, Q, K, S) in units:
            if b != bb:
                continue
            for t in range(2):
                for q in range(2):
                    r('v_cvt_pk_bf16_f32 v%d, v%d, v%d' % (OUT + 4 * t + 2 * h + q, S + 4 * t + 2 * q, S + 4 * t + 2 * q + 1))
        r('buffer_store_dwordx4 %s, v1, s[4:7], s%d offen sc1' % (vr(OUT, 4), S_QA - bb), tag='pub')
        r('buffer_store_dwordx4 %s, v%d, s[4:7], s%d offen offset:1024 sc1' % (vr(OUT + 4, 4), AO2, S_QA - bb), tag='pub')


P3_PENDING_W2 = []


def gen_nsplit(a, which):
    p1 = which == 1
    WSL = WQ_SL if p1 else W1_SL
    wtag = 'wq' if p1 else 'w1'
    CS = CS1 if p1 else CS3
    G = OPT['g1'] if p1 else OPT['g3']
    NSET = G + 1
    ACC0 = 64
    FR = 104
    STP = 136
    PK = 140
    VB = 148
    VSW, VSR = 150, 151
    VSTW = 158
    SRL = list(range(96, 104)) + list(range(140, 148))
    T0 = FR
    st_i = 10 if p1 else 30
    NT = 9 if p1 else 8
    xin = XB[0] if p1 else XB[1]
    stin = STB[0] if p1 else STB[1]
    LEAD = 3
    KC = 20 // G
    if p1:
        late = list(range(17 + OPT['burst4'], 40))
    else:
        late = []
        a.flush_m(pred=lambda g: g[-1][2] == wtag)

    def accset(T):
        return ACC0 + 8 * (T % NSET)

    a('s_mul_i32 s44, s%d, 5120' % S_W)
    a('s_mul_i32 s45, s%d, 163840' % S_TEAM)
    a('s_add_u32 s45, s45, s%d' % S_XOFF)
    per = 4 // G
    a('s_lshr_b32 s50, s%d, %d' % (S_W, {1: 2, 2: 1, 4: 0}[G]))
    a('s_and_b32 s51, s%d, %d' % (S_W, per - 1))
    a('s_mul_i32 s51, s51, 5120')
    a('s_mul_i32 s46, s50, 20480')
    a('s_add_u32 s46, s46, s45')
    a('s_add_u32 s46, s46, %d' % (xin - (20480 if p1 else 0)))
    if p1:
        a('s_cmp_eq_u32 s50, 0')
        a('s_cselect_b32 s46, s%d, s46' % S_HSRC)
    a('s_add_u32 s46, s46, s51')
    a('s_add_u32 s45, s45, s44')
    if p1:
        attn_addr(a, T0)
    a('v_lshrrev_b32 v%d, 4, v0' % T0)
    a('s_lshl_b32 s3, s%d, 2' % S_W)
    a('v_add_u32 v%d, s3, v%d' % (T0, T0))
    a('v_and_b32 v%d, 15, v0' % (T0 + 1))
    a('v_lshlrev_b32 v%d, 3, v%d' % (VSR, T0 + 1))
    a('v_lshl_add_u32 v%d, v%d, 10, v%d' % (T0 + 3, T0, VSR))
    a('v_add_u32 v%d, %d, v%d' % (VSR, L_STAT, VSR))
    a('v_min_u32 v%d, 11, v%d' % (VSTW, T0))
    a('v_lshl_add_u32 v%d, v%d, 7, v%d' % (VSTW, VSTW, VSR))
    a('s_lshl_b32 s40, s%d, 13' % S_TEAM)
    a('s_lshl_b32 s3, s%d, 18' % S_PASS)
    a('s_add_u32 s40, s40, s3')
    a('s_add_u32 s40, s40, %d' % (stin - (1024 if p1 else 0)))
    a('v_mov_b32 v%d, s40' % (T0 + 4))
    if p1:
        a('v_mov_b32 v%d, s%d' % (T0 + 5, S_HSTS))
        a('v_cmp_eq_u32 vcc, 0, v%d' % T0)
        a('v_cndmask_b32 v%d, v%d, v%d, vcc' % (T0 + 4, T0 + 4, T0 + 5))
    a('v_mov_b32 v%d, 0x%x' % (T0 + 5, OOB))
    a('v_cmp_gt_u32 vcc, %d, v%d' % (NT, T0))
    a('v_cndmask_b32 v%d, v%d, v%d, vcc' % (T0 + 4, T0 + 5, T0 + 4))
    a('v_add_u32 v%d, v%d, v%d' % (T0 + 3, T0 + 3, T0 + 4))
    a('v_mov_b32 v%d, v1' % VB)
    a('v_add_u32 v%d, %d, v1' % (VB + 1, 3 * SLOT))
    if p1:
        a('v_mul_u32_u24 v%d, 272, v%d' % (VSW, T0 + 1))
        a('v_lshl_add_u32 v%d, v%d, 4, v%d' % (VSW, T0, VSW))
        a('v_add_u32 v%d, %d, v%d' % (VSW, L_SCR, VSW))
    else:
        a('s_lshl_b32 s41, s%d, 3' % S_TEAM)
        a('s_mul_i32 s41, s41, 54')
        a('s_add_u32 s41, s41, s%d' % S_BLK)
        a('s_lshl_b32 s41, s41, 10')
        a('s_mul_i32 s3, s%d, %d' % (S_PASS, HSZ))
        a('s_add_u32 s41, s41, s3')
        a('s_add_u32 s41, s41, %d' % HB[0])
    a('s_mov_b32 s42, 0x%x' % f32bits(-1.0 / 640.0))
    a('s_mov_b32 s43, 0x%x' % f32bits(1e-5))

    def colsum():
        for q in range(4):
            a('v_mov_b32 v%d, 0x%x' % (STP + q, ONES))
        if not p1:
            for q in (3, 2, 1, 0):
                a('v_and_b32 v%d, 0xffff0000, v%d' % (B1R + 1 + 2 * q, B1R + q))
                a('v_lshlrev_b32 v%d, 16, v%d' % (B1R + 2 * q, B1R + q))
            a.wait_vm(wtag)
        for ks in range(20):
            for t in range(2):
                d = vr(PK + 4 * t, 4)
                a('v_mfma_f32_16x16x32_bf16 %s, %s, %s, %s' % (d, slot_reg(WSL[ks * 2 + t]), vr(STP, 4), '0' if ks == 0 else d))
        for q in range(8):
            a('v_mov_b32 v%d, v%d' % (CS + q, PK + q))

    def pass0(fn):
        L = a.newlabel('p0')
        a('s_cmp_lg_u32 s%d, 0' % S_PASS)
        a('s_cbranch_scc1 %s' % L)
        vm0 = list(a.vm)
        fn()
        a.label(L)
        a.vm = vm0

    if p1:
        LS = a.newlabel('p1_nowait')
        a('s_cmp_eq_u32 s%d, 0' % S_PASS)
        a('s_cbranch_scc1 %s' % LS)
        poll(a, S_TFL, 's%d' % S_PH)
        LH = a.newlabel('p1_nohalo')
        a('s_and_b32 s49, s%d, 7' % S_TEAM)
        a('s_cmp_eq_u32 s49, 0')
        a('s_cbranch_scc1 %s' % LH)
        a('s_lshl_b32 s49, s%d, 7' % S_TEAM)
        a('s_add_u32 s49, s49, %d' % (HF - 128))
        poll(a, 49, '1', lanes=0xff)
        a.label(LH)
        LG = a.newlabel('p1_go')
        a('s_branch %s' % LG)
        a.label(LS)
        first_deps(a)
        a.label(LG)
        a.vm = []
    else:
        pass0(colsum)
        poll(a, S_TFL, 's%d' % S_PH)
    stamp(a, st_i)
    LSKIP = None
    if not p1:
        LSKIP = a.newlabel('p3_skip')
        a('s_cmp_ge_u32 s%d, 14' % S_J)
        a('s_cbranch_scc1 %s' % LSKIP)

    def unit_dma(u):
        gs = []
        if u < G:
            sb, go = 46, u * KC * 1024
        else:
            sb, go = 45, xin + (u - 1 if p1 else u) * SLOT
        for i in range(5):
            g = []
            if i % 4 == 0:
                g.append(('i', 's_add_u32 m0, s44, %d' % ((u % NSLOT) * SLOT + i * 1024), None))
                g.append(('i', 's_add_u32 s%d, s%d, %d' % (S_DMA, sb, go + i * 1024), None))
            g.append(('i', 'buffer_load_dwordx4 v1, s[4:7], s%d offen offset:%d%s lds' % (S_DMA, (i % 4) * 1024, LDM()), 'd%d' % u))
            gs.append(g)
        return gs

    seq = []
    for u in range(NT):
        if u < G:
            for kk in range(KC):
                for tl in range(G):
                    seq.append((u, tl, u * KC + kk, tl * KC + kk))
        else:
            for ks in range(20):
                seq.append((u, u, ks, ks))

    lateg = {}
    for g, f in zip(wloads(S_WQ, WQ_SL, late, tagp='wq'), late):
        c = min((f // 2) // KC, G - 1)
        g[-1] = ('i', g[-1][1], 'wq%d' % c)
        lateg.setdefault(c, []).append(g)

    now(a, lateg.get(0, []))
    now(a, unit_dma(0))
    for q in range(8):
        a('buffer_load_dwordx2 %s, v%d, s[4:7], 0 offen offset:%d%s' % (vr(SRL[2 * q], 2), T0 + 3, 128 * q, LDM()), tag='st')
    now(a, unit_dma(1))
    if p1:
        pass0(lambda: now(a, wloads(S_WQ, WQ_SL, range(10, 17 + OPT['burst4']), tagp='wq')))
        a('s_mov_b32 s3, 0x%x' % OOB)
        a('buffer_load_dword v163, v%d, s[4:7], s3 offen' % VZ, tag='wqE')
    r = Rec()
    r.wait_vm('st')
    for lvl in (8, 4, 2):
        for q in range(lvl):
            r('v_add_f32 v%d, v%d, v%d' % (SRL[q], SRL[q], SRL[lvl + q]))
    S0, S1 = SRL[0], SRL[1]
    r('v_mul_f32 v%d, s42, v%d' % (S0, S0))
    r('v_mul_f32 v%d, s42, v%d' % (S1, S1))
    r('v_fma_f32 v%d, v%d, v%d, v%d' % (S1, S0, S0, S1))
    r('v_min_f32 v%d, 0, v%d' % (S1, S1))
    r('v_sub_f32 v%d, s43, v%d' % (S1, S1))
    r('v_rsq_f32 v%d, v%d' % (S1, S1))
    r('ds_write_b64 v%d, %s' % (VSTW, vr(S0, 2)), tag='stw')
    stats_items = r.items
    a.wait_vm('d0')
    a.wait_lg_all()
    a('s_barrier')
    stamp(a, st_i + 1)
    held = []
    if p1:
        held = wloads(S_WO, WO_SL, range(25), tagp='wo') + wloads(S_W1, W1_SL, range(22), tagp='w1')
    a.qm = lateg.get(1, []) + unit_dma(2) + lateg.get(2, []) + unit_dma(3) + lateg.get(3, []) + a.qm

    NF = NT * 20
    DEPTH = 6

    def rd(n):
        u, tl, ks, blk = seq[n]
        sl = u % NSLOT
        return ('i', 'ds_read_b128 %s, v%d offset:%d' % (vr(FR + 4 * (n % 8), 4), VB + sl // 3, (sl % 3) * SLOT + blk * 1024), 'f%d' % n)

    def epilogue(r, T, pk):
        b = accset(T)
        sp = STP + 2 * (T & 1)
        P = PK + 4 * (T & 1)
        if not p1:
            r('s_add_u32 s%d, s41, %d' % (S_QV, T * 55296))
        r.wait_lg('sp%d' % T)
        if pk:
            for q in range(4):
                r('v_pk_fma_f32 %s, %s, %s, %s op_sel_hi:[0,1,1]' % (vr(b + 2 * q, 2), vr(sp, 2), vr(CS + 2 * q, 2), vr(b + 2 * q, 2)))
            if p1:
                for q in range(4):
                    r('v_pk_mul_f32 %s, %s, %s op_sel:[1,0]' % (vr(b + 2 * q, 2), vr(sp, 2), vr(b + 2 * q, 2)))
            else:
                for q in range(4):
                    r('v_pk_fma_f32 %s, %s, %s, %s op_sel:[1,0,0]' % (vr(b + 2 * q, 2), vr(sp, 2), vr(b + 2 * q, 2), vr(B1R + 2 * q, 2)))
                for e in range(8):
                    r('v_max_f32 v%d, 0, v%d' % (b + e, b + e))
                for q in range(4):
                    r('v_pk_mul_f32 %s, %s, %s' % (vr(b + 2 * q, 2), vr(b + 2 * q, 2), vr(b + 2 * q, 2)))
        else:
            for e in range(8):
                r('v_fmac_f32 v%d, v%d, v%d' % (b + e, sp, CS + e))
            if p1:
                for e in range(8):
                    r('v_mul_f32 v%d, v%d, v%d' % (b + e, b + e, sp + 1))
            else:
                for e in range(8):
                    r('v_fma_f32 v%d, v%d, v%d, v%d' % (b + e, b + e, sp + 1, B1R + e))
                for e in range(8):
                    r('v_max_f32 v%d, 0, v%d' % (b + e, b + e))
                for e in range(8):
                    r('v_mul_f32 v%d, v%d, v%d' % (b + e, b + e, b + e))
        if T + 2 < NT:
            r.items.append(sp_read(T + 2))
        for q in range(4):
            r('v_cvt_pk_bf16_f32 v%d, v%d, v%d' % (P + q, b + 2 * q, b + 2 * q + 1))
        if p1:
            r('ds_write_b128 v%d, %s offset:%d' % (VSW, vr(P, 4), T * TP), tag='sw')
        else:
            r('buffer_store_dwordx4 %s, v1, s[4:7], s%d offen sc1' % (vr(P, 4), S_QV), tag='pub')
        r.items.append(('mark', T, None))

    def sp_read(T):
        return ('i', 'ds_read_b64 %s, v%d offset:%d' % (vr(STP + 2 * (T & 1), 2), VSR, T * 128), 'sp%d' % T)

    def flush_until(T):
        while any(it[0] == 'mark' and it[1] == T for it in a.qv):
            a.emit_item(a.qv.pop(0))

    if OPT['tstamp'] // 10 == which:
        a('s_memtime s[64:65]')
    for n in range(DEPTH):
        a.emit_item(rd(n))
    a.wait_lg('f1')
    nread = DEPTH
    quiet = OPT['quiet1'] if p1 else OPT['quiet3']
    a.pace = OPT['pace']
    edone = 0
    for n in range(NF):
        u, T, ks, blk = seq[n]
        pos = n % 20
        acc = accset(T)
        if pos == 0:
            if u >= NSET:
                flush_until(u - NSET)
            if u < G and u >= 1:
                a.flush_m(pred=lambda g: g[-1][2] == 'wq%d' % u)
                a.wait_vm('wq%d' % u)
            if p1 and u == 1:
                a.wait_vm('wqE')
                lg0 = list(a.lg)
                pass0(lambda: first_unit1(a))
                a.lg = lg0
            if p1 and u == OPT['lsu']:
                pass0(lambda: late_sync(a))
            if u == G:
                if p1:
                    pass0(colsum)
                a.emit_item(sp_read(0))
                a.emit_item(sp_read(1))
        a.quiet = (NF - n) * 2 <= quiet
        for t in range(2):
            fg = []
            wait = None
            d = vr(acc + 4 * t, 4)
            if t == 0 and nread < NF:
                if nread % 20 == 0:
                    Tn = nread // 20
                    if Tn == 1:
                        a.flush_v()
                        a.wait_lg('stw')
                    a.flush_m(pred=lambda g: g[-1][2] == 'd%d' % Tn)
                    a.wait_vm('d%d' % Tn)
                    a('s_barrier')
                    if OPT['tstamp'] == which * 10 + 3:
                        a('s_memtime s[%d:%d]' % (64 + 2 * Tn, 65 + 2 * Tn))
                    if p1 and Tn == OPT['lsu'] + 1:
                        a.qm += held
                    if Tn + LEAD < NT:
                        ps = max([i + 1 for i, g in enumerate(a.qm) if g[-1][2].startswith('d') or g[-1][2][:2] == 'wq'] + [0])
                        a.qm[ps:ps] = unit_dma(Tn + LEAD)
                fg.append(rd(nread))
                nread += 1
            if t == 1 and (n & 1) == 1 and n + 1 < NF:
                wait = ('wl', 'f%d' % min(n + 2, NF - 1), None)
            a.mfma('v_mfma_f32_16x16x32_bf16 %s, %s, %s, %s' % (d, slot_reg(WSL[ks * 2 + t]), vr(FR + 4 * (n % 8), 4), '0' if ks == 0 else d), fg, wait)
        if pos == 1 and u == 0:
            a.qv += stats_items
        if pos == 3 and u >= G:
            while edone < u:
                r = Rec()
                epilogue(r, edone, False)
                a.qv += r.items
                edone += 1
    a.quiet = False
    a.flush_v()
    if OPT['tstamp'] // 10 == which:
        a('s_memtime s[82:83]')
        a('s_waitcnt lgkmcnt(0)')
        a.lg = []
        a('s_lshl_b32 s99, s2, 2')
        a('s_add_u32 s99, s99, s%d' % S_W)
        a('s_lshl_b32 s99, s99, 9')
        a('s_lshl_b32 s98, s%d, 8' % S_PASS)
        a('s_add_u32 s99, s99, s98')
        a('s_add_u32 s99, s99, %d' % STAMP_BASE)
        a('s_mov_b64 exec, 1')
        for q in range(10):
            a('v_mov_b32 v163, s%d' % (64 + 2 * q))
            a('buffer_store_dword v163, v%d, s[4:7], s99 offen offset:%d' % (VZ, 4 * q), tag='stamp')
        a('s_mov_b64 exec, -1')
    stamp(a, st_i + 2)
    if p1:
        a.qm += wloads(S_W1, W1_SL, range(22, 40), tagp='w1') + w2loads(range(22))
    else:
        a.qm += w2loads(range(47, 70)) + wloads(S_WQ, WQ_SL, range(17), srd='s[16:19]', tagp='wq')
    if p1:
        a.flush_m(OPT['tail1'])
    r = Rec()
    epilogue(r, NT - 1, True)
    a.run(r, every=0)
    if p1:
        a.wait_lg_all()
        a('s_barrier')
        stamp(a, st_i + 3)
        r = Rec()
        attn_units(r, [(0, 0, 64, 68, 76), (0, 1, 84, 88, 96), (1, 0, 104, 108, 116), (1, 1, 124, 128, 136)], (64, 104))
        half = len(r.items) // 2
        r2 = Rec()
        r2.items = r.items[half:]
        r.items = r.items[:half]
        a.run(r, every=OPT['aevery'])
        a.run(r2, every=0)
        stamp(a, st_i + 4)
        publish(a)
        a.flush_m(OPT['burst1'])
    else:
        LJ = a.newlabel('p3_join')
        stamp(a, st_i + 4)
        publish(a)
        a.flush_m(pred=lambda g: g[-1][2] == 'w2')
        a('s_branch %s' % LJ)
        vm_main = list(a.vm)
        a.label(LSKIP)
        a.vm = []
        publish(a)
        now(a, w2loads(P3_PENDING_W2 + list(range(47, 70))))
        a.label(LJ)
        a.vm = vm_main
    stamp(a, st_i + 5)


def gen_ksplit(a, which):
    p2 = which == 2
    NK = 5 if p2 else 14
    KS = 20 if p2 else 54
    WSL = WO_SL if p2 else W2_SL
    wtag = 'wo' if p2 else 'w2'
    ACC = [64, 84]
    RING = 104
    NR = 14
    VW = 160
    VRD = 161
    st_i = 20 if p2 else 40
    a.flush_m(pred=lambda g: g[-1][2] == wtag)
    a('s_lshl_b32 s40, s%d, 3' % S_TEAM)
    a('s_lshr_b32 s3, s%d, 3' % S_J)
    a('s_lshl_b32 s3, s3, 2')
    a('s_add_u32 s40, s40, s3')
    a('s_mul_i32 s40, s40, %d' % KS)
    if p2:
        a('s_mul_i32 s3, s%d, 5' % S_W)
        a('s_add_u32 s40, s40, s3')
    else:
        a('s_add_u32 s40, s40, s%d' % S_KS0)
    a('s_lshl_b32 s40, s40, 10')
    a('s_mul_i32 s3, s%d, %d' % (S_PASS, XSZ if p2 else HSZ))
    a('s_add_u32 s40, s40, s3')
    a('s_add_u32 s40, s40, %d' % (OB[0] if p2 else HB[0]))
    for i in range(4):
        a('s_add_u32 s3, s%d, %d' % (S_W, 1 + i))
        a('s_and_b32 s3, s3, 3')
        a('s_mul_i32 s%d, s3, %d' % (41 + i, KS * 1024))
        a('s_add_u32 s%d, s%d, s40' % (41 + i, 41 + i))
        if i < 3:
            a('s_mul_i32 s%d, s3, 15360' % (52 + i))
        if not p2:
            a('s_add_u32 s%d, s%d, %d' % (48 + i, 41 + i, 13 * 1024))
            a('s_cmp_ge_u32 s%d, 2' % S_W)
            a('s_cselect_b32 s%d, %d, s%d' % (48 + i, OOB, 48 + i))
    a('s_mul_i32 s3, s%d, 15360' % S_W)
    a('v_add_u32 v%d, s3, v1' % VRD)
    xout = XB[1] if p2 else XB[2]
    stout = STB[1] if p2 else STB[2]
    a('s_add_u32 s36, s%d, s%d' % (S_XT, S_XOFF))
    a('s_add_u32 s36, s36, %d' % xout)
    a('s_lshl_b32 s3, s%d, 18' % S_PASS)
    a('s_add_u32 s37, s%d, s3' % S_STT)
    a('s_add_u32 s37, s37, %d' % stout)
    if not p2:
        a('s_lshl_b32 s38, s%d, 7' % S_TEAM)
        a('s_lshl_b32 s3, s%d, 2' % S_CG)
        a('s_add_u32 s38, s38, s3')
        a('s_add_u32 s38, s38, %d' % HF)
        a('s_cmp_eq_u32 s%d, 7' % S_MT)
        a('s_cselect_b32 s38, s38, %d' % OOB)
    poll(a, S_TFL, 's%d' % S_PH)
    stamp(a, st_i)
    seq = [(i, k) for i in range(4) for k in range(NK)]

    def ld(n):
        i, k = seq[n]
        g = []
        reg = vr(RING + 4 * (n % NR), 4)
        if (not p2) and k == 13:
            g.append(('i', 'buffer_load_dwordx4 %s, v1, s[4:7], s%d offen%s' % (reg, 48 + i, LDM()), 'a%d' % n))
            return g
        if k % 4 == 0:
            g.append(('i', 's_add_u32 s%d, s%d, %d' % (S_DMA, 41 + i, k * 1024), None))
        g.append(('i', 'buffer_load_dwordx4 %s, v1, s[4:7], s%d offen offset:%d%s' % (reg, S_DMA, (k % 4) * 1024, LDM()), 'a%d' % n))
        return g

    nld = min(NR, len(seq))
    for n in range(nld):
        for it in ld(n):
            a.emit_item(it)
    own = ACC[1]
    ini = Rec()
    for q in range(10):
        ini('v_lshlrev_b32 v%d, 16, v%d' % (own + 2 * q, XRES + q))
        ini('v_and_b32 v%d, 0xffff0000, v%d' % (own + 2 * q + 1, XRES + q))
    if not p2:
        for q in range(10):
            ini('v_lshlrev_b32 v162, 16, v%d' % (B2R + q))
            ini('v_add_f32 v%d, v%d, v162' % (own + 2 * q, own + 2 * q))
            ini('v_and_b32 v162, 0xffff0000, v%d' % (B2R + q))
            ini('v_add_f32 v%d, v%d, v162' % (own + 2 * q + 1, own + 2 * q + 1))
    n = 0
    PS = ACC[0]
    for i in range(4):
        acc = ACC[i & 1]
        cnt = 0
        a.flush_v()
        for k in range(NK):
            a.quiet = (len(seq) - n) * 5 <= OPT['quiet4']
            a.wait_vm('a%d' % n)
            for s in range(5):
                d = vr(acc + 4 * s, 4)
                fg = []
                if s == 4 and nld < len(seq):
                    fg = ld(nld)
                    nld += 1
                first = (k == 0 and i != 3)
                a.mfma('v_mfma_f32_16x16x32_bf16 %s, %s, %s, %s' % (d, slot_reg(WSL[k * 5 + s]), vr(RING + 4 * (n % NR), 4), '0' if first else d), fg)
                cnt += 1
                if cnt == 3 and i >= 1:
                    pacc = ACC[(i - 1) & 1]
                    r = Rec()
                    r('v_add_u32 v%d, s%d, v1' % (VW, 52 + i - 1))
                    for s2 in range(5):
                        r('ds_write_b128 v%d, %s offset:%d' % (VW, vr(pacc + 4 * s2, 4), ((i - 1) * 5 + s2) * 1024), tag='pw')
                    if i == 2:
                        r.delay(3)
                        r.wait_lg('pw')
                        r.items += ini.items
                    a.qv += r.items
                if i == 3 and cnt == (14 if p2 else 30):
                    a.flush_v()
                    a.wait_lg_all()
                    a('s_barrier')
                    r = Rec()
                    for s2 in range(5):
                        r('ds_read_b128 %s, v%d offset:%d' % (vr(PS + 4 * s2, 4), VRD, s2 * 1024), tag='pr0')
                    a.qv += r.items
            n += 1
    a.quiet = False
    a.flush_v()
    stamp(a, st_i + 1)
    if p2:
        a.qm += w2loads(range(22, 47))
    else:
        a.qm += wloads(S_WQ, WQ_SL, range(17, 17 + OPT['burst4']), srd='s[16:19]', tagp='wq')
    for src in (1, 2):
        for s2 in range(5):
            a('ds_read_b128 %s, v%d offset:%d' % (vr(RING + (src - 1) * 20 + 4 * s2, 4), VRD, (src * 5 + s2) * 1024), tag='pr%d' % src)
    a.flush_m(OPT['tail2'] if p2 else OPT['tail4'])
    tile5_voff(a, 144, 145)
    stat_voff(a, 145, 146)
    a.wait_lg('pr0')
    for q in range(10):
        a('v_pk_add_f32 %s, %s, %s' % (vr(own + 2 * q, 2), vr(own + 2 * q, 2), vr(PS + 2 * q, 2)))
    for src in (1, 2):
        a.wait_lg('pr%d' % src)
        for q in range(10):
            a('v_pk_add_f32 %s, %s, %s' % (vr(own + 2 * q, 2), vr(own + 2 * q, 2), vr(RING + (src - 1) * 20 + 2 * q, 2)))
    for q in range(10):
        a('v_cvt_pk_bf16_f32 v%d, v%d, v%d' % (XRES + q, own + 2 * q, own + 2 * q + 1))
    LF = None
    if not p2:
        LF = a.newlabel('final')
        a('s_cmp_eq_u32 s%d, 1' % S_PASS)
        a('s_cbranch_scc1 %s' % LF)
    store_tile(a, XRES, 36, 144)
    tile_stats(a, XRES, 64)
    a('buffer_store_dwordx2 v[64:65], v145, s[4:7], s37 offen sc1', tag='pub')
    stamp(a, st_i + 2)
    publish(a)
    if not p2:
        a('s_mov_b64 exec, 1')
        a('buffer_store_dword v162, v%d, s[4:7], s38 offen sc1' % VZ)
        a('s_mov_b64 exec, -1')
    else:
        a.flush_m(OPT['burst2'])
    stamp(a, st_i + 3)
    return LF


def main(out):
    global P3_PENDING_W2
    a = Sched()
    name = KNAME + '_kernel'
    a.raw('; @launch grid=(256,1,1) block=(256,1,1) lds=%d' % LDS_SIZE)
    a.raw('.amdgcn_target "amdgcn-amd-amdhsa--gfx950"')
    a.raw('.text')
    a.raw('.globl %s' % name)
    a.raw('.p2align 8')
    a.raw('.type %s,@function' % name)
    a.raw('%s:' % name)
    END = 'k_end'
    gen_prologue(a, END)
    gen_prep(a)
    gen_setup(a)
    gen_roles(a)
    stamp(a, 4)
    a.label('pass_loop')
    gen_nsplit(a, 1)
    gen_ksplit(a, 2)
    a.flush_m(pred=lambda g: g[-1][2] == 'w1')
    pend = []
    for g in a.qm:
        reg = g[-1][1].split()[1].rstrip(',')
        pend.append([i for i in range(70) if slot_reg(W2_SL[i]) == reg][0])
    P3_PENDING_W2 = pend
    a.qm = w2loads(pend)
    gen_nsplit(a, 3)
    LF = gen_ksplit(a, 4)
    a.flush_m()
    a('s_mov_b32 s%d, 1' % S_PASS)
    a('s_mov_b32 s%d, %d' % (S_XOFF, 2 * XSZ))
    a('s_mov_b32 s18, 0')
    a('s_add_u32 s%d, s%d, %d' % (S_HSRC, S_HSRC, 2 * XSZ))
    a('s_add_u32 s%d, s%d, %d' % (S_HSTS, S_HSTS, 2 * STSZ))
    a('s_branch pass_loop')
    a.label(LF)
    rowmajor_voff(a, 64, 65)
    for s in range(5):
        a('buffer_store_dwordx2 %s, v64, s[12:15], s%d offen offset:%d' % (vr(XRES + 2 * s, 2), S_RM, 32 * s))
    stamp(a, 50)
    a.label(END)
    a('s_endpgm')
    a.raw('.section .rodata,"a"')
    a.raw('.p2align 6')
    a.raw('.amdhsa_kernel %s' % name)
    a.raw('  .amdhsa_next_free_vgpr 512')
    a.raw('  .amdhsa_next_free_sgpr 102')
    a.raw('  .amdhsa_accum_offset 256')
    a.raw('  .amdhsa_group_segment_fixed_size 0')
    a.raw('  .amdhsa_kernarg_size 88')
    a.raw('  .amdhsa_user_sgpr_count 2')
    a.raw('  .amdhsa_user_sgpr_kernarg_segment_ptr 1')
    a.raw('  .amdhsa_system_sgpr_workgroup_id_x 1')
    a.raw('.end_amdhsa_kernel')
    open(out, 'w').write(a.text())
    print('instructions:', a.nins, 'ws end', WS_END)


if __name__ == '__main__':
    out = sys.argv[1] if len(sys.argv) > 1 else 'cdna_kernels/%s.s' % KNAME
    for o in sys.argv[2:]:
        if '=' in o:
            k, v = o.split('=')
            OPT[k] = int(v)
        else:
            OPT[o] = True
    main(out)
```

```python
import sys, math, struct
sys.path.insert(0, 'work')
from asmlib import Sched, Rec, vr, ar, sr

KNAME = 'interleave_layers__sliding_local_dilated__dense_activation_squared_relu__prompt'

OPT = dict(stamps=False, fake_xcc=0, force_slow=False, gsleep=2, quiet1=0, quiet3=30, quiet4=20,
           burst1=8, burst2=8, pace=4, tstamp=0, attn_loop=1, ldsc1=1, wnt=0, gen_pos=0, burst4=8, g1=4, g3=1, tail1=8, tail2=4, tail4=4, aevery=20, lsu=4, cpf=1)

WS_SIZE = 268435456
WQKV_T = 0
WO_T = WQKV_T + 16 * 163840
W1_T = WO_T + 8 * 20 * 5 * 1024
W2_T = W1_T + 54 * 20 * 2 * 1024
XSZ = 16 * 8 * 20 * 1024
X0 = W2_T + 8 * 54 * 5 * 1024
XB = [X0 + i * XSZ for i in range(4)]
OB = [X0 + (4 + i) * XSZ for i in range(2)]
HSZ = 16 * 8 * 54 * 1024
HB = [X0 + 6 * XSZ + i * HSZ for i in range(2)]
STSZ = 16 * 8 * 1024
ST0 = HB[1] + HSZ
STB = [ST0 + i * STSZ for i in range(4)]
FL = ST0 + 4 * STSZ
HF = FL + 4096
PFQ = HF + 2048
PFX = PFQ + 16 * 256
PFG = PFX + 16 * 512
RXF = PFG + 1024 * 8
WS_END = RXF + 16 * 128
STAMP_BASE = 64 << 20
OOB = 0x40000000
ONES = 0x3F803F80

SLOT = 20480
NSLOT = 6
L_SCR = NSLOT * SLOT
TP = 16 * 272
L_STAT = L_SCR + 144 * 272
L_ROLE = L_STAT + 1536
LDS_SIZE = 163840

S_TEAM, S_J, S_W, S_FAST, S_PASS = 20, 21, 22, 23, 24
S_CG, S_MT = 25, 26
S_XT = 29
S_STT = 31
S_RM = 32
S_COL = 34
S_PF, S_DMA, S_QV, S_QA = 58, 57, 56, 55
S_KS0 = 59
S_FLAG, S_TFL = 60, 61
S_WQ, S_WO, S_W1, S_W2 = 62, 63, 88, 89
S_W2X, S_XOFF, S_BLK = 90, 91, 92
S_HSRC, S_HSTS = 93, 94
S_PH = 95
S_XCC, S_PFGA = 27, 28
S_N0, S_N1 = 100, 101

CS1, CS3, B1R, B2R, XRES = 2, 10, 18, 26, 36
BIASC, BIASP, BIASP0, MASKP, MASKC = 46, 50, 54, 58, 60
VL4 = 62
VZ = 63
VL8 = 161


def slot_reg(i):
    return ar(4 * i, 4) if i < 64 else vr(164 + 4 * (i - 64), 4)


_G = {}
_p = 0
for _n, _c in (('y', 25), ('z', 17), ('x', 1), ('u', 22), ('v', 22)):
    _G[_n] = list(range(_p, _p + _c))
    _p += _c
WQ_SL = _G['z'] + _G['x'] + _G['u']
WO_SL = _G['y']
W1_SL = _G['v'] + _G['x'] + _G['z']
W2_SL = _G['u'] + _G['y'] + _G['x'] + _G['v']


def xorder(sig):
    cg, i = divmod(sig, 10)
    if i < 8:
        f = 80 * cg + 32 * (i >> 2) + 4 * (i & 3)
        return f, f + 16
    f = 80 * cg + 8 * i
    return f, f + 4


def oorder(sig):
    j, i = divmod(sig, 5)
    f = 40 * j + 4 * i
    return f, f + 20


def horder(sig):
    f = 32 * (sig >> 2) + 4 * (sig & 3)
    return f, f + 16


def f32bits(x):
    return struct.unpack('<I', struct.pack('<f', x))[0]


def LDM():
    return ' sc1' if OPT['ldsc1'] else ''


def stamp(a, idx):
    if not OPT['stamps']:
        return
    if idx in (11, 12, 31, 32, 40, 41):
        stamp2(a, 52 + (11, 12, 31, 32, 40, 41).index(idx), 's_memtime')
    stamp2(a, idx, 's_memrealtime')


def stamp2(a, idx, ins):
    a('%s s[96:97]' % ins)
    a('s_lshl_b32 s99, s2, 2')
    a('s_add_u32 s99, s99, s%d' % S_W)
    a('s_lshl_b32 s99, s99, 9')
    a('s_lshl_b32 s98, s%d, 8' % S_PASS)
    a('s_add_u32 s99, s99, s98')
    a('s_add_u32 s99, s99, %d' % (STAMP_BASE + idx * 4))
    a('s_waitcnt lgkmcnt(0)')
    a.lg = []
    a('v_mov_b32 v163, s96')
    a('s_mov_b64 exec, 1')
    a('buffer_store_dword v163, v%d, s[4:7], s99 offen' % VZ, tag='stamp')
    a('s_mov_b64 exec, -1')


def make_srd(a, dst, src, nbytes):
    a('s_mov_b32 s%d, s%d' % (dst, src))
    a('s_and_b32 s%d, s%d, 0xffff' % (dst + 1, src + 1))
    a('s_mov_b32 s%d, %d' % (dst + 2, nbytes))
    a('s_mov_b32 s%d, 0x20000' % (dst + 3))


def tile_scalars(a):
    a('s_and_b32 s%d, s%d, 7' % (S_CG, S_J))
    a('s_lshr_b32 s%d, s%d, 3' % (S_MT, S_J))
    a('s_lshl_b32 s%d, s%d, 2' % (S_MT, S_MT))
    a('s_add_u32 s%d, s%d, s%d' % (S_MT, S_MT, S_W))
    a('s_lshl_b32 s%d, s%d, 3' % (S_STT, S_TEAM))
    a('s_add_u32 s%d, s%d, s%d' % (S_STT, S_STT, S_MT))
    a('s_mul_i32 s%d, s%d, 20480' % (S_XT, S_STT))
    a('s_mul_i32 s3, s%d, 2560' % S_CG)
    a('s_add_u32 s%d, s%d, s3' % (S_XT, S_XT))
    a('s_lshl_b32 s%d, s%d, 10' % (S_STT, S_STT))
    a('s_lshl_b32 s3, s%d, 7' % S_CG)
    a('s_add_u32 s%d, s%d, s3' % (S_STT, S_STT))
    a('s_mul_i32 s%d, s%d, 160' % (S_COL, S_CG))
    a('s_and_b32 s3, s%d, 7' % S_TEAM)
    a('s_lshl_b32 s3, s3, 7')
    a('s_lshl_b32 s%d, s%d, 4' % (S_RM, S_MT))
    a('s_add_u32 s3, s3, s%d' % S_RM)
    a('s_lshl_b32 s3, s3, 1')
    a('s_lshr_b32 s%d, s%d, 3' % (S_RM, S_TEAM))
    a('s_add_u32 s3, s3, s%d' % S_RM)
    a('s_mul_i32 s3, s3, 1280')
    a('s_add_u32 s%d, s3, s%d' % (S_RM, S_COL))


def rowmajor_voff(a, dst, tmp):
    a('v_and_b32 v%d, 15, v0' % dst)
    a('v_mul_u32_u24 v%d, 2560, v%d' % (dst, dst))
    a('v_lshrrev_b32 v%d, 4, v0' % tmp)
    a('v_lshl_add_u32 v%d, v%d, 3, v%d' % (dst, tmp, dst))


def tile5_voff(a, dst, tmp):
    a('v_and_b32 v%d, 15, v0' % dst)
    a('v_lshlrev_b32 v%d, 4, v%d' % (dst, dst))
    a('v_lshrrev_b32 v%d, 5, v0' % tmp)
    a('v_lshl_add_u32 v%d, v%d, 8, v%d' % (dst, tmp, dst))
    a('v_bfe_u32 v%d, v0, 4, 1' % tmp)
    a('v_lshl_add_u32 v%d, v%d, 3, v%d' % (dst, tmp, dst))


def stat_voff(a, dst, tmp):
    a('v_lshlrev_b32 v%d, 3, v0' % dst)
    a('v_mov_b32 v%d, 0x%x' % (tmp, OOB))
    a('v_cmp_gt_u32 vcc, 16, v0')
    a('v_cndmask_b32 v%d, v%d, v%d, vcc' % (dst, tmp, dst))


def two_ways(a, fn):
    LS = a.newlabel('slow')
    LJ = a.newlabel('join')
    a('s_cmp_eq_u32 s%d, 0' % S_FAST)
    a('s_cbranch_scc1 %s' % LS)
    vm0 = list(a.vm)
    fn('')
    a('s_branch %s' % LJ)
    a.label(LS)
    a.vm = vm0
    fn(' sc1')
    a.label(LJ)


def tile_stats(a, P, T):
    a('s_mov_b32 s39, 0x%x' % ONES)
    for i in range(10):
        a('v_dot2_f32_bf16 v%d, v%d, s39, %s' % (T, P + i, '0' if i == 0 else 'v%d' % T))
        a('v_dot2_f32_bf16 v%d, v%d, v%d, %s' % (T + 1, P + i, P + i, '0' if i == 0 else 'v%d' % (T + 1)))
    a('v_mov_b32 v%d, v%d' % (T + 2, T))
    a('v_mov_b32 v%d, v%d' % (T + 3, T + 1))
    a('v_permlane16_swap_b32 v%d, v%d' % (T, T + 2))
    a('v_permlane16_swap_b32 v%d, v%d' % (T + 1, T + 3))
    a('v_pk_add_f32 %s, %s, %s' % (vr(T, 2), vr(T, 2), vr(T + 2, 2)))
    a('v_mov_b32 v%d, v%d' % (T + 2, T))
    a('v_mov_b32 v%d, v%d' % (T + 3, T + 1))
    a('v_permlane32_swap_b32 v%d, v%d' % (T, T + 2))
    a('v_permlane32_swap_b32 v%d, v%d' % (T + 1, T + 3))
    a('v_pk_add_f32 %s, %s, %s' % (vr(T, 2), vr(T, 2), vr(T + 2, 2)))


def store_tile(a, P, sa, V5, tag='pub'):
    a('buffer_store_dwordx4 %s, v1, s[4:7], s%d offen sc1' % (vr(P, 4), sa), tag=tag)
    a('buffer_store_dwordx4 %s, v1, s[4:7], s%d offen offset:1024 sc1' % (vr(P + 4, 4), sa), tag=tag)
    a('buffer_store_dwordx2 %s, v%d, s[4:7], s%d offen offset:2048 sc1' % (vr(P + 8, 2), V5, sa), tag=tag)


def qkv_sg(ch, hf):
    Q, K, V = 0, 1, 2
    if ch < 4:
        h, lo = ch >> 1, (ch & 1) * 2
        return Q * 10 + h * 5 + lo + hf
    if ch == 4:
        return (Q * 10 + 4) if hf == 0 else 30
    if ch == 15:
        return (Q * 10 + 5 + 4) if hf == 0 else 30
    h = (ch - 5) // 5
    c = (ch - 5) % 5
    if c < 2:
        return K * 10 + h * 5 + c * 2 + hf
    if c < 4:
        return V * 10 + h * 5 + (c - 2) * 2 + hf
    return (K if hf == 0 else V) * 10 + h * 5 + 4


def poll(a, sbase, sval, lanes=None, sleep=0, off=0):
    if lanes:
        a('s_mov_b64 exec, 0x%x' % lanes)
    a('s_mov_b32 s3, 0')
    LP = a.newlabel('poll')
    LD = a.newlabel('polld')
    a.label(LP)
    if sleep:
        a('s_sleep %d' % sleep)
    a('buffer_load_dword v162, v%d, s[4:7], s%d offen offset:%d sc1' % (VL4, sbase, off))
    a('s_add_u32 s3, s3, 1')
    a('s_waitcnt vmcnt(0)')
    a('v_cmp_gt_u32 vcc, %s, v162' % sval)
    a('s_cmp_gt_u32 s3, 200000')
    a('s_cbranch_scc1 %s' % LD)
    a('s_cbranch_vccnz %s' % LP)
    a.label(LD)
    if lanes:
        a('s_mov_b64 exec, -1')
    a.vm = []


def poll64(a, items, sleep=0, rbase=64):
    a('s_mov_b32 s3, 0')
    LP = a.newlabel('poll')
    LD = a.newlabel('polld')
    a.label(LP)
    if sleep:
        a('s_sleep %d' % sleep)
    regs = []
    r = rbase
    for (sb, off, w, lanes) in items:
        a('buffer_load_dwordx%d %s, v%d, s[4:7], s%d offen offset:%d sc1' % (w, vr(r, w), 1 if w == 4 else VL8, sb, off))
        regs.append(r)
        r += w
    a('s_add_u32 s3, s3, 1')
    a('s_mov_b64 s[50:51], 0')
    a('s_waitcnt vmcnt(0)')
    for (sb, off, w, lanes), r in zip(items, regs):
        for q in range(0, w, 2):
            a('v_cmp_ne_u64 vcc, s[%d:%d], %s' % (S_N0, S_N1, vr(r + q, 2)))
            if lanes is not None:
                a('s_and_b64 vcc, vcc, %s' % lanes)
            a('s_or_b64 s[50:51], s[50:51], vcc')
    a('s_cmp_gt_u32 s3, 100000')
    a('s_cbranch_scc1 %s' % LD)
    a('s_cmp_lg_u64 s[50:51], 0')
    a('s_cbranch_scc1 %s' % LP)
    a.label(LD)
    a.vm = []


def flag64(a, saddr, lo=None, R=94):
    a('v_mov_b32 v%d, s%d' % (R, S_N0 if lo is None else lo))
    a('v_mov_b32 v%d, s%d' % (R + 1, S_N1))
    a('s_mov_b64 exec, 1')
    a('buffer_store_dwordx2 %s, v%d, s[4:7], s%d offen sc1' % (vr(R, 2), VZ, saddr))
    a('s_mov_b64 exec, -1')


def get_nonce(a):
    a('s_mov_b32 s3, 0')
    LP = a.newlabel('nonce')
    LD = a.newlabel('nonced')
    a.label(LP)
    a('buffer_load_dwordx2 v[94:95], v%d, s[84:87], 0 offen offset:128 sc1' % VZ)
    a('s_add_u32 s3, s3, 1')
    a('s_waitcnt vmcnt(0)')
    a('v_readfirstlane_b32 s%d, v94' % S_N0)
    a('v_readfirstlane_b32 s%d, v95' % S_N1)
    a('s_cmp_gt_u32 s3, 100000')
    a('s_cbranch_scc1 %s' % LD)
    a('s_cmp_eq_u32 s%d, 0' % S_N1)
    a('s_cbranch_scc1 %s' % LP)
    a.label(LD)
    a.vm = []


def publish(a):
    a('s_add_u32 s%d, s%d, 1' % (S_PH, S_PH))
    a('v_mov_b32 v162, s%d' % S_PH)
    a('s_mov_b64 exec, 1')

    def f(mod):
        a.wait_vm('pub')
        a('buffer_store_dword v162, v%d, s[4:7], s%d offen%s' % (VZ, S_FLAG, mod), tag='fl')
    two_ways(a, f)
    a('s_mov_b64 exec, -1')


def gen_prologue(a, END):
    a('s_cmp_ge_u32 s2, 256')
    a('s_cbranch_scc1 %s' % END)
    a('s_load_dwordx16 s[64:79], s[0:1], 0')
    a('s_load_dwordx4 s[80:83], s[0:1], 64')
    a('s_load_dwordx2 s[4:5], s[0:1], 80')
    a('v_lshrrev_b32 v1, 6, v0')
    a('v_and_b32 v0, 63, v0')
    a('v_readfirstlane_b32 s%d, v1' % S_W)
    a('v_lshlrev_b32 v1, 4, v0')
    a('v_lshlrev_b32 v%d, 2, v0' % VL4)
    a('v_mov_b32 v%d, 0' % VZ)
    a('s_mov_b32 s%d, 0' % S_PASS)
    a('s_and_b32 s3, s2, 7')
    a('s_lshr_b32 s%d, s2, 3' % S_J)
    a('s_lshr_b32 s%d, s%d, 4' % (S_TEAM, S_J))
    a('s_lshl_b32 s3, s3, 1')
    a('s_add_u32 s%d, s%d, s3' % (S_TEAM, S_TEAM))
    a('s_and_b32 s%d, s%d, 15' % (S_J, S_J))
    a('s_mov_b32 s%d, 0' % S_FAST)
    tile_scalars(a)
    rowmajor_voff(a, 64, 65)
    a('s_getreg_b32 s%d, hwreg(HW_REG_XCC_ID)' % S_XCC)
    a('s_and_b32 s%d, s%d, 15' % (S_XCC, S_XCC))
    a('s_waitcnt lgkmcnt(0)')
    make_srd(a, 12, 64, 2048 * 1280)
    a('s_and_b32 s5, s5, 0xffff')
    a('s_mov_b32 s6, %d' % WS_SIZE)
    a('s_mov_b32 s7, 0x20000')
    make_srd(a, 84, 82, 256)
    LN = a.newlabel('no_nonce')
    a('s_lshl_b32 s3, s2, 2')
    a('s_add_u32 s3, s3, s%d' % S_W)
    a('s_cmp_lg_u32 s3, 0')
    a('s_cbranch_scc1 %s' % LN)
    a('s_memrealtime s[40:41]')
    a('s_waitcnt lgkmcnt(0)')
    a('s_lshl_b32 s41, s41, 1')
    a('s_or_b32 s41, s41, 1')
    a('v_mov_b32 v94, s40')
    a('v_mov_b32 v95, s41')
    a('s_mov_b64 exec, 1')
    a('buffer_store_dwordx2 v[94:95], v%d, s[84:87], 0 offen offset:128 sc1' % VZ)
    a('s_mov_b64 exec, -1')
    a.label(LN)
    a.vm = []


def s_xorder(a, sig, first, d2, t):
    a('s_mul_i32 s%d, s%d, 205' % (t, sig))
    a('s_lshr_b32 s%d, s%d, 11' % (t, t))
    a('s_mul_i32 s%d, s%d, 10' % (first, t))
    a('s_sub_u32 s%d, s%d, s%d' % (d2, sig, first))
    a('s_mul_i32 s%d, s%d, 80' % (t, t))
    a('s_lshr_b32 s%d, s%d, 2' % (first, d2))
    a('s_lshl_b32 s%d, s%d, 4' % (first, first))
    a('s_lshl_b32 s3, s%d, 2' % d2)
    a('s_add_u32 s%d, s%d, s3' % (first, first))
    a('s_lshl_b32 s3, s%d, 3' % d2)
    a('s_cmp_lt_u32 s%d, 8' % d2)
    a('s_cselect_b32 s%d, s%d, s3' % (first, first))
    a('s_cselect_b32 s%d, 16, 4' % d2)
    a('s_add_u32 s%d, s%d, s%d' % (first, first, t))


def v_order(a, kind, sig, first, d2, t):
    if kind == 'x':
        a('v_mul_u32_u24 v%d, 205, v%d' % (t, sig))
        a('v_lshrrev_b32 v%d, 11, v%d' % (t, t))
        a('v_mul_u32_u24 v%d, 10, v%d' % (first, t))
        a('v_sub_u32 v%d, v%d, v%d' % (d2, sig, first))
        a('v_mul_u32_u24 v%d, 80, v%d' % (t, t))
        a('v_lshrrev_b32 v%d, 2, v%d' % (first, d2))
        a('v_lshlrev_b32 v%d, 4, v%d' % (first, first))
        a('v_lshl_add_u32 v%d, v%d, 2, v%d' % (first, d2, first))
        a('v_lshlrev_b32 v%d, 3, v%d' % (t + 1, d2))
        a('v_cmp_gt_u32 vcc, 8, v%d' % d2)
        a('v_cndmask_b32 v%d, v%d, v%d, vcc' % (first, t + 1, first))
        a('v_cndmask_b32 v%d, 4, 16, vcc' % d2)
        a('v_add_u32 v%d, v%d, v%d' % (first, first, t))
    elif kind == 'o':
        a('v_mul_u32_u24 v%d, 205, v%d' % (t, sig))
        a('v_lshrrev_b32 v%d, 10, v%d' % (t, t))
        a('v_mul_u32_u24 v%d, 20, v%d' % (t, t))
        a('v_lshl_add_u32 v%d, v%d, 2, v%d' % (first, sig, t))
        a('v_mov_b32 v%d, 20' % d2)
    else:
        a('v_lshrrev_b32 v%d, 2, v%d' % (t, sig))
        a('v_lshlrev_b32 v%d, 4, v%d' % (t, t))
        a('v_lshl_add_u32 v%d, v%d, 2, v%d' % (first, sig, t))
        a('v_mov_b32 v%d, 16' % d2)


G_STG = 0


def gen_prep(a):
    R0 = 96
    for s in range(5):
        a('buffer_load_dwordx2 %s, v64, s[12:15], s%d offen offset:%d' % (vr(XRES + 2 * s, 2), S_RM, 32 * s), tag='x')
    a('buffer_load_dwordx2 v[94:95], v%d, s[84:87], 0 offen offset:128 sc1' % VZ, tag='x')
    if OPT['cpf']:
        a('s_getpc_b64 s[8:9]')
        a.raw('code_ref:')
        a('s_mov_b32 s10, code_end-code_ref')
        a('s_mov_b32 s11, 0x20000')
        a('s_and_b32 s9, s9, 0xffff')
        a('v_lshlrev_b32 v96, 7, v0')
        a('s_lshl_b32 s3, s%d, 13' % S_W)
        if OPT['cpf'] == 1:
            a('s_bfe_u32 s40, s2, 0x20003')
            a('v_bfe_u32 v97, v0, 4, 2')
            a('v_mov_b32 v98, 0x%x' % OOB)
            a('v_cmp_eq_u32 vcc, s40, v97')
            a('v_cndmask_b32 v96, v98, v96, vcc')
        a('buffer_load_dword v97, v96, s[8:11], s3 offen', tag='x')
    stamp(a, 0)
    a('s_lshl_b32 s48, s%d, 8' % S_W)
    a('s_add_u32 s48, s48, s2')
    a('s_lshl_b32 s49, s%d, 13' % S_W)
    a('v_lshrrev_b32 v88, 2, v0')
    a('v_and_b32 v89, 3, v0')
    a('s_cmp_lt_u32 s48, 320')
    a('s_cselect_b32 s55, 0, %d' % OOB)
    a('s_cselect_b32 s48, s48, 0')
    a('s_mul_i32 s50, s48, 3277')
    a('s_lshr_b32 s50, s50, 16')
    a('s_mul_i32 s51, s50, 20')
    a('s_sub_u32 s51, s48, s51')
    make_srd(a, 8, 66, 640 * 3840)
    LNQ = a.newlabel('no_wq')
    a('s_cmp_lg_u32 s55, 0')
    a('s_cbranch_scc1 %s' % LNQ)
    vm0 = list(a.vm)
    a('v_and_b32 v70, 15, v0')
    a('v_lshrrev_b32 v71, 4, v0')
    a('v_mul_u32_u24 v71, 3840, v71')
    a('v_lshl_add_u32 v71, v70, 4, v71')
    a('v_mov_b32 v72, 1200')
    a('v_cmp_le_u32 vcc, 5, v70')
    a('v_cndmask_b32 v73, 0, v72, vcc')
    a('v_add_u32 v71, v71, v73')
    a('v_cmp_le_u32 vcc, 10, v70')
    a('v_cndmask_b32 v73, 0, v72, vcc')
    a('v_add_u32 v71, v71, v73')
    a('v_mov_b32 v72, 0x%x' % OOB)
    a('v_cmp_eq_u32 vcc, 15, v70')
    a('v_cndmask_b32 v71, v71, v72, vcc')
    a('s_mul_i32 s52, s50, 80')
    for g in range(4):
        a('s_lshl_b32 s40, s51, 2')
        a('s_add_u32 s40, s40, %d' % g)
        s_xorder(a, 40, 41, 42, 43)
        for half in range(2):
            if half:
                a('s_add_u32 s41, s41, s42')
            a('s_mul_i32 s53, s41, 3840')
            a('s_add_u32 m0, s49, %d' % (1024 * (half * 4 + g)))
            a('s_add_u32 s53, s53, s52')
            a('buffer_load_dwordx4 v71, s[8:11], s53 offen lds')
    a('v_lshlrev_b32 v74, 8, v88')
    a('v_add_u32 v74, s49, v74')
    a('v_lshlrev_b32 v75, 3, v89')
    for T in range(8):
        b, hf = T >> 1, T & 1
        const = sum(qkv_sg(4 * b + c, hf) << (8 * c) for c in range(4))
        a('s_mov_b32 s3, 0x%x' % const)
        a('v_bfe_u32 v%d, s3, v75, 8' % (76 + T))
        a('v_lshl_add_u32 v%d, v%d, 3, v74' % (76 + T, 76 + T))
    a('s_waitcnt vmcnt(8)')
    LX = a.newlabel('xgo')
    a('s_branch %s' % LX)
    a.label(LNQ)
    a('s_waitcnt vmcnt(0)')
    a.label(LX)
    a.vm = []
    make_srd(a, 16, 4, WS_SIZE)
    tile5_voff(a, 68, 69)
    stat_voff(a, 69, 64)
    a('s_add_u32 s36, s%d, %d' % (S_XT, XB[0]))
    a('s_add_u32 s37, s%d, %d' % (S_STT, STB[0]))
    store_tile(a, XRES, 36, 68, tag='xs')
    tile_stats(a, XRES, 64)
    a('buffer_store_dwordx2 v[64:65], v69, s[4:7], s37 offen sc1', tag='xs')
    a('v_readfirstlane_b32 s%d, v94' % S_N0)
    a('v_readfirstlane_b32 s%d, v95' % S_N1)
    LH = a.newlabel('have_nonce')
    a('s_cmp_lg_u32 s%d, 0' % S_N1)
    a('s_cbranch_scc1 %s' % LH)
    get_nonce(a)
    a.label(LH)
    a('s_lshl_b32 s38, s%d, 4' % S_TEAM)
    a('s_add_u32 s38, s38, s%d' % S_J)
    a('s_lshl_b32 s44, s38, 3')
    a('s_add_u32 s44, s44, %d' % RXF)
    a('s_lshl_b32 s45, s38, 4')
    a('s_add_u32 s45, s45, %d' % FL)
    a('s_lshl_b32 s46, s38, 3')
    a('s_add_u32 s46, s46, %d' % HF)
    a('s_cmp_eq_u32 s%d, 2' % S_W)
    a('s_cselect_b32 s44, s44, %d' % OOB)
    a('s_cselect_b32 s45, s45, %d' % OOB)
    a('s_cselect_b32 s46, s46, %d' % OOB)
    a('s_lshl_b32 s38, s38, 2')
    a('s_add_u32 s38, s38, s%d' % S_W)
    a('s_lshl_b32 s38, s38, 3')
    a('s_lshl_b32 s3, s2, 2')
    a('s_add_u32 s3, s3, s%d' % S_W)
    a('s_lshl_b32 s3, s3, 3')
    a('s_add_u32 s%d, s3, %d' % (S_PFGA, PFG))
    a('s_add_u32 s38, s38, %d' % PFX)
    LNQ2 = a.newlabel('no_wq2')
    a('s_cmp_lg_u32 s55, 0')
    a('s_cbranch_scc1 %s' % LNQ2)
    a('s_mul_i32 s54, s50, 163840')
    a('s_lshl_b32 s3, s51, 11')
    a('s_add_u32 s54, s54, s3')
    a('s_add_u32 s54, s54, %d' % WQKV_T)
    a('s_waitcnt vmcnt(4)')
    stamp(a, 5)
    for T in range(8):
        a('ds_read_b64_tr_b16 %s, v%d' % (vr(R0 + 4 * T, 2), 76 + T))
        a('ds_read_b64_tr_b16 %s, v%d offset:4096' % (vr(R0 + 2 + 4 * T, 2), 76 + T))
    a('s_mul_i32 s3, s50, 12')
    a('s_add_u32 s3, s3, s48')
    a('s_lshl_b32 s3, s3, 3')
    a('s_add_u32 s39, s3, %d' % PFQ)
    a.wait_lg_all()
    for T in range(8):
        a('s_add_u32 s53, s54, %d' % ((T >> 1) * 40960 + (T & 1) * 1024))
        a('buffer_store_dwordx4 %s, v1, s[4:7], s53 offen sc1' % vr(R0 + 4 * T, 4))
    a('s_waitcnt vmcnt(0)')
    flag64(a, 39)
    a.label(LNQ2)
    a('s_waitcnt vmcnt(1)')
    a.vm = []
    LNQ3 = a.newlabel('no_wq3')
    a('s_cmp_eq_u32 s55, 0')
    a('s_cbranch_scc1 %s' % LNQ3)
    a('s_waitcnt vmcnt(0)')
    a.label(LNQ3)
    a('s_add_u32 s47, s%d, s%d' % (S_N0, S_XCC))
    a('s_add_u32 s47, s47, 1')
    flag64(a, 38, lo=47)
    stamp(a, 1)
    a('s_mov_b64 exec, 0xf')
    a('buffer_store_dword v%d, v%d, s[4:7], s45 offen sc1' % (VZ, VL4))
    a('s_mov_b64 exec, 0x3')
    a('buffer_store_dword v%d, v%d, s[4:7], s46 offen sc1' % (VZ, VL4))
    a('s_mov_b64 exec, -1')


KG = ((45, 46), (47, 35))


def generic_addr(a):
    a('s_mul_i32 s48, s2, 5')
    a('v_bfe_u32 v70, v0, 3, 2')
    a('v_and_b32 v71, 7, v0')
    a('v_lshlrev_b32 v71, 4, v71')
    a('v_lshrrev_b32 v72, 5, v0')
    L1 = a.newlabel('pg_w1')
    L2 = a.newlabel('pg_w2')
    LD = a.newlabel('pg_go')
    a('s_cmp_ge_u32 s48, 740')
    a('s_cbranch_scc1 %s' % L2)
    a('s_cmp_ge_u32 s48, 200')
    a('s_cbranch_scc1 %s' % L1)
    for (lab, sub, src, nb, gpr, magic, pitch, dest, KS, kind) in (
            (None, 0, 68, 640 * 1280, 10, 6554, 1280, WO_T, 20, 'o'),
            (L1, 200, 72, 640 * 3456, 27, 2428, 3456, W1_T, 0, 'x'),
            (L2, 740, 76, 1728 * 1280, 10, 6554, 1280, W2_T, 54, 'h')):
        if lab:
            a.label(lab)
        if sub:
            a('s_sub_u32 s48, s48, %d' % sub)
        make_srd(a, 8, src, nb)
        a('s_mov_b32 s42, %d' % pitch)
        a('s_mov_b32 s43, %d' % dest)
        a('s_mov_b32 s44, %d' % KS)
        for uu in range(2):
            ks, G = KG[uu]
            a('s_add_u32 s3, s48, %s' % ('s%d' % S_W if uu == 0 else '4'))
            a('s_mul_i32 s%d, s3, %d' % (ks, magic))
            a('s_lshr_b32 s%d, s%d, 16' % (ks, ks))
            a('s_mul_i32 s50, s%d, %d' % (ks, gpr))
            a('s_sub_u32 s%d, s3, s50' % G)
            for gh in range(2):
                a('s_lshl_b32 s3, s%d, 2' % ks)
                a('s_add_u32 s3, s3, %d' % (2 * gh))
                a('v_add_u32 v73, s3, v72')
                idx = uu * 2 + gh
                v_order(a, kind, 73, 76 + 2 * idx, 77 + 2 * idx, 84)
        if lab != L2:
            a('s_branch %s' % LD)
    a.label(LD)
    a('s_cmp_eq_u32 s%d, 3' % S_W)
    a('s_cselect_b32 s55, 0, %d' % OOB)
    for uu in range(2):
        for i in range(4):
            idx = uu * 2 + (i & 1)
            d = 128 + uu * 4 + i
            a('v_add_u32 v%d, v%d, v70' % (d, 76 + 2 * idx))
            if i >> 1:
                a('v_add_u32 v%d, v%d, v%d' % (d, d, 77 + 2 * idx))
            a('v_mul_lo_u32 v%d, v%d, s42' % (d, d))
            a('v_add_u32 v%d, v%d, v71' % (d, d))
    a('s_lshl_b32 s49, s%d, 13' % S_W)
    a('s_add_u32 s49, s49, %d' % L_SCR)
    a('v_lshlrev_b32 v74, 7, v88')
    a('v_lshl_add_u32 v74, v89, 3, v74')
    a('v_add_u32 v74, s49, v74')


def generic_issue(a):
    for uu in range(2):
        ks, G = KG[uu]
        a('s_lshl_b32 s50, s%d, 7' % G)
        if uu:
            a('s_add_u32 s50, s50, s55')
        for i in range(4):
            a('s_add_u32 m0, s49, %d' % (4096 * uu + 1024 * i))
            a('buffer_load_dwordx4 v%d, s[8:11], s50 offen lds' % (128 + uu * 4 + i), tag='u')


def generic_finish(a):
    R0 = 96
    a.wait_vm('u')
    for uu in range(2):
        for q in range(4):
            r = R0 + 16 * uu + 4 * q
            a('ds_read_b64_tr_b16 %s, v74 offset:%d' % (vr(r, 2), 4096 * uu + 32 * q))
            a('ds_read_b64_tr_b16 %s, v74 offset:%d' % (vr(r + 2, 2), 4096 * uu + 32 * q + 2048))
    first = True
    for uu in range(2):
        ks, G = KG[uu]
        for q in range(4):
            r = R0 + 16 * uu + 4 * q
            a('s_lshl_b32 s50, s%d, 2' % G)
            a('s_add_u32 s50, s50, %d' % q)
            a('s_lshr_b32 s51, s50, 1')
            a('s_mul_i32 s51, s51, 20')
            a('s_add_u32 s51, s51, s%d' % ks)
            a('s_lshl_b32 s51, s51, 1')
            a('s_add_u32 s51, s51, %d' % (q & 1))
            a('s_mul_i32 s52, s50, 205')
            a('s_lshr_b32 s52, s52, 10')
            a('s_mul_i32 s53, s52, 5')
            a('s_sub_u32 s53, s50, s53')
            a('s_mul_i32 s52, s52, s44')
            a('s_add_u32 s52, s52, s%d' % ks)
            a('s_mul_i32 s52, s52, 5')
            a('s_add_u32 s52, s52, s53')
            a('s_cmp_eq_u32 s44, 0')
            a('s_cselect_b32 s51, s51, s52')
            a('s_lshl_b32 s51, s51, 10')
            a('s_add_u32 s51, s51, s43')
            if uu:
                a('s_add_u32 s51, s51, s55')
            if first:
                a.wait_lg_all()
                first = False
            a('buffer_store_dwordx4 %s, v1, s[4:7], s51 offen sc1' % vr(r, 4), tag='gs')


def deps_loads(a):
    a('buffer_load_dwordx2 v[64:65], v%d, s[4:7], s36 offen sc1' % VL8, tag='dp')
    a('buffer_load_dwordx2 v[66:67], v%d, s[4:7], s37 offen sc1' % VL8, tag='dp')
    a('buffer_load_dwordx2 v[68:69], v%d, s[4:7], s38 offen sc1' % VL8, tag='dp')


def gen_roles(a):
    late_consts(a)
    generic_addr(a)
    a('s_lshl_b32 s3, s%d, 2' % S_J)
    a('s_add_u32 s3, s3, s%d' % S_W)
    a('s_mul_i32 s%d, s3, 40960' % S_WQ)
    a('s_add_u32 s%d, s%d, %d' % (S_WQ, S_WQ, WQKV_T))
    a('v_lshlrev_b32 v%d, 3, v0' % VL8)
    a('s_lshl_b32 s36, s%d, 8' % S_J)
    a('s_add_u32 s36, s36, %d' % PFQ)
    a('s_lshl_b32 s37, s%d, 9' % S_TEAM)
    a('s_add_u32 s37, s37, %d' % PFX)
    a('s_and_b32 s3, s%d, 7' % S_TEAM)
    a('s_cmp_eq_u32 s3, 0')
    a('s_cselect_b32 s38, 0, 512')
    a('s_sub_u32 s38, s37, s38')
    stamp(a, 7)
    a('s_barrier')
    generic_issue(a)
    a.wait_vm('u')
    deps_loads(a)
    generic_finish(a)
    stamp(a, 2)


def first_deps(a):
    a('s_waitcnt vmcnt(8)')
    a('s_mov_b32 s52, 0')
    a('s_mov_b32 s53, 0x88888888')
    a('s_add_u32 s39, s%d, 1' % S_N0)
    a('s_mov_b32 s3, 0')
    LP = a.newlabel('dp')
    LD = a.newlabel('dpd')
    a.label(LP)
    a('v_cmp_ne_u64 vcc, s[%d:%d], v[64:65]' % (S_N0, S_N1))
    a('v_subrev_u32 v66, s39, v66')
    a('v_subrev_u32 v68, s39, v68')
    a('s_and_b64 s[50:51], vcc, 0xfffff')
    a('v_cmp_ne_u32 vcc, s%d, v67' % S_N1)
    a('s_or_b64 s[50:51], s[50:51], vcc')
    a('v_cmp_lt_u32 vcc, 15, v66')
    a('s_or_b64 s[50:51], s[50:51], vcc')
    a('v_cmp_ne_u32 vcc, s%d, v69' % S_N1)
    a('s_and_b64 vcc, vcc, s[52:53]')
    a('s_or_b64 s[50:51], s[50:51], vcc')
    a('v_cmp_lt_u32 vcc, 15, v68')
    a('s_and_b64 vcc, vcc, s[52:53]')
    a('s_or_b64 s[50:51], s[50:51], vcc')
    a('s_cmp_eq_u64 s[50:51], 0')
    a('s_cbranch_scc1 %s' % LD)
    a('s_add_u32 s3, s3, 1')
    a('s_cmp_gt_u32 s3, 100000')
    a('s_cbranch_scc1 %s' % LD)
    a('s_sleep %d' % OPT['gsleep'])
    deps_loads(a)
    a('s_waitcnt vmcnt(0)')
    a('s_branch %s' % LP)
    a.label(LD)
    a('v_cmp_ne_u32 vcc, s%d, v66' % S_XCC)
    a('s_cmp_eq_u64 vcc, 0')
    a('s_cselect_b32 s%d, %d, 0' % (S_FAST, 0 if OPT['force_slow'] else 1))
    stamp(a, 3)
    now(a, wloads(S_WQ, WQ_SL, range(10), tagp='wq'))
    a('s_waitcnt vmcnt(10)')
    flag64(a, S_PFGA, R=64)


def first_unit1(a):
    a('v_mul_u32_u24 v144, 272, v0')
    a('s_mul_i32 s3, s%d, %d' % (S_W, 32 * 272))
    a('s_add_u32 s3, s3, %d' % (L_SCR + 16 * 272 + 256))
    a('v_add_u32 v144, s3, v144')
    for q in range(4):
        a('v_mov_b32 v%d, 0' % (140 + q))
    a('s_mov_b64 exec, 0xffffffff')
    a('ds_write_b128 v144, v[140:143]')
    a('s_mov_b64 exec, -1')


def late_addr(a, part):
    n = 1280 if part == 0 else 896
    a('s_mul_i32 s36, s%d, %d' % (S_W, n))
    a('s_add_u32 s36, s36, %d' % (PFG + (0 if part == 0 else 4608)))
    a('s_cmp_eq_u32 s%d, 0' % S_PASS)
    a('s_cselect_b32 s36, s36, %d' % OOB)


def late_loads(a, part, R, tag=None):
    a('buffer_load_dwordx4 %s, v1, s[4:7], s36 offen sc1' % vr(R, 4), tag=tag)
    if part == 0:
        a('buffer_load_dwordx4 %s, v1, s[4:7], s36 offen offset:256 sc1' % vr(R + 4, 4), tag=tag)


def late_issue(a, part, R):
    late_addr(a, part)
    late_loads(a, part, R, 'ls')


def late_sync(a, part, R):
    a('s_mov_b32 s3, 0')
    LP = a.newlabel('ls')
    LD = a.newlabel('lsd')
    a.label(LP)
    a('s_mov_b64 s[50:51], 0')
    for q in range(4 if part == 0 else 2):
        a('v_cmp_ne_u64 vcc, s[%d:%d], %s' % (S_N0, S_N1, vr(R + 2 * q, 2)))
        a('s_or_b64 s[50:51], s[50:51], vcc')
    if part == 1:
        a('s_and_b32 s51, s51, 0xffffff')
    a('s_cmp_eq_u64 s[50:51], 0')
    a('s_cbranch_scc1 %s' % LD)
    a('s_add_u32 s3, s3, 1')
    a('s_cmp_gt_u32 s3, 100000')
    a('s_cbranch_scc1 %s' % LD)
    a('s_sleep 4')
    late_loads(a, part, R)
    a('s_waitcnt vmcnt(0)')
    a('s_branch %s' % LP)
    a.label(LD)


def wloads(base_sgpr, slots, frags, srd='s[4:7]', tagp='w', special=None):
    gs = wloads0(base_sgpr, slots, frags, srd, tagp, special)
    bit = {'wq': 1, 'wo': 2, 'w1': 4, 'w2': 8}[tagp]
    if OPT['wnt'] & bit:
        for g in gs:
            g[-1] = ('i', g[-1][1] + ' nt', g[-1][2])
    return gs


def wloads0(base_sgpr, slots, frags, srd='s[4:7]', tagp='w', special=None):
    groups = []
    cur = None
    for f in frags:
        g = []
        if special and f in special:
            sreg, off = special[f]
            g.append(('i', 'buffer_load_dwordx4 %s, v1, %s, s%d offen offset:%d' % (slot_reg(slots[f]), srd, sreg, off), tagp))
            groups.append(g)
            continue
        blk = f // 4
        if blk != cur:
            g.append(('i', 's_add_u32 s%d, s%d, %d' % (S_PF, base_sgpr, blk * 4096), None))
            cur = blk
        g.append(('i', 'buffer_load_dwordx4 %s, v1, %s, s%d offen offset:%d' % (slot_reg(slots[f]), srd, S_PF, (f % 4) * 1024), tagp))
        groups.append(g)
    return groups


def w2loads(frags):
    sp = {65 + q: (S_W2X, q * 1024) for q in range(4)}
    groups = wloads(S_W2, W2_SL, [f for f in frags if f != 69], tagp='w2', special=sp)
    if 69 in frags:
        groups.append([('i', 's_add_u32 s%d, s%d, 4096' % (S_PF, S_W2X), None),
                       ('i', 'buffer_load_dwordx4 %s, v1, s[4:7], s%d offen' % (slot_reg(W2_SL[69]), S_PF), 'w2')])
    return groups


def now(a, gs):
    for g in gs:
        for it in g:
            a.emit_item(it)


def gen_setup(a):
    a('s_lshl_b32 s40, s%d, 2' % S_J)
    a('s_add_u32 s40, s40, s%d' % S_W)
    make_srd(a, 12, 80, 2048 * 1280)
    a('s_min_u32 s%d, s40, 53' % S_BLK)
    a('s_mul_i32 s%d, s%d, 40960' % (S_W1, S_BLK))
    a('s_add_u32 s%d, s%d, %d' % (S_W1, S_W1, W1_T))
    a('s_mul_i32 s41, s%d, 20' % S_CG)
    a('s_mul_i32 s3, s%d, 5' % S_W)
    a('s_add_u32 s41, s41, s3')
    a('s_mul_i32 s41, s41, 5120')
    a('s_add_u32 s%d, s41, %d' % (S_WO, WO_T))
    a('s_mul_i32 s%d, s%d, 14' % (S_KS0, S_W))
    a('s_cmp_eq_u32 s%d, 3' % S_W)
    a('s_cselect_b32 s3, 1, 0')
    a('s_sub_u32 s%d, s%d, s3' % (S_KS0, S_KS0))
    a('s_mul_i32 s41, s%d, 54' % S_CG)
    a('s_add_u32 s41, s41, s%d' % S_KS0)
    a('s_mul_i32 s41, s41, 5120')
    a('s_add_u32 s%d, s41, %d' % (S_W2, W2_T))
    a('s_add_u32 s41, s%d, %d' % (S_W2, 65 * 1024))
    a('s_cmp_ge_u32 s%d, 2' % S_W)
    a('s_cselect_b32 s%d, %d, s41' % (S_W2X, OOB))
    a('s_lshl_b32 s%d, s%d, 8' % (S_TFL, S_TEAM))
    a('s_add_u32 s%d, s%d, %d' % (S_TFL, S_TFL, FL))
    a('s_lshl_b32 s3, s40, 2')
    a('s_add_u32 s%d, s%d, s3' % (S_FLAG, S_TFL))
    a('s_mov_b32 s%d, 0' % S_PH)
    a('s_mov_b32 s%d, 0' % S_XOFF)
    a('s_and_b32 s3, s%d, 7' % S_TEAM)
    a('s_cmp_eq_u32 s3, 0')
    a('s_cselect_b32 s41, 0, 1')
    a('s_sub_u32 s41, s%d, s41' % S_TEAM)
    a('s_lshl_b32 s41, s41, 3')
    a('s_add_u32 s41, s41, 7')
    a('s_mul_i32 s%d, s41, 20480' % S_HSRC)
    a('s_add_u32 s%d, s%d, %d' % (S_HSRC, S_HSRC, XB[0]))
    a('s_lshl_b32 s%d, s41, 10' % S_HSTS)
    a('s_add_u32 s%d, s%d, %d' % (S_HSTS, S_HSTS, STB[0]))
    a('v_and_b32 v70, 15, v0')
    a('v_lshrrev_b32 v71, 4, v0')
    a('v_lshlrev_b32 v71, 2, v71')
    a('v_sub_u32 v71, v71, v70')
    a('v_mov_b32 v72, 0x%x' % f32bits(-1e30))
    a('v_mov_b32 v73, 0xffff')
    a('v_mov_b32 v74, 0xffff0000')
    a('s_and_b32 s3, s%d, 7' % S_TEAM)
    a('s_or_b32 s3, s3, s%d' % S_W)
    a('s_cmp_lg_u32 s3, 0')
    a('s_cselect_b64 s[42:43], -1, 0')
    for e in range(4):
        a('v_add_u32 v75, %d, v71' % (e + 7))
        a('v_cmp_ge_u32 vcc, 7, v75')
        a('v_cndmask_b32 v%d, v72, 0, vcc' % (BIASC + e))
        a('v_cndmask_b32 v76, 0, v%d, vcc' % (73 + (e & 1)))
        if e & 1:
            a('v_or_b32 v%d, v%d, v76' % (MASKC + (e >> 1), MASKC + (e >> 1)))
        else:
            a('v_mov_b32 v%d, v76' % (MASKC + (e >> 1)))
        a('v_cmp_le_i32 vcc, 16, v75')
        a('v_cndmask_b32 v%d, v72, 0, vcc' % (BIASP + e))
        a('v_cndmask_b32 v76, 0, v%d, vcc' % (73 + (e & 1)))
        if e & 1:
            a('v_or_b32 v%d, v%d, v76' % (MASKP + (e >> 1), MASKP + (e >> 1)))
        else:
            a('v_mov_b32 v%d, v76' % (MASKP + (e >> 1)))
        a('v_cndmask_b32 v%d, v72, v%d, s[42:43]' % (BIASP0 + e, BIASP + e))


def late_consts(a):
    a('v_lshrrev_b32 v162, 4, v0')
    a('v_lshlrev_b32 v162, 3, v162')
    make_srd(a, 8, 74, 1728 * 2)
    a('s_lshl_b32 s3, s%d, 6' % S_BLK)
    a('buffer_load_dwordx2 %s, v162, s[8:11], s3 offen' % vr(B1R, 2))
    a('buffer_load_dwordx2 %s, v162, s[8:11], s3 offen offset:32' % vr(B1R + 2, 2))
    make_srd(a, 8, 78, 640 * 2)
    for s in range(5):
        a('buffer_load_dwordx2 %s, v162, s[8:11], s%d offen offset:%d' % (vr(B2R + 2 * s, 2), S_COL, 32 * s))


AQ0, AQ1, AK, AV1, AV2, AO2 = 152, 153, 154, 155, 156, 157
C_SCALE = (20 ** -0.5) * math.log2(math.e)


def attn_addr(a, T):
    a('s_mul_i32 s47, s%d, %d' % (S_W, TP))
    a('s_add_u32 s47, s47, %d' % L_SCR)
    a('v_and_b32 v%d, 15, v0' % T)
    a('v_mul_u32_u24 v%d, 272, v%d' % (T, T))
    a('v_add_u32 v%d, s47, v%d' % (T, T))
    a('v_lshrrev_b32 v%d, 4, v0' % (T + 1))
    a('v_lshlrev_b32 v%d, 3, v%d' % (T + 1, T + 1))
    for reg, tab in ((AQ0, (0, 1, 4, 16)), (AQ1, (2, 3, 15, 16)), (AK, (5, 6, 9, 9))):
        c = sum(t << (8 * i) for i, t in enumerate(tab))
        a('s_mov_b32 s3, 0x%x' % c)
        a('v_bfe_u32 v%d, s3, v%d, 8' % (reg, T + 1))
        a('v_lshl_add_u32 v%d, v%d, 4, v%d' % (reg, reg, T))
    a('v_lshrrev_b32 v%d, 2, v0' % AV2)
    a('v_mul_u32_u24 v%d, 272, v%d' % (AV2, AV2))
    a('v_add_u32 v%d, s47, v%d' % (AV2, AV2))
    a('v_and_b32 v%d, 3, v0' % T)
    a('v_lshl_add_u32 v%d, v%d, 3, v%d' % (AV1, T, AV2))
    a('v_mov_b32 v%d, 0x%x' % (T, OOB))
    a('v_cmp_gt_u32 vcc, 16, v0')
    a('v_cndmask_b32 v%d, v%d, v1, vcc' % (AO2, T))
    a('s_lshl_b32 s47, s%d, 3' % S_TEAM)
    a('s_add_u32 s47, s47, s%d' % S_W)
    a('s_mul_i32 s47, s47, 20480')
    a('s_mul_i32 s3, s%d, 1280' % S_J)
    a('s_add_u32 s47, s47, s3')
    a('s_mul_i32 s3, s%d, %d' % (S_PASS, XSZ))
    a('s_add_u32 s47, s47, s3')
    a('s_add_u32 s47, s47, %d' % OB[0])
    a('s_mov_b32 s48, 0x%x' % f32bits(C_SCALE))


def attn_units(r, units, OUTS):
    for (b, h, Q, K, S) in units:
        off = b * 4 * TP
        tg = 'q%d%d' % (b, h)
        r('ds_read_b128 %s, v%d offset:%d' % (vr(Q, 4), AQ1 if h else AQ0, off + TP), tag=tg)
        r('ds_read_b128 %s, v%d offset:%d' % (vr(K, 4), AK, off + 80 * h), tag=tg)
        r('ds_read_b128 %s, v%d offset:%d' % (vr(K + 4, 4), AK, off + 80 * h + TP), tag=tg)
    for (b, h, Q, K, S) in units:
        off = b * 4 * TP
        r.wait_lg('q%d%d' % (b, h))
        r('v_mfma_f32_16x16x32_bf16 %s, %s, %s, %s' % (vr(S, 4), vr(K, 4), vr(Q, 4), vr(BIASP0 if b == 0 else BIASP, 4)))
        r('v_mfma_f32_16x16x32_bf16 %s, %s, %s, %s' % (vr(S + 4, 4), vr(K + 4, 4), vr(Q, 4), vr(BIASC, 4)))
    for (b, h, Q, K, S) in units:
        off = b * 4 * TP
        for i in range(2):
            r('ds_read_b64_tr_b16 %s, v%d offset:%d' % (vr(K + 2 * i, 2), AV1, off + i * TP + 112 + 80 * h), tag='v%d%d' % (b, h))
            r('ds_read_b64_tr_b16 %s, v%d offset:%d' % (vr(K + 4 + 2 * i, 2), AV2, off + i * TP + 152 + 80 * h), tag='v%d%d' % (b, h))

    def each(fn):
        for (b, h, Q, K, S) in units:
            fn(Q, S)
    for e in range(4):
        each(lambda Q, S: r('v_max_f32 v%d, v%d, v%d' % (S + e, S + e, S + 4 + e)))
    each(lambda Q, S: r('v_max3_f32 v%d, v%d, v%d, v%d' % (S + 4, S, S + 1, S + 2)))
    each(lambda Q, S: r('v_max_f32 v%d, v%d, v%d' % (S + 4, S + 4, S + 3)))
    for sw in ('v_permlane16_swap_b32', 'v_permlane32_swap_b32'):
        each(lambda Q, S: r('v_mov_b32 v%d, v%d' % (S + 5, S + 4)))
        each(lambda Q, S: r('%s v%d, v%d' % (sw, S + 4, S + 5)))
        each(lambda Q, S: r('v_max_f32 v%d, v%d, v%d' % (S + 4, S + 4, S + 5)))
    each(lambda Q, S: r('v_mul_f32 v%d, s48, v%d' % (S + 4, S + 4)))
    for e in range(4):
        each(lambda Q, S: r('v_fma_f32 v%d, v%d, s48, -v%d' % (S + e, S + e, S + 4)))
    for e in range(4):
        each(lambda Q, S: r('v_exp_f32 v%d, v%d' % (S + e, S + e)))
    each(lambda Q, S: r('v_pk_add_f32 %s, %s, %s' % (vr(S + 4, 2), vr(S, 2), vr(S + 2, 2))))
    each(lambda Q, S: r('v_add_f32 v%d, v%d, v%d' % (S + 4, S + 4, S + 5)))
    for sw in ('v_permlane16_swap_b32', 'v_permlane32_swap_b32'):
        each(lambda Q, S: r('v_mov_b32 v%d, v%d' % (S + 5, S + 4)))
        each(lambda Q, S: r('%s v%d, v%d' % (sw, S + 4, S + 5)))
        each(lambda Q, S: r('v_add_f32 v%d, v%d, v%d' % (S + 4, S + 4, S + 5)))
    each(lambda Q, S: r('v_rcp_f32 v%d, v%d' % (S + 4, S + 4)))
    for q in range(2):
        each(lambda Q, S: r('v_pk_mul_f32 %s, %s, %s op_sel_hi:[1,0]' % (vr(S + 2 * q, 2), vr(S + 2 * q, 2), vr(S + 4, 2))))
    for q in range(2):
        each(lambda Q, S: r('v_cvt_pk_bf16_f32 v%d, v%d, v%d' % (S + 4 + q, S + 2 * q, S + 2 * q + 1)))
    for q, (m, x) in enumerate(((MASKP, 0), (MASKP + 1, 1), (MASKC, 0), (MASKC + 1, 1))):
        each(lambda Q, S: r('v_and_b32 v%d, v%d, v%d' % (Q + q, S + 4 + x, m)))
    for (b, h, Q, K, S) in units:
        r.wait_lg('v%d%d' % (b, h))
        r('v_mfma_f32_16x16x32_bf16 %s, %s, %s, 0' % (vr(S, 4), vr(K, 4), vr(Q, 4)))
        r('v_mfma_f32_16x16x32_bf16 %s, %s, %s, 0' % (vr(S + 4, 4), vr(K + 4, 4), vr(Q, 4)))
    for b in range(2):
        r('s_add_u32 s%d, s47, %d' % (S_QA - b, b * 4 * 20480))
    for bb in range(2):
        OUT = OUTS[bb]
        for (b, h, Q, K, S) in units:
            if b != bb:
                continue
            for t in range(2):
                for q in range(2):
                    r('v_cvt_pk_bf16_f32 v%d, v%d, v%d' % (OUT + 4 * t + 2 * h + q, S + 4 * t + 2 * q, S + 4 * t + 2 * q + 1))
        r('buffer_store_dwordx4 %s, v1, s[4:7], s%d offen sc1' % (vr(OUT, 4), S_QA - bb), tag='pub')
        r('buffer_store_dwordx4 %s, v%d, s[4:7], s%d offen offset:1024 sc1' % (vr(OUT + 4, 4), AO2, S_QA - bb), tag='pub')


P3_PENDING_W2 = []


def gen_nsplit(a, which):
    p1 = which == 1
    WSL = WQ_SL if p1 else W1_SL
    wtag = 'wq' if p1 else 'w1'
    CS = CS1 if p1 else CS3
    G = OPT['g1'] if p1 else OPT['g3']
    NSET = G + 1
    ACC0 = 64
    FR = 104
    STP = 136
    PK = 140
    VB = 148
    VSW, VSR = 150, 151
    VSTW = 158
    SRL = list(range(96, 104)) + list(range(140, 148))
    T0 = FR
    st_i = 10 if p1 else 30
    NT = 9 if p1 else 8
    xin = XB[0] if p1 else XB[1]
    stin = STB[0] if p1 else STB[1]
    LEAD = 3
    KC = 20 // G
    if p1:
        late = list(range(17 + OPT['burst4'], 40))
    else:
        late = []
        a.flush_m(pred=lambda g: g[-1][2] == wtag)

    def accset(T):
        return ACC0 + 8 * (T % NSET)

    a('s_mul_i32 s44, s%d, 5120' % S_W)
    a('s_mul_i32 s45, s%d, 163840' % S_TEAM)
    a('s_add_u32 s45, s45, s%d' % S_XOFF)
    per = 4 // G
    a('s_lshr_b32 s50, s%d, %d' % (S_W, {1: 2, 2: 1, 4: 0}[G]))
    a('s_and_b32 s51, s%d, %d' % (S_W, per - 1))
    a('s_mul_i32 s51, s51, 5120')
    a('s_mul_i32 s46, s50, 20480')
    a('s_add_u32 s46, s46, s45')
    a('s_add_u32 s46, s46, %d' % (xin - (20480 if p1 else 0)))
    if p1:
        a('s_cmp_eq_u32 s50, 0')
        a('s_cselect_b32 s46, s%d, s46' % S_HSRC)
    a('s_add_u32 s46, s46, s51')
    a('s_add_u32 s45, s45, s44')
    if p1:
        attn_addr(a, T0)
    a('v_lshrrev_b32 v%d, 4, v0' % T0)
    a('s_lshl_b32 s3, s%d, 2' % S_W)
    a('v_add_u32 v%d, s3, v%d' % (T0, T0))
    a('v_and_b32 v%d, 15, v0' % (T0 + 1))
    a('v_lshlrev_b32 v%d, 3, v%d' % (VSR, T0 + 1))
    a('v_lshl_add_u32 v%d, v%d, 10, v%d' % (T0 + 3, T0, VSR))
    a('v_add_u32 v%d, %d, v%d' % (VSR, L_STAT, VSR))
    a('v_min_u32 v%d, 11, v%d' % (VSTW, T0))
    a('v_lshl_add_u32 v%d, v%d, 7, v%d' % (VSTW, VSTW, VSR))
    a('s_lshl_b32 s40, s%d, 13' % S_TEAM)
    a('s_lshl_b32 s3, s%d, 18' % S_PASS)
    a('s_add_u32 s40, s40, s3')
    a('s_add_u32 s40, s40, %d' % (stin - (1024 if p1 else 0)))
    a('v_mov_b32 v%d, s40' % (T0 + 4))
    if p1:
        a('v_mov_b32 v%d, s%d' % (T0 + 5, S_HSTS))
        a('v_cmp_eq_u32 vcc, 0, v%d' % T0)
        a('v_cndmask_b32 v%d, v%d, v%d, vcc' % (T0 + 4, T0 + 4, T0 + 5))
    a('v_mov_b32 v%d, 0x%x' % (T0 + 5, OOB))
    a('v_cmp_gt_u32 vcc, %d, v%d' % (NT, T0))
    a('v_cndmask_b32 v%d, v%d, v%d, vcc' % (T0 + 4, T0 + 5, T0 + 4))
    a('v_add_u32 v%d, v%d, v%d' % (T0 + 3, T0 + 3, T0 + 4))
    a('v_mov_b32 v%d, v1' % VB)
    a('v_add_u32 v%d, %d, v1' % (VB + 1, 3 * SLOT))
    if p1:
        a('v_mul_u32_u24 v%d, 272, v%d' % (VSW, T0 + 1))
        a('v_lshl_add_u32 v%d, v%d, 4, v%d' % (VSW, T0, VSW))
        a('v_add_u32 v%d, %d, v%d' % (VSW, L_SCR, VSW))
    else:
        a('s_lshl_b32 s41, s%d, 3' % S_TEAM)
        a('s_mul_i32 s41, s41, 54')
        a('s_add_u32 s41, s41, s%d' % S_BLK)
        a('s_lshl_b32 s41, s41, 10')
        a('s_mul_i32 s3, s%d, %d' % (S_PASS, HSZ))
        a('s_add_u32 s41, s41, s3')
        a('s_add_u32 s41, s41, %d' % HB[0])
    a('s_mov_b32 s42, 0x%x' % f32bits(-1.0 / 640.0))
    a('s_mov_b32 s43, 0x%x' % f32bits(1e-5))

    def colsum():
        for q in range(4):
            a('v_mov_b32 v%d, 0x%x' % (STP + q, ONES))
        if not p1:
            for q in (3, 2, 1, 0):
                a('v_and_b32 v%d, 0xffff0000, v%d' % (B1R + 1 + 2 * q, B1R + q))
                a('v_lshlrev_b32 v%d, 16, v%d' % (B1R + 2 * q, B1R + q))
            a.wait_vm(wtag)
        for ks in range(20):
            for t in range(2):
                d = vr(PK + 4 * t, 4)
                a('v_mfma_f32_16x16x32_bf16 %s, %s, %s, %s' % (d, slot_reg(WSL[ks * 2 + t]), vr(STP, 4), '0' if ks == 0 else d))
        for q in range(8):
            a('v_mov_b32 v%d, v%d' % (CS + q, PK + q))

    def pass0(fn):
        L = a.newlabel('p0')
        a('s_cmp_lg_u32 s%d, 0' % S_PASS)
        a('s_cbranch_scc1 %s' % L)
        vm0 = list(a.vm)
        fn()
        a.label(L)
        a.vm = vm0

    if p1:
        LS = a.newlabel('p1_nowait')
        a('s_cmp_eq_u32 s%d, 0' % S_PASS)
        a('s_cbranch_scc1 %s' % LS)
        poll(a, S_TFL, 's%d' % S_PH)
        LH = a.newlabel('p1_nohalo')
        a('s_and_b32 s49, s%d, 7' % S_TEAM)
        a('s_cmp_eq_u32 s49, 0')
        a('s_cbranch_scc1 %s' % LH)
        a('s_lshl_b32 s49, s%d, 7' % S_TEAM)
        a('s_add_u32 s49, s49, %d' % (HF - 128))
        poll(a, 49, '1', lanes=0xff)
        a.label(LH)
        LG = a.newlabel('p1_go')
        a('s_branch %s' % LG)
        a.label(LS)
        first_deps(a)
        a.label(LG)
        a.vm = []
    else:
        pass0(colsum)
        poll(a, S_TFL, 's%d' % S_PH)
    stamp(a, st_i)
    LSKIP = None
    if not p1:
        LSKIP = a.newlabel('p3_skip')
        a('s_cmp_ge_u32 s%d, 14' % S_J)
        a('s_cbranch_scc1 %s' % LSKIP)

    def unit_dma(u):
        gs = []
        if u < G:
            sb, go = 46, u * KC * 1024
        else:
            sb, go = 45, xin + (u - 1 if p1 else u) * SLOT
        for i in range(5):
            g = []
            if i % 4 == 0:
                g.append(('i', 's_add_u32 m0, s44, %d' % ((u % NSLOT) * SLOT + i * 1024), None))
                g.append(('i', 's_add_u32 s%d, s%d, %d' % (S_DMA, sb, go + i * 1024), None))
            g.append(('i', 'buffer_load_dwordx4 v1, s[4:7], s%d offen offset:%d%s lds' % (S_DMA, (i % 4) * 1024, LDM()), 'd%d' % u))
            gs.append(g)
        return gs

    seq = []
    for u in range(NT):
        if u < G:
            for kk in range(KC):
                for tl in range(G):
                    seq.append((u, tl, u * KC + kk, tl * KC + kk))
        else:
            for ks in range(20):
                seq.append((u, u, ks, ks))

    lateg = {}
    for g, f in zip(wloads(S_WQ, WQ_SL, late, tagp='wq'), late):
        c = min((f // 2) // KC, G - 1)
        g[-1] = ('i', g[-1][1], 'wq%d' % c)
        lateg.setdefault(c, []).append(g)

    now(a, lateg.get(0, []))
    now(a, unit_dma(0))
    for q in range(8):
        a('buffer_load_dwordx2 %s, v%d, s[4:7], 0 offen offset:%d%s' % (vr(SRL[2 * q], 2), T0 + 3, 128 * q, LDM()), tag='st')
    now(a, unit_dma(1))
    if p1:
        pass0(lambda: now(a, wloads(S_WQ, WQ_SL, range(10, 17 + OPT['burst4']), tagp='wq')))
        a('s_mov_b32 s3, 0x%x' % OOB)
        a('buffer_load_dword v163, v%d, s[4:7], s3 offen' % VZ, tag='wqE')
    r = Rec()
    r.wait_vm('st')
    for lvl in (8, 4, 2):
        for q in range(lvl):
            r('v_add_f32 v%d, v%d, v%d' % (SRL[q], SRL[q], SRL[lvl + q]))
    S0, S1 = SRL[0], SRL[1]
    r('v_mul_f32 v%d, s42, v%d' % (S0, S0))
    r('v_mul_f32 v%d, s42, v%d' % (S1, S1))
    r('v_fma_f32 v%d, v%d, v%d, v%d' % (S1, S0, S0, S1))
    r('v_min_f32 v%d, 0, v%d' % (S1, S1))
    r('v_sub_f32 v%d, s43, v%d' % (S1, S1))
    r('v_rsq_f32 v%d, v%d' % (S1, S1))
    r('ds_write_b64 v%d, %s' % (VSTW, vr(S0, 2)), tag='stw')
    stats_items = r.items
    a.wait_vm('d0')
    a.wait_lg_all()
    a('s_barrier')
    stamp(a, st_i + 1)
    held = []
    if p1:
        held = wloads(S_WO, WO_SL, range(25), tagp='wo') + wloads(S_W1, W1_SL, range(22), tagp='w1')
    a.qm = lateg.get(1, []) + unit_dma(2) + lateg.get(2, []) + unit_dma(3) + lateg.get(3, []) + a.qm

    NF = NT * 20
    DEPTH = 6

    def rd(n):
        u, tl, ks, blk = seq[n]
        sl = u % NSLOT
        return ('i', 'ds_read_b128 %s, v%d offset:%d' % (vr(FR + 4 * (n % 8), 4), VB + sl // 3, (sl % 3) * SLOT + blk * 1024), 'f%d' % n)

    def epilogue(r, T, pk):
        b = accset(T)
        sp = STP + 2 * (T & 1)
        P = PK + 4 * (T & 1)
        if not p1:
            r('s_add_u32 s%d, s41, %d' % (S_QV, T * 55296))
        r.wait_lg('sp%d' % T)
        if pk:
            for q in range(4):
                r('v_pk_fma_f32 %s, %s, %s, %s op_sel_hi:[0,1,1]' % (vr(b + 2 * q, 2), vr(sp, 2), vr(CS + 2 * q, 2), vr(b + 2 * q, 2)))
            if p1:
                for q in range(4):
                    r('v_pk_mul_f32 %s, %s, %s op_sel:[1,0]' % (vr(b + 2 * q, 2), vr(sp, 2), vr(b + 2 * q, 2)))
            else:
                for q in range(4):
                    r('v_pk_fma_f32 %s, %s, %s, %s op_sel:[1,0,0]' % (vr(b + 2 * q, 2), vr(sp, 2), vr(b + 2 * q, 2), vr(B1R + 2 * q, 2)))
                for e in range(8):
                    r('v_max_f32 v%d, 0, v%d' % (b + e, b + e))
                for q in range(4):
                    r('v_pk_mul_f32 %s, %s, %s' % (vr(b + 2 * q, 2), vr(b + 2 * q, 2), vr(b + 2 * q, 2)))
        else:
            for e in range(8):
                r('v_fmac_f32 v%d, v%d, v%d' % (b + e, sp, CS + e))
            if p1:
                for e in range(8):
                    r('v_mul_f32 v%d, v%d, v%d' % (b + e, b + e, sp + 1))
            else:
                for e in range(8):
                    r('v_fma_f32 v%d, v%d, v%d, v%d' % (b + e, b + e, sp + 1, B1R + e))
                for e in range(8):
                    r('v_max_f32 v%d, 0, v%d' % (b + e, b + e))
                for e in range(8):
                    r('v_mul_f32 v%d, v%d, v%d' % (b + e, b + e, b + e))
        if T + 2 < NT:
            r.items.append(sp_read(T + 2))
        for q in range(4):
            r('v_cvt_pk_bf16_f32 v%d, v%d, v%d' % (P + q, b + 2 * q, b + 2 * q + 1))
        if p1:
            r('ds_write_b128 v%d, %s offset:%d' % (VSW, vr(P, 4), T * TP), tag='sw')
        else:
            r('buffer_store_dwordx4 %s, v1, s[4:7], s%d offen sc1' % (vr(P, 4), S_QV), tag='pub')
        r.items.append(('mark', T, None))

    def sp_read(T):
        return ('i', 'ds_read_b64 %s, v%d offset:%d' % (vr(STP + 2 * (T & 1), 2), VSR, T * 128), 'sp%d' % T)

    def flush_until(T):
        while any(it[0] == 'mark' and it[1] == T for it in a.qv):
            a.emit_item(a.qv.pop(0))

    if OPT['tstamp'] // 10 == which:
        a('s_memtime s[64:65]')
    for n in range(DEPTH):
        a.emit_item(rd(n))
    a.wait_lg('f1')
    nread = DEPTH
    quiet = OPT['quiet1'] if p1 else OPT['quiet3']
    a.pace = OPT['pace']
    edone = 0
    for n in range(NF):
        u, T, ks, blk = seq[n]
        pos = n % 20
        acc = accset(T)
        if pos == 0:
            if u >= NSET:
                flush_until(u - NSET)
            if u < G and u >= 1:
                a.flush_m(pred=lambda g: g[-1][2] == 'wq%d' % u)
                a.wait_vm('wq%d' % u)
            if p1 and u == 1:
                a.wait_vm('wqE')
                lg0 = list(a.lg)
                pass0(lambda: first_unit1(a))
                a.lg = lg0
            if p1 and u == OPT['lsu']:
                a.wait_vm('ls')
                pass0(lambda: late_sync(a, 0, 96))
            if u == G:
                if p1:
                    pass0(colsum)
                a.emit_item(sp_read(0))
                a.emit_item(sp_read(1))
        if p1 and n == OPT['lsu'] * 20 - 12:
            late_issue(a, 0, 96)
        if p1 and n == 8 * 20 - 30:
            late_issue(a, 1, 160)
        if p1 and n == 8 * 20 - 8:
            a.wait_vm('ls')
            pass0(lambda: late_sync(a, 1, 160))
        a.quiet = (NF - n) * 2 <= quiet
        for t in range(2):
            fg = []
            wait = None
            d = vr(acc + 4 * t, 4)
            if t == 0 and nread < NF:
                if nread % 20 == 0:
                    Tn = nread // 20
                    if Tn == 1:
                        a.flush_v()
                        a.wait_lg('stw')
                    a.flush_m(pred=lambda g: g[-1][2] == 'd%d' % Tn)
                    a.wait_vm('d%d' % Tn)
                    a('s_barrier')
                    if OPT['tstamp'] == which * 10 + 3:
                        a('s_memtime s[%d:%d]' % (64 + 2 * Tn, 65 + 2 * Tn))
                    if p1 and Tn == OPT['lsu'] + 1:
                        a.qm += held
                    if Tn + LEAD < NT:
                        ps = max([i + 1 for i, g in enumerate(a.qm) if g[-1][2].startswith('d') or g[-1][2][:2] == 'wq'] + [0])
                        a.qm[ps:ps] = unit_dma(Tn + LEAD)
                fg.append(rd(nread))
                nread += 1
            if t == 1 and (n & 1) == 1 and n + 1 < NF:
                wait = ('wl', 'f%d' % min(n + 2, NF - 1), None)
            a.mfma('v_mfma_f32_16x16x32_bf16 %s, %s, %s, %s' % (d, slot_reg(WSL[ks * 2 + t]), vr(FR + 4 * (n % 8), 4), '0' if ks == 0 else d), fg, wait)
        if pos == 1 and u == 0:
            a.qv += stats_items
        if pos == 3 and u >= G:
            while edone < u:
                r = Rec()
                epilogue(r, edone, False)
                a.qv += r.items
                edone += 1
    a.quiet = False
    a.flush_v()
    if OPT['tstamp'] // 10 == which:
        a('s_memtime s[82:83]')
        a('s_waitcnt lgkmcnt(0)')
        a.lg = []
        a('s_lshl_b32 s99, s2, 2')
        a('s_add_u32 s99, s99, s%d' % S_W)
        a('s_lshl_b32 s99, s99, 9')
        a('s_lshl_b32 s98, s%d, 8' % S_PASS)
        a('s_add_u32 s99, s99, s98')
        a('s_add_u32 s99, s99, %d' % STAMP_BASE)
        a('s_mov_b64 exec, 1')
        for q in range(10):
            a('v_mov_b32 v163, s%d' % (64 + 2 * q))
            a('buffer_store_dword v163, v%d, s[4:7], s99 offen offset:%d' % (VZ, 4 * q), tag='stamp')
        a('s_mov_b64 exec, -1')
    stamp(a, st_i + 2)
    if p1:
        a.qm += wloads(S_W1, W1_SL, range(22, 40), tagp='w1') + w2loads(range(22))
    else:
        a.qm += w2loads(range(47, 70)) + wloads(S_WQ, WQ_SL, range(17), srd='s[16:19]', tagp='wq')
    if p1:
        a.flush_m(OPT['tail1'])
    r = Rec()
    epilogue(r, NT - 1, True)
    a.run(r, every=0)
    if p1:
        a.wait_lg_all()
        a('s_barrier')
        stamp(a, st_i + 3)
        r = Rec()
        attn_units(r, [(0, 0, 64, 68, 76), (0, 1, 84, 88, 96), (1, 0, 104, 108, 116), (1, 1, 124, 128, 136)], (64, 104))
        half = len(r.items) // 2
        r2 = Rec()
        r2.items = r.items[half:]
        r.items = r.items[:half]
        a.run(r, every=OPT['aevery'])
        a.run(r2, every=0)
        stamp(a, st_i + 4)
        publish(a)
        a.flush_m(OPT['burst1'])
    else:
        LJ = a.newlabel('p3_join')
        stamp(a, st_i + 4)
        publish(a)
        a.flush_m(pred=lambda g: g[-1][2] == 'w2')
        a('s_branch %s' % LJ)
        vm_main = list(a.vm)
        a.label(LSKIP)
        a.vm = []
        publish(a)
        now(a, w2loads(P3_PENDING_W2 + list(range(47, 70))))
        a.label(LJ)
        a.vm = vm_main
    stamp(a, st_i + 5)


def gen_ksplit(a, which):
    p2 = which == 2
    NK = 5 if p2 else 14
    KS = 20 if p2 else 54
    WSL = WO_SL if p2 else W2_SL
    wtag = 'wo' if p2 else 'w2'
    ACC = [64, 84]
    RING = 104
    NR = 14
    VW = 160
    VRD = 161
    st_i = 20 if p2 else 40
    a.flush_m(pred=lambda g: g[-1][2] == wtag)
    a('s_lshl_b32 s40, s%d, 3' % S_TEAM)
    a('s_lshr_b32 s3, s%d, 3' % S_J)
    a('s_lshl_b32 s3, s3, 2')
    a('s_add_u32 s40, s40, s3')
    a('s_mul_i32 s40, s40, %d' % KS)
    if p2:
        a('s_mul_i32 s3, s%d, 5' % S_W)
        a('s_add_u32 s40, s40, s3')
    else:
        a('s_add_u32 s40, s40, s%d' % S_KS0)
    a('s_lshl_b32 s40, s40, 10')
    a('s_mul_i32 s3, s%d, %d' % (S_PASS, XSZ if p2 else HSZ))
    a('s_add_u32 s40, s40, s3')
    a('s_add_u32 s40, s40, %d' % (OB[0] if p2 else HB[0]))
    for i in range(4):
        a('s_add_u32 s3, s%d, %d' % (S_W, 1 + i))
        a('s_and_b32 s3, s3, 3')
        a('s_mul_i32 s%d, s3, %d' % (41 + i, KS * 1024))
        a('s_add_u32 s%d, s%d, s40' % (41 + i, 41 + i))
        if i < 3:
            a('s_mul_i32 s%d, s3, 15360' % (52 + i))
        if not p2:
            a('s_add_u32 s%d, s%d, %d' % (48 + i, 41 + i, 13 * 1024))
            a('s_cmp_ge_u32 s%d, 2' % S_W)
            a('s_cselect_b32 s%d, %d, s%d' % (48 + i, OOB, 48 + i))
    a('s_mul_i32 s3, s%d, 15360' % S_W)
    a('v_add_u32 v%d, s3, v1' % VRD)
    xout = XB[1] if p2 else XB[2]
    stout = STB[1] if p2 else STB[2]
    a('s_add_u32 s36, s%d, s%d' % (S_XT, S_XOFF))
    a('s_add_u32 s36, s36, %d' % xout)
    a('s_lshl_b32 s3, s%d, 18' % S_PASS)
    a('s_add_u32 s37, s%d, s3' % S_STT)
    a('s_add_u32 s37, s37, %d' % stout)
    if not p2:
        a('s_lshl_b32 s38, s%d, 7' % S_TEAM)
        a('s_lshl_b32 s3, s%d, 2' % S_CG)
        a('s_add_u32 s38, s38, s3')
        a('s_add_u32 s38, s38, %d' % HF)
        a('s_cmp_eq_u32 s%d, 7' % S_MT)
        a('s_cselect_b32 s38, s38, %d' % OOB)
    poll(a, S_TFL, 's%d' % S_PH)
    stamp(a, st_i)
    seq = [(i, k) for i in range(4) for k in range(NK)]

    def ld(n):
        i, k = seq[n]
        g = []
        reg = vr(RING + 4 * (n % NR), 4)
        if (not p2) and k == 13:
            g.append(('i', 'buffer_load_dwordx4 %s, v1, s[4:7], s%d offen%s' % (reg, 48 + i, LDM()), 'a%d' % n))
            return g
        if k % 4 == 0:
            g.append(('i', 's_add_u32 s%d, s%d, %d' % (S_DMA, 41 + i, k * 1024), None))
        g.append(('i', 'buffer_load_dwordx4 %s, v1, s[4:7], s%d offen offset:%d%s' % (reg, S_DMA, (k % 4) * 1024, LDM()), 'a%d' % n))
        return g

    nld = min(NR, len(seq))
    for n in range(nld):
        for it in ld(n):
            a.emit_item(it)
    own = ACC[1]
    ini = Rec()
    for q in range(10):
        ini('v_lshlrev_b32 v%d, 16, v%d' % (own + 2 * q, XRES + q))
        ini('v_and_b32 v%d, 0xffff0000, v%d' % (own + 2 * q + 1, XRES + q))
    if not p2:
        for q in range(10):
            ini('v_lshlrev_b32 v162, 16, v%d' % (B2R + q))
            ini('v_add_f32 v%d, v%d, v162' % (own + 2 * q, own + 2 * q))
            ini('v_and_b32 v162, 0xffff0000, v%d' % (B2R + q))
            ini('v_add_f32 v%d, v%d, v162' % (own + 2 * q + 1, own + 2 * q + 1))
    n = 0
    PS = ACC[0]
    for i in range(4):
        acc = ACC[i & 1]
        cnt = 0
        a.flush_v()
        for k in range(NK):
            a.quiet = (len(seq) - n) * 5 <= OPT['quiet4']
            a.wait_vm('a%d' % n)
            for s in range(5):
                d = vr(acc + 4 * s, 4)
                fg = []
                if s == 4 and nld < len(seq):
                    fg = ld(nld)
                    nld += 1
                first = (k == 0 and i != 3)
                a.mfma('v_mfma_f32_16x16x32_bf16 %s, %s, %s, %s' % (d, slot_reg(WSL[k * 5 + s]), vr(RING + 4 * (n % NR), 4), '0' if first else d), fg)
                cnt += 1
                if cnt == 3 and i >= 1:
                    pacc = ACC[(i - 1) & 1]
                    r = Rec()
                    r('v_add_u32 v%d, s%d, v1' % (VW, 52 + i - 1))
                    for s2 in range(5):
                        r('ds_write_b128 v%d, %s offset:%d' % (VW, vr(pacc + 4 * s2, 4), ((i - 1) * 5 + s2) * 1024), tag='pw')
                    if i == 2:
                        r.delay(3)
                        r.wait_lg('pw')
                        r.items += ini.items
                    a.qv += r.items
                if i == 3 and cnt == (14 if p2 else 30):
                    a.flush_v()
                    a.wait_lg_all()
                    a('s_barrier')
                    r = Rec()
                    for s2 in range(5):
                        r('ds_read_b128 %s, v%d offset:%d' % (vr(PS + 4 * s2, 4), VRD, s2 * 1024), tag='pr0')
                    a.qv += r.items
            n += 1
    a.quiet = False
    a.flush_v()
    stamp(a, st_i + 1)
    if p2:
        a.qm += w2loads(range(22, 47))
    else:
        a.qm += wloads(S_WQ, WQ_SL, range(17, 17 + OPT['burst4']), srd='s[16:19]', tagp='wq')
    for src in (1, 2):
        for s2 in range(5):
            a('ds_read_b128 %s, v%d offset:%d' % (vr(RING + (src - 1) * 20 + 4 * s2, 4), VRD, (src * 5 + s2) * 1024), tag='pr%d' % src)
    a.flush_m(OPT['tail2'] if p2 else OPT['tail4'])
    tile5_voff(a, 144, 145)
    stat_voff(a, 145, 146)
    a.wait_lg('pr0')
    for q in range(10):
        a('v_pk_add_f32 %s, %s, %s' % (vr(own + 2 * q, 2), vr(own + 2 * q, 2), vr(PS + 2 * q, 2)))
    for src in (1, 2):
        a.wait_lg('pr%d' % src)
        for q in range(10):
            a('v_pk_add_f32 %s, %s, %s' % (vr(own + 2 * q, 2), vr(own + 2 * q, 2), vr(RING + (src - 1) * 20 + 2 * q, 2)))
    for q in range(10):
        a('v_cvt_pk_bf16_f32 v%d, v%d, v%d' % (XRES + q, own + 2 * q, own + 2 * q + 1))
    LF = None
    if not p2:
        LF = a.newlabel('final')
        a('s_cmp_eq_u32 s%d, 1' % S_PASS)
        a('s_cbranch_scc1 %s' % LF)
    store_tile(a, XRES, 36, 144)
    tile_stats(a, XRES, 64)
    a('buffer_store_dwordx2 v[64:65], v145, s[4:7], s37 offen sc1', tag='pub')
    stamp(a, st_i + 2)
    publish(a)
    if not p2:
        a('s_mov_b64 exec, 1')
        a('buffer_store_dword v162, v%d, s[4:7], s38 offen sc1' % VZ)
        a('s_mov_b64 exec, -1')
    else:
        a.flush_m(OPT['burst2'])
    stamp(a, st_i + 3)
    return LF


def main(out):
    global P3_PENDING_W2
    a = Sched()
    name = KNAME + '_kernel'
    a.raw('; @launch grid=(256,1,1) block=(256,1,1) lds=%d' % LDS_SIZE)
    a.raw('.amdgcn_target "amdgcn-amd-amdhsa--gfx950"')
    a.raw('.text')
    a.raw('.globl %s' % name)
    a.raw('.p2align 8')
    a.raw('.type %s,@function' % name)
    a.raw('%s:' % name)
    END = 'k_end'
    gen_prologue(a, END)
    gen_prep(a)
    gen_setup(a)
    gen_roles(a)
    stamp(a, 4)
    a.label('pass_loop')
    gen_nsplit(a, 1)
    gen_ksplit(a, 2)
    a.flush_m(pred=lambda g: g[-1][2] == 'w1')
    pend = []
    for g in a.qm:
        reg = g[-1][1].split()[1].rstrip(',')
        pend.append([i for i in range(70) if slot_reg(W2_SL[i]) == reg][0])
    P3_PENDING_W2 = pend
    a.qm = w2loads(pend)
    gen_nsplit(a, 3)
    LF = gen_ksplit(a, 4)
    a.flush_m()
    a('s_mov_b32 s%d, 1' % S_PASS)
    a('s_mov_b32 s%d, %d' % (S_XOFF, 2 * XSZ))
    a('s_mov_b32 s18, 0')
    a('s_add_u32 s%d, s%d, %d' % (S_HSRC, S_HSRC, 2 * XSZ))
    a('s_add_u32 s%d, s%d, %d' % (S_HSTS, S_HSTS, 2 * STSZ))
    a('s_branch pass_loop')
    a.label(LF)
    rowmajor_voff(a, 64, 65)
    for s in range(5):
        a('buffer_store_dwordx2 %s, v64, s[12:15], s%d offen offset:%d' % (vr(XRES + 2 * s, 2), S_RM, 32 * s))
    stamp(a, 50)
    a.label(END)
    a('s_endpgm')
    a.raw('code_end:')
    a.raw('.section .rodata,"a"')
    a.raw('.p2align 6')
    a.raw('.amdhsa_kernel %s' % name)
    a.raw('  .amdhsa_next_free_vgpr 512')
    a.raw('  .amdhsa_next_free_sgpr 102')
    a.raw('  .amdhsa_accum_offset 256')
    a.raw('  .amdhsa_group_segment_fixed_size 0')
    a.raw('  .amdhsa_kernarg_size 88')
    a.raw('  .amdhsa_user_sgpr_count 2')
    a.raw('  .amdhsa_user_sgpr_kernarg_segment_ptr 1')
    a.raw('  .amdhsa_system_sgpr_workgroup_id_x 1')
    a.raw('.end_amdhsa_kernel')
    open(out, 'w').write(a.text())
    print('instructions:', a.nins, 'ws end', WS_END)


if __name__ == '__main__':
    out = sys.argv[1] if len(sys.argv) > 1 else 'cdna_kernels/%s.s' % KNAME
    for o in sys.argv[2:]:
        if '=' in o:
            k, v = o.split('=')
            OPT[k] = int(v)
        else:
            OPT[o] = True
    main(out)
```

```python
import sys, math, struct
sys.path.insert(0, 'work')
from asmlib import Sched, Rec, vr, ar, sr

KNAME = 'interleave_layers__sliding_local_dilated__dense_activation_squared_relu__prompt'

OPT = dict(stamps=False, fake_xcc=0, force_slow=False, gsleep=2, quiet1=0, quiet3=30, quiet4=20,
           burst1=8, burst2=8, pace=4, tstamp=0, attn_loop=1, ldsc1=1, wnt=0, gen_pos=0, burst4=8, g1=4, g3=2, tail1=8, tail2=4, tail4=4, aevery=20, lsu=4, cpf=1, kfirst=6, st3=1, csi=1)

WS_SIZE = 268435456
WQKV_T = 0
WO_T = WQKV_T + 16 * 163840
W1_T = WO_T + 8 * 20 * 5 * 1024
W2_T = W1_T + 54 * 20 * 2 * 1024
XSZ = 16 * 8 * 20 * 1024
X0 = W2_T + 8 * 54 * 5 * 1024
XB = [X0 + i * XSZ for i in range(4)]
OB = [X0 + (4 + i) * XSZ for i in range(2)]
HSZ = 16 * 8 * 54 * 1024
HB = [X0 + 6 * XSZ + i * HSZ for i in range(2)]
STSZ = 16 * 8 * 1024
ST0 = HB[1] + HSZ
STB = [ST0 + i * STSZ for i in range(4)]
FL = ST0 + 4 * STSZ
HF = FL + 4096
PFQ = HF + 2048
PFX = PFQ + 16 * 256
PFG = PFX + 16 * 512
RXF = PFG + 1024 * 8
WS_END = RXF + 16 * 128
STAMP_BASE = 64 << 20
OOB = 0x40000000
ONES = 0x3F803F80

SLOT = 20480
NSLOT = 6
L_SCR = NSLOT * SLOT
TP = 16 * 272
L_STAT = L_SCR + 144 * 272
L_ROLE = L_STAT + 1536
LDS_SIZE = 163840

S_TEAM, S_J, S_W, S_FAST, S_PASS = 20, 21, 22, 23, 24
S_CG, S_MT = 25, 26
S_XT = 29
S_STT = 31
S_RM = 32
S_COL = 34
S_PF, S_DMA, S_QV, S_QA = 58, 57, 56, 55
S_KS0 = 59
S_FLAG, S_TFL = 60, 61
S_WQ, S_WO, S_W1, S_W2 = 62, 63, 88, 89
S_W2X, S_XOFF, S_BLK = 90, 91, 92
S_HSRC, S_HSTS = 93, 94
S_PH = 95
S_XCC, S_PFGA = 27, 28
S_N0, S_N1 = 100, 101

CS1, CS3, B1R, B2R, XRES = 2, 10, 18, 26, 36
BIASC, BIASP, BIASP0, MASKP, MASKC = 46, 50, 54, 58, 60
VL4 = 62
VZ = 63
VL8 = 161


def slot_reg(i):
    return ar(4 * i, 4) if i < 64 else vr(164 + 4 * (i - 64), 4)


_G = {}
_p = 0
for _n, _c in (('y', 25), ('z', 17), ('x', 1), ('u', 22), ('v', 22)):
    _G[_n] = list(range(_p, _p + _c))
    _p += _c
WQ_SL = _G['z'] + _G['x'] + _G['u']
WO_SL = _G['y']
W1_SL = _G['v'] + _G['x'] + _G['z']
W2_SL = _G['u'] + _G['y'] + _G['x'] + _G['v']


def xorder(sig):
    cg, i = divmod(sig, 10)
    if i < 8:
        f = 80 * cg + 32 * (i >> 2) + 4 * (i & 3)
        return f, f + 16
    f = 80 * cg + 8 * i
    return f, f + 4


def oorder(sig):
    j, i = divmod(sig, 5)
    f = 40 * j + 4 * i
    return f, f + 20


def horder(sig):
    f = 32 * (sig >> 2) + 4 * (sig & 3)
    return f, f + 16


def f32bits(x):
    return struct.unpack('<I', struct.pack('<f', x))[0]


def LDM():
    return ' sc1' if OPT['ldsc1'] else ''


def stamp(a, idx):
    if not OPT['stamps']:
        return
    if idx in (11, 12, 31, 32, 40, 41):
        stamp2(a, 52 + (11, 12, 31, 32, 40, 41).index(idx), 's_memtime')
    stamp2(a, idx, 's_memrealtime')


def stamp2(a, idx, ins):
    a('%s s[96:97]' % ins)
    a('s_lshl_b32 s99, s2, 2')
    a('s_add_u32 s99, s99, s%d' % S_W)
    a('s_lshl_b32 s99, s99, 9')
    a('s_lshl_b32 s98, s%d, 8' % S_PASS)
    a('s_add_u32 s99, s99, s98')
    a('s_add_u32 s99, s99, %d' % (STAMP_BASE + idx * 4))
    a('s_waitcnt lgkmcnt(0)')
    a.lg = []
    a('v_mov_b32 v163, s96')
    a('s_mov_b64 exec, 1')
    a('buffer_store_dword v163, v%d, s[4:7], s99 offen' % VZ, tag='stamp')
    a('s_mov_b64 exec, -1')


def make_srd(a, dst, src, nbytes):
    a('s_mov_b32 s%d, s%d' % (dst, src))
    a('s_and_b32 s%d, s%d, 0xffff' % (dst + 1, src + 1))
    a('s_mov_b32 s%d, %d' % (dst + 2, nbytes))
    a('s_mov_b32 s%d, 0x20000' % (dst + 3))


def tile_scalars(a):
    a('s_and_b32 s%d, s%d, 7' % (S_CG, S_J))
    a('s_lshr_b32 s%d, s%d, 3' % (S_MT, S_J))
    a('s_lshl_b32 s%d, s%d, 2' % (S_MT, S_MT))
    a('s_add_u32 s%d, s%d, s%d' % (S_MT, S_MT, S_W))
    a('s_lshl_b32 s%d, s%d, 3' % (S_STT, S_TEAM))
    a('s_add_u32 s%d, s%d, s%d' % (S_STT, S_STT, S_MT))
    a('s_mul_i32 s%d, s%d, 20480' % (S_XT, S_STT))
    a('s_mul_i32 s3, s%d, 2560' % S_CG)
    a('s_add_u32 s%d, s%d, s3' % (S_XT, S_XT))
    a('s_lshl_b32 s%d, s%d, 10' % (S_STT, S_STT))
    a('s_lshl_b32 s3, s%d, 7' % S_CG)
    a('s_add_u32 s%d, s%d, s3' % (S_STT, S_STT))
    a('s_mul_i32 s%d, s%d, 160' % (S_COL, S_CG))
    a('s_and_b32 s3, s%d, 7' % S_TEAM)
    a('s_lshl_b32 s3, s3, 7')
    a('s_lshl_b32 s%d, s%d, 4' % (S_RM, S_MT))
    a('s_add_u32 s3, s3, s%d' % S_RM)
    a('s_lshl_b32 s3, s3, 1')
    a('s_lshr_b32 s%d, s%d, 3' % (S_RM, S_TEAM))
    a('s_add_u32 s3, s3, s%d' % S_RM)
    a('s_mul_i32 s3, s3, 1280')
    a('s_add_u32 s%d, s3, s%d' % (S_RM, S_COL))


def rowmajor_voff(a, dst, tmp):
    a('v_and_b32 v%d, 15, v0' % dst)
    a('v_mul_u32_u24 v%d, 2560, v%d' % (dst, dst))
    a('v_lshrrev_b32 v%d, 4, v0' % tmp)
    a('v_lshl_add_u32 v%d, v%d, 3, v%d' % (dst, tmp, dst))


def tile5_voff(a, dst, tmp):
    a('v_and_b32 v%d, 15, v0' % dst)
    a('v_lshlrev_b32 v%d, 4, v%d' % (dst, dst))
    a('v_lshrrev_b32 v%d, 5, v0' % tmp)
    a('v_lshl_add_u32 v%d, v%d, 8, v%d' % (dst, tmp, dst))
    a('v_bfe_u32 v%d, v0, 4, 1' % tmp)
    a('v_lshl_add_u32 v%d, v%d, 3, v%d' % (dst, tmp, dst))


def stat_voff(a, dst, tmp):
    a('v_lshlrev_b32 v%d, 3, v0' % dst)
    a('v_mov_b32 v%d, 0x%x' % (tmp, OOB))
    a('v_cmp_gt_u32 vcc, 16, v0')
    a('v_cndmask_b32 v%d, v%d, v%d, vcc' % (dst, tmp, dst))


def two_ways(a, fn):
    LS = a.newlabel('slow')
    LJ = a.newlabel('join')
    a('s_cmp_eq_u32 s%d, 0' % S_FAST)
    a('s_cbranch_scc1 %s' % LS)
    vm0 = list(a.vm)
    fn('')
    a('s_branch %s' % LJ)
    a.label(LS)
    a.vm = vm0
    fn(' sc1')
    a.label(LJ)


def tile_stats(a, P, T):
    a('s_mov_b32 s39, 0x%x' % ONES)
    for i in range(10):
        a('v_dot2_f32_bf16 v%d, v%d, s39, %s' % (T, P + i, '0' if i == 0 else 'v%d' % T))
        a('v_dot2_f32_bf16 v%d, v%d, v%d, %s' % (T + 1, P + i, P + i, '0' if i == 0 else 'v%d' % (T + 1)))
    a('v_mov_b32 v%d, v%d' % (T + 2, T))
    a('v_mov_b32 v%d, v%d' % (T + 3, T + 1))
    a('v_permlane16_swap_b32 v%d, v%d' % (T, T + 2))
    a('v_permlane16_swap_b32 v%d, v%d' % (T + 1, T + 3))
    a('v_pk_add_f32 %s, %s, %s' % (vr(T, 2), vr(T, 2), vr(T + 2, 2)))
    a('v_mov_b32 v%d, v%d' % (T + 2, T))
    a('v_mov_b32 v%d, v%d' % (T + 3, T + 1))
    a('v_permlane32_swap_b32 v%d, v%d' % (T, T + 2))
    a('v_permlane32_swap_b32 v%d, v%d' % (T + 1, T + 3))
    a('v_pk_add_f32 %s, %s, %s' % (vr(T, 2), vr(T, 2), vr(T + 2, 2)))


def store_tile(a, P, sa, V5, tag='pub'):
    a('buffer_store_dwordx4 %s, v1, s[4:7], s%d offen sc1' % (vr(P, 4), sa), tag=tag)
    a('buffer_store_dwordx4 %s, v1, s[4:7], s%d offen offset:1024 sc1' % (vr(P + 4, 4), sa), tag=tag)
    a('buffer_store_dwordx2 %s, v%d, s[4:7], s%d offen offset:2048 sc1' % (vr(P + 8, 2), V5, sa), tag=tag)


def qkv_sg(ch, hf):
    Q, K, V = 0, 1, 2
    if ch < 4:
        h, lo = ch >> 1, (ch & 1) * 2
        return Q * 10 + h * 5 + lo + hf
    if ch == 4:
        return (Q * 10 + 4) if hf == 0 else 30
    if ch == 15:
        return (Q * 10 + 5 + 4) if hf == 0 else 30
    h = (ch - 5) // 5
    c = (ch - 5) % 5
    if c < 2:
        return K * 10 + h * 5 + c * 2 + hf
    if c < 4:
        return V * 10 + h * 5 + (c - 2) * 2 + hf
    return (K if hf == 0 else V) * 10 + h * 5 + 4


def poll(a, sbase, sval, lanes=None, sleep=0, off=0):
    if lanes:
        a('s_mov_b64 exec, 0x%x' % lanes)
    a('s_mov_b32 s3, 0')
    LP = a.newlabel('poll')
    LD = a.newlabel('polld')
    a.label(LP)
    if sleep:
        a('s_sleep %d' % sleep)
    a('buffer_load_dword v162, v%d, s[4:7], s%d offen offset:%d sc1' % (VL4, sbase, off))
    a('s_add_u32 s3, s3, 1')
    a('s_waitcnt vmcnt(0)')
    a('v_cmp_gt_u32 vcc, %s, v162' % sval)
    a('s_cmp_gt_u32 s3, 200000')
    a('s_cbranch_scc1 %s' % LD)
    a('s_cbranch_vccnz %s' % LP)
    a.label(LD)
    if lanes:
        a('s_mov_b64 exec, -1')
    a.vm = []


def poll64(a, items, sleep=0, rbase=64):
    a('s_mov_b32 s3, 0')
    LP = a.newlabel('poll')
    LD = a.newlabel('polld')
    a.label(LP)
    if sleep:
        a('s_sleep %d' % sleep)
    regs = []
    r = rbase
    for (sb, off, w, lanes) in items:
        a('buffer_load_dwordx%d %s, v%d, s[4:7], s%d offen offset:%d sc1' % (w, vr(r, w), 1 if w == 4 else VL8, sb, off))
        regs.append(r)
        r += w
    a('s_add_u32 s3, s3, 1')
    a('s_mov_b64 s[50:51], 0')
    a('s_waitcnt vmcnt(0)')
    for (sb, off, w, lanes), r in zip(items, regs):
        for q in range(0, w, 2):
            a('v_cmp_ne_u64 vcc, s[%d:%d], %s' % (S_N0, S_N1, vr(r + q, 2)))
            if lanes is not None:
                a('s_and_b64 vcc, vcc, %s' % lanes)
            a('s_or_b64 s[50:51], s[50:51], vcc')
    a('s_cmp_gt_u32 s3, 100000')
    a('s_cbranch_scc1 %s' % LD)
    a('s_cmp_lg_u64 s[50:51], 0')
    a('s_cbranch_scc1 %s' % LP)
    a.label(LD)
    a.vm = []


def flag64(a, saddr, lo=None, R=94):
    a('v_mov_b32 v%d, s%d' % (R, S_N0 if lo is None else lo))
    a('v_mov_b32 v%d, s%d' % (R + 1, S_N1))
    a('s_mov_b64 exec, 1')
    a('buffer_store_dwordx2 %s, v%d, s[4:7], s%d offen sc1' % (vr(R, 2), VZ, saddr))
    a('s_mov_b64 exec, -1')


def get_nonce(a):
    a('s_mov_b32 s3, 0')
    LP = a.newlabel('nonce')
    LD = a.newlabel('nonced')
    a.label(LP)
    a('buffer_load_dwordx2 v[94:95], v%d, s[84:87], 0 offen offset:128 sc1' % VZ)
    a('s_add_u32 s3, s3, 1')
    a('s_waitcnt vmcnt(0)')
    a('v_readfirstlane_b32 s%d, v94' % S_N0)
    a('v_readfirstlane_b32 s%d, v95' % S_N1)
    a('s_cmp_gt_u32 s3, 100000')
    a('s_cbranch_scc1 %s' % LD)
    a('s_cmp_eq_u32 s%d, 0' % S_N1)
    a('s_cbranch_scc1 %s' % LP)
    a.label(LD)
    a.vm = []


def publish(a):
    a('s_add_u32 s%d, s%d, 1' % (S_PH, S_PH))
    a('v_mov_b32 v162, s%d' % S_PH)
    a('s_mov_b64 exec, 1')

    def f(mod):
        a.wait_vm('pub')
        a('buffer_store_dword v162, v%d, s[4:7], s%d offen%s' % (VZ, S_FLAG, mod), tag='fl')
    two_ways(a, f)
    a('s_mov_b64 exec, -1')


def gen_prologue(a, END):
    a('s_cmp_ge_u32 s2, 256')
    a('s_cbranch_scc1 %s' % END)
    a('s_load_dwordx16 s[64:79], s[0:1], 0')
    a('s_load_dwordx4 s[80:83], s[0:1], 64')
    a('s_load_dwordx2 s[4:5], s[0:1], 80')
    a('v_lshrrev_b32 v1, 6, v0')
    a('v_and_b32 v0, 63, v0')
    a('v_readfirstlane_b32 s%d, v1' % S_W)
    a('v_lshlrev_b32 v1, 4, v0')
    a('v_lshlrev_b32 v%d, 2, v0' % VL4)
    a('v_mov_b32 v%d, 0' % VZ)
    a('s_mov_b32 s%d, 0' % S_PASS)
    a('s_and_b32 s3, s2, 7')
    a('s_lshr_b32 s%d, s2, 3' % S_J)
    a('s_lshr_b32 s%d, s%d, 4' % (S_TEAM, S_J))
    a('s_lshl_b32 s3, s3, 1')
    a('s_add_u32 s%d, s%d, s3' % (S_TEAM, S_TEAM))
    a('s_and_b32 s%d, s%d, 15' % (S_J, S_J))
    a('s_mov_b32 s%d, 0' % S_FAST)
    tile_scalars(a)
    rowmajor_voff(a, 64, 65)
    a('s_getreg_b32 s%d, hwreg(HW_REG_XCC_ID)' % S_XCC)
    a('s_and_b32 s%d, s%d, 15' % (S_XCC, S_XCC))
    a('s_waitcnt lgkmcnt(0)')
    make_srd(a, 12, 64, 2048 * 1280)
    a('s_and_b32 s5, s5, 0xffff')
    a('s_mov_b32 s6, %d' % WS_SIZE)
    a('s_mov_b32 s7, 0x20000')
    make_srd(a, 84, 82, 256)
    LN = a.newlabel('no_nonce')
    a('s_lshl_b32 s3, s2, 2')
    a('s_add_u32 s3, s3, s%d' % S_W)
    a('s_cmp_lg_u32 s3, 0')
    a('s_cbranch_scc1 %s' % LN)
    a('s_memrealtime s[40:41]')
    a('s_waitcnt lgkmcnt(0)')
    a('s_lshl_b32 s41, s41, 1')
    a('s_or_b32 s41, s41, 1')
    a('v_mov_b32 v94, s40')
    a('v_mov_b32 v95, s41')
    a('s_mov_b64 exec, 1')
    a('buffer_store_dwordx2 v[94:95], v%d, s[84:87], 0 offen offset:128 sc1' % VZ)
    a('s_mov_b64 exec, -1')
    a.label(LN)
    a.vm = []


def s_xorder(a, sig, first, d2, t):
    a('s_mul_i32 s%d, s%d, 205' % (t, sig))
    a('s_lshr_b32 s%d, s%d, 11' % (t, t))
    a('s_mul_i32 s%d, s%d, 10' % (first, t))
    a('s_sub_u32 s%d, s%d, s%d' % (d2, sig, first))
    a('s_mul_i32 s%d, s%d, 80' % (t, t))
    a('s_lshr_b32 s%d, s%d, 2' % (first, d2))
    a('s_lshl_b32 s%d, s%d, 4' % (first, first))
    a('s_lshl_b32 s3, s%d, 2' % d2)
    a('s_add_u32 s%d, s%d, s3' % (first, first))
    a('s_lshl_b32 s3, s%d, 3' % d2)
    a('s_cmp_lt_u32 s%d, 8' % d2)
    a('s_cselect_b32 s%d, s%d, s3' % (first, first))
    a('s_cselect_b32 s%d, 16, 4' % d2)
    a('s_add_u32 s%d, s%d, s%d' % (first, first, t))


def v_order(a, kind, sig, first, d2, t):
    if kind == 'x':
        a('v_mul_u32_u24 v%d, 205, v%d' % (t, sig))
        a('v_lshrrev_b32 v%d, 11, v%d' % (t, t))
        a('v_mul_u32_u24 v%d, 10, v%d' % (first, t))
        a('v_sub_u32 v%d, v%d, v%d' % (d2, sig, first))
        a('v_mul_u32_u24 v%d, 80, v%d' % (t, t))
        a('v_lshrrev_b32 v%d, 2, v%d' % (first, d2))
        a('v_lshlrev_b32 v%d, 4, v%d' % (first, first))
        a('v_lshl_add_u32 v%d, v%d, 2, v%d' % (first, d2, first))
        a('v_lshlrev_b32 v%d, 3, v%d' % (t + 1, d2))
        a('v_cmp_gt_u32 vcc, 8, v%d' % d2)
        a('v_cndmask_b32 v%d, v%d, v%d, vcc' % (first, t + 1, first))
        a('v_cndmask_b32 v%d, 4, 16, vcc' % d2)
        a('v_add_u32 v%d, v%d, v%d' % (first, first, t))
    elif kind == 'o':
        a('v_mul_u32_u24 v%d, 205, v%d' % (t, sig))
        a('v_lshrrev_b32 v%d, 10, v%d' % (t, t))
        a('v_mul_u32_u24 v%d, 20, v%d' % (t, t))
        a('v_lshl_add_u32 v%d, v%d, 2, v%d' % (first, sig, t))
        a('v_mov_b32 v%d, 20' % d2)
    else:
        a('v_lshrrev_b32 v%d, 2, v%d' % (t, sig))
        a('v_lshlrev_b32 v%d, 4, v%d' % (t, t))
        a('v_lshl_add_u32 v%d, v%d, 2, v%d' % (first, sig, t))
        a('v_mov_b32 v%d, 16' % d2)


G_STG = 0


def gen_prep(a):
    R0 = 96
    for s in range(5):
        a('buffer_load_dwordx2 %s, v64, s[12:15], s%d offen offset:%d' % (vr(XRES + 2 * s, 2), S_RM, 32 * s), tag='x')
    a('buffer_load_dwordx2 v[94:95], v%d, s[84:87], 0 offen offset:128 sc1' % VZ, tag='x')
    if OPT['cpf']:
        a('s_getpc_b64 s[8:9]')
        a.raw('code_ref:')
        a('s_mov_b32 s10, code_end-code_ref')
        a('s_mov_b32 s11, 0x20000')
        a('s_and_b32 s9, s9, 0xffff')
        a('v_lshlrev_b32 v96, 7, v0')
        a('s_lshl_b32 s3, s%d, 13' % S_W)
        if OPT['cpf'] == 1:
            a('s_bfe_u32 s40, s2, 0x20003')
            a('v_bfe_u32 v97, v0, 4, 2')
            a('v_mov_b32 v98, 0x%x' % OOB)
            a('v_cmp_eq_u32 vcc, s40, v97')
            a('v_cndmask_b32 v96, v98, v96, vcc')
        a('buffer_load_dword v97, v96, s[8:11], s3 offen', tag='x')
    stamp(a, 0)
    a('s_lshl_b32 s48, s%d, 8' % S_W)
    a('s_add_u32 s48, s48, s2')
    a('s_lshl_b32 s49, s%d, 13' % S_W)
    a('v_lshrrev_b32 v88, 2, v0')
    a('v_and_b32 v89, 3, v0')
    a('s_cmp_lt_u32 s48, 320')
    a('s_cselect_b32 s55, 0, %d' % OOB)
    a('s_cselect_b32 s48, s48, 0')
    a('s_mul_i32 s50, s48, 3277')
    a('s_lshr_b32 s50, s50, 16')
    a('s_mul_i32 s51, s50, 20')
    a('s_sub_u32 s51, s48, s51')
    make_srd(a, 8, 66, 640 * 3840)
    LNQ = a.newlabel('no_wq')
    a('s_cmp_lg_u32 s55, 0')
    a('s_cbranch_scc1 %s' % LNQ)
    vm0 = list(a.vm)
    a('v_and_b32 v70, 15, v0')
    a('v_lshrrev_b32 v71, 4, v0')
    a('v_mul_u32_u24 v71, 3840, v71')
    a('v_lshl_add_u32 v71, v70, 4, v71')
    a('v_mov_b32 v72, 1200')
    a('v_cmp_le_u32 vcc, 5, v70')
    a('v_cndmask_b32 v73, 0, v72, vcc')
    a('v_add_u32 v71, v71, v73')
    a('v_cmp_le_u32 vcc, 10, v70')
    a('v_cndmask_b32 v73, 0, v72, vcc')
    a('v_add_u32 v71, v71, v73')
    a('v_mov_b32 v72, 0x%x' % OOB)
    a('v_cmp_eq_u32 vcc, 15, v70')
    a('v_cndmask_b32 v71, v71, v72, vcc')
    a('s_mul_i32 s52, s50, 80')
    for g in range(4):
        a('s_lshl_b32 s40, s51, 2')
        a('s_add_u32 s40, s40, %d' % g)
        s_xorder(a, 40, 41, 42, 43)
        for half in range(2):
            if half:
                a('s_add_u32 s41, s41, s42')
            a('s_mul_i32 s53, s41, 3840')
            a('s_add_u32 m0, s49, %d' % (1024 * (half * 4 + g)))
            a('s_add_u32 s53, s53, s52')
            a('buffer_load_dwordx4 v71, s[8:11], s53 offen lds')
    a('v_lshlrev_b32 v74, 8, v88')
    a('v_add_u32 v74, s49, v74')
    a('v_lshlrev_b32 v75, 3, v89')
    for T in range(8):
        b, hf = T >> 1, T & 1
        const = sum(qkv_sg(4 * b + c, hf) << (8 * c) for c in range(4))
        a('s_mov_b32 s3, 0x%x' % const)
        a('v_bfe_u32 v%d, s3, v75, 8' % (76 + T))
        a('v_lshl_add_u32 v%d, v%d, 3, v74' % (76 + T, 76 + T))
    a('s_waitcnt vmcnt(8)')
    LX = a.newlabel('xgo')
    a('s_branch %s' % LX)
    a.label(LNQ)
    a('s_waitcnt vmcnt(0)')
    a.label(LX)
    a.vm = []
    make_srd(a, 16, 4, WS_SIZE)
    tile5_voff(a, 68, 69)
    stat_voff(a, 69, 64)
    a('s_add_u32 s36, s%d, %d' % (S_XT, XB[0]))
    a('s_add_u32 s37, s%d, %d' % (S_STT, STB[0]))
    store_tile(a, XRES, 36, 68, tag='xs')
    tile_stats(a, XRES, 64)
    a('buffer_store_dwordx2 v[64:65], v69, s[4:7], s37 offen sc1', tag='xs')
    a('v_readfirstlane_b32 s%d, v94' % S_N0)
    a('v_readfirstlane_b32 s%d, v95' % S_N1)
    LH = a.newlabel('have_nonce')
    a('s_cmp_lg_u32 s%d, 0' % S_N1)
    a('s_cbranch_scc1 %s' % LH)
    get_nonce(a)
    a.label(LH)
    a('s_lshl_b32 s38, s%d, 4' % S_TEAM)
    a('s_add_u32 s38, s38, s%d' % S_J)
    a('s_lshl_b32 s44, s38, 3')
    a('s_add_u32 s44, s44, %d' % RXF)
    a('s_lshl_b32 s45, s38, 4')
    a('s_add_u32 s45, s45, %d' % FL)
    a('s_lshl_b32 s46, s38, 3')
    a('s_add_u32 s46, s46, %d' % HF)
    a('s_cmp_eq_u32 s%d, 2' % S_W)
    a('s_cselect_b32 s44, s44, %d' % OOB)
    a('s_cselect_b32 s45, s45, %d' % OOB)
    a('s_cselect_b32 s46, s46, %d' % OOB)
    a('s_lshl_b32 s38, s38, 2')
    a('s_add_u32 s38, s38, s%d' % S_W)
    a('s_lshl_b32 s38, s38, 3')
    a('s_lshl_b32 s3, s2, 2')
    a('s_add_u32 s3, s3, s%d' % S_W)
    a('s_lshl_b32 s3, s3, 3')
    a('s_add_u32 s%d, s3, %d' % (S_PFGA, PFG))
    a('s_add_u32 s38, s38, %d' % PFX)
    LNQ2 = a.newlabel('no_wq2')
    a('s_cmp_lg_u32 s55, 0')
    a('s_cbranch_scc1 %s' % LNQ2)
    a('s_mul_i32 s54, s50, 163840')
    a('s_lshl_b32 s3, s51, 11')
    a('s_add_u32 s54, s54, s3')
    a('s_add_u32 s54, s54, %d' % WQKV_T)
    a('s_waitcnt vmcnt(4)')
    stamp(a, 5)
    for T in range(8):
        a('ds_read_b64_tr_b16 %s, v%d' % (vr(R0 + 4 * T, 2), 76 + T))
        a('ds_read_b64_tr_b16 %s, v%d offset:4096' % (vr(R0 + 2 + 4 * T, 2), 76 + T))
    a('s_mul_i32 s3, s50, 12')
    a('s_add_u32 s3, s3, s48')
    a('s_lshl_b32 s3, s3, 3')
    a('s_add_u32 s39, s3, %d' % PFQ)
    a.wait_lg_all()
    for T in range(8):
        a('s_add_u32 s53, s54, %d' % ((T >> 1) * 40960 + (T & 1) * 1024))
        a('buffer_store_dwordx4 %s, v1, s[4:7], s53 offen sc1' % vr(R0 + 4 * T, 4))
    a('s_waitcnt vmcnt(0)')
    flag64(a, 39)
    a.label(LNQ2)
    a('s_waitcnt vmcnt(1)')
    a.vm = []
    LNQ3 = a.newlabel('no_wq3')
    a('s_cmp_eq_u32 s55, 0')
    a('s_cbranch_scc1 %s' % LNQ3)
    a('s_waitcnt vmcnt(0)')
    a.label(LNQ3)
    a('s_add_u32 s47, s%d, s%d' % (S_N0, S_XCC))
    a('s_add_u32 s47, s47, 1')
    flag64(a, 38, lo=47)
    stamp(a, 1)
    a('s_mov_b64 exec, 0xf')
    a('buffer_store_dword v%d, v%d, s[4:7], s45 offen sc1' % (VZ, VL4))
    a('s_mov_b64 exec, 0x3')
    a('buffer_store_dword v%d, v%d, s[4:7], s46 offen sc1' % (VZ, VL4))
    a('s_mov_b64 exec, -1')


KG = ((45, 46), (47, 35))


def generic_addr(a):
    a('s_mul_i32 s48, s2, 5')
    a('v_bfe_u32 v70, v0, 3, 2')
    a('v_and_b32 v71, 7, v0')
    a('v_lshlrev_b32 v71, 4, v71')
    a('v_lshrrev_b32 v72, 5, v0')
    L1 = a.newlabel('pg_w1')
    L2 = a.newlabel('pg_w2')
    LD = a.newlabel('pg_go')
    a('s_cmp_ge_u32 s48, 740')
    a('s_cbranch_scc1 %s' % L2)
    a('s_cmp_ge_u32 s48, 200')
    a('s_cbranch_scc1 %s' % L1)
    for (lab, sub, src, nb, gpr, magic, pitch, dest, KS, kind) in (
            (None, 0, 68, 640 * 1280, 10, 6554, 1280, WO_T, 20, 'o'),
            (L1, 200, 72, 640 * 3456, 27, 2428, 3456, W1_T, 0, 'x'),
            (L2, 740, 76, 1728 * 1280, 10, 6554, 1280, W2_T, 54, 'h')):
        if lab:
            a.label(lab)
        if sub:
            a('s_sub_u32 s48, s48, %d' % sub)
        make_srd(a, 8, src, nb)
        a('s_mov_b32 s42, %d' % pitch)
        a('s_mov_b32 s43, %d' % dest)
        a('s_mov_b32 s44, %d' % KS)
        for uu in range(2):
            ks, G = KG[uu]
            a('s_add_u32 s3, s48, %s' % ('s%d' % S_W if uu == 0 else '4'))
            a('s_mul_i32 s%d, s3, %d' % (ks, magic))
            a('s_lshr_b32 s%d, s%d, 16' % (ks, ks))
            a('s_mul_i32 s50, s%d, %d' % (ks, gpr))
            a('s_sub_u32 s%d, s3, s50' % G)
            for gh in range(2):
                a('s_lshl_b32 s3, s%d, 2' % ks)
                a('s_add_u32 s3, s3, %d' % (2 * gh))
                a('v_add_u32 v73, s3, v72')
                idx = uu * 2 + gh
                v_order(a, kind, 73, 76 + 2 * idx, 77 + 2 * idx, 84)
        if lab != L2:
            a('s_branch %s' % LD)
    a.label(LD)
    a('s_cmp_eq_u32 s%d, 3' % S_W)
    a('s_cselect_b32 s55, 0, %d' % OOB)
    for uu in range(2):
        for i in range(4):
            idx = uu * 2 + (i & 1)
            d = 128 + uu * 4 + i
            a('v_add_u32 v%d, v%d, v70' % (d, 76 + 2 * idx))
            if i >> 1:
                a('v_add_u32 v%d, v%d, v%d' % (d, d, 77 + 2 * idx))
            a('v_mul_lo_u32 v%d, v%d, s42' % (d, d))
            a('v_add_u32 v%d, v%d, v71' % (d, d))
    a('s_lshl_b32 s49, s%d, 13' % S_W)
    a('s_add_u32 s49, s49, %d' % L_SCR)
    a('v_lshlrev_b32 v74, 7, v88')
    a('v_lshl_add_u32 v74, v89, 3, v74')
    a('v_add_u32 v74, s49, v74')


def generic_issue(a):
    for uu in range(2):
        ks, G = KG[uu]
        a('s_lshl_b32 s50, s%d, 7' % G)
        if uu:
            a('s_add_u32 s50, s50, s55')
        for i in range(4):
            a('s_add_u32 m0, s49, %d' % (4096 * uu + 1024 * i))
            a('buffer_load_dwordx4 v%d, s[8:11], s50 offen lds' % (128 + uu * 4 + i), tag='u')


def generic_finish(a):
    R0 = 96
    a.wait_vm('u')
    for uu in range(2):
        for q in range(4):
            r = R0 + 16 * uu + 4 * q
            a('ds_read_b64_tr_b16 %s, v74 offset:%d' % (vr(r, 2), 4096 * uu + 32 * q))
            a('ds_read_b64_tr_b16 %s, v74 offset:%d' % (vr(r + 2, 2), 4096 * uu + 32 * q + 2048))
    first = True
    for uu in range(2):
        ks, G = KG[uu]
        for q in range(4):
            r = R0 + 16 * uu + 4 * q
            a('s_lshl_b32 s50, s%d, 2' % G)
            a('s_add_u32 s50, s50, %d' % q)
            a('s_lshr_b32 s51, s50, 1')
            a('s_mul_i32 s51, s51, 20')
            a('s_add_u32 s51, s51, s%d' % ks)
            a('s_lshl_b32 s51, s51, 1')
            a('s_add_u32 s51, s51, %d' % (q & 1))
            a('s_mul_i32 s52, s50, 205')
            a('s_lshr_b32 s52, s52, 10')
            a('s_mul_i32 s53, s52, 5')
            a('s_sub_u32 s53, s50, s53')
            a('s_mul_i32 s52, s52, s44')
            a('s_add_u32 s52, s52, s%d' % ks)
            a('s_mul_i32 s52, s52, 5')
            a('s_add_u32 s52, s52, s53')
            a('s_cmp_eq_u32 s44, 0')
            a('s_cselect_b32 s51, s51, s52')
            a('s_lshl_b32 s51, s51, 10')
            a('s_add_u32 s51, s51, s43')
            if uu:
                a('s_add_u32 s51, s51, s55')
            if first:
                a.wait_lg_all()
                first = False
            a('buffer_store_dwordx4 %s, v1, s[4:7], s51 offen sc1' % vr(r, 4), tag='gs')


def deps_loads(a):
    a('buffer_load_dwordx2 v[64:65], v%d, s[4:7], s36 offen sc1' % VL8, tag='dp')
    a('buffer_load_dwordx2 v[66:67], v%d, s[4:7], s37 offen sc1' % VL8, tag='dp')
    a('buffer_load_dwordx2 v[68:69], v%d, s[4:7], s38 offen sc1' % VL8, tag='dp')


def gen_roles(a):
    late_consts(a)
    generic_addr(a)
    a('s_lshl_b32 s3, s%d, 2' % S_J)
    a('s_add_u32 s3, s3, s%d' % S_W)
    a('s_mul_i32 s%d, s3, 40960' % S_WQ)
    a('s_add_u32 s%d, s%d, %d' % (S_WQ, S_WQ, WQKV_T))
    a('v_lshlrev_b32 v%d, 3, v0' % VL8)
    a('s_lshl_b32 s36, s%d, 8' % S_J)
    a('s_add_u32 s36, s36, %d' % PFQ)
    a('s_lshl_b32 s37, s%d, 9' % S_TEAM)
    a('s_add_u32 s37, s37, %d' % PFX)
    a('s_and_b32 s3, s%d, 7' % S_TEAM)
    a('s_cmp_eq_u32 s3, 0')
    a('s_cselect_b32 s38, 0, 512')
    a('s_sub_u32 s38, s37, s38')
    stamp(a, 7)
    a('s_barrier')
    generic_issue(a)
    a.wait_vm('u')
    deps_loads(a)
    generic_finish(a)
    stamp(a, 2)


def first_deps(a):
    a('s_waitcnt vmcnt(8)')
    a('s_mov_b32 s52, 0')
    a('s_mov_b32 s53, 0x88888888')
    a('s_add_u32 s39, s%d, 1' % S_N0)
    a('s_mov_b32 s3, 0')
    LP = a.newlabel('dp')
    LD = a.newlabel('dpd')
    a.label(LP)
    a('v_cmp_ne_u64 vcc, s[%d:%d], v[64:65]' % (S_N0, S_N1))
    a('v_subrev_u32 v66, s39, v66')
    a('v_subrev_u32 v68, s39, v68')
    a('s_and_b64 s[50:51], vcc, 0xfffff')
    a('v_cmp_ne_u32 vcc, s%d, v67' % S_N1)
    a('s_or_b64 s[50:51], s[50:51], vcc')
    a('v_cmp_lt_u32 vcc, 15, v66')
    a('s_or_b64 s[50:51], s[50:51], vcc')
    a('v_cmp_ne_u32 vcc, s%d, v69' % S_N1)
    a('s_and_b64 vcc, vcc, s[52:53]')
    a('s_or_b64 s[50:51], s[50:51], vcc')
    a('v_cmp_lt_u32 vcc, 15, v68')
    a('s_and_b64 vcc, vcc, s[52:53]')
    a('s_or_b64 s[50:51], s[50:51], vcc')
    a('s_cmp_eq_u64 s[50:51], 0')
    a('s_cbranch_scc1 %s' % LD)
    a('s_add_u32 s3, s3, 1')
    a('s_cmp_gt_u32 s3, 100000')
    a('s_cbranch_scc1 %s' % LD)
    a('s_sleep %d' % OPT['gsleep'])
    deps_loads(a)
    a('s_waitcnt vmcnt(0)')
    a('s_branch %s' % LP)
    a.label(LD)
    a('v_cmp_ne_u32 vcc, s%d, v66' % S_XCC)
    a('s_cmp_eq_u64 vcc, 0')
    a('s_cselect_b32 s%d, %d, 0' % (S_FAST, 0 if OPT['force_slow'] else 1))
    stamp(a, 3)
    now(a, wloads(S_WQ, WQ_SL, range(10), tagp='wq'))
    a('s_waitcnt vmcnt(10)')
    flag64(a, S_PFGA, R=64)


def first_unit1(a):
    a('v_mul_u32_u24 v144, 272, v0')
    a('s_mul_i32 s3, s%d, %d' % (S_W, 32 * 272))
    a('s_add_u32 s3, s3, %d' % (L_SCR + 16 * 272 + 256))
    a('v_add_u32 v144, s3, v144')
    for q in range(4):
        a('v_mov_b32 v%d, 0' % (140 + q))
    a('s_mov_b64 exec, 0xffffffff')
    a('ds_write_b128 v144, v[140:143]')
    a('s_mov_b64 exec, -1')


def late_addr(a, part):
    n = 1280 if part == 0 else 896
    a('s_mul_i32 s36, s%d, %d' % (S_W, n))
    a('s_add_u32 s36, s36, %d' % (PFG + (0 if part == 0 else 4608)))
    a('s_cmp_eq_u32 s%d, 0' % S_PASS)
    a('s_cselect_b32 s36, s36, %d' % OOB)


def late_loads(a, part, R, tag=None):
    a('buffer_load_dwordx4 %s, v1, s[4:7], s36 offen sc1' % vr(R, 4), tag=tag)
    if part == 0:
        a('buffer_load_dwordx4 %s, v1, s[4:7], s36 offen offset:256 sc1' % vr(R + 4, 4), tag=tag)


def late_issue(a, part, R):
    late_addr(a, part)
    late_loads(a, part, R, 'ls')


def late_sync(a, part, R):
    a('s_mov_b32 s3, 0')
    LP = a.newlabel('ls')
    LD = a.newlabel('lsd')
    a.label(LP)
    a('s_mov_b64 s[50:51], 0')
    for q in range(4 if part == 0 else 2):
        a('v_cmp_ne_u64 vcc, s[%d:%d], %s' % (S_N0, S_N1, vr(R + 2 * q, 2)))
        a('s_or_b64 s[50:51], s[50:51], vcc')
    if part == 1:
        a('s_and_b32 s51, s51, 0xffffff')
    a('s_cmp_eq_u64 s[50:51], 0')
    a('s_cbranch_scc1 %s' % LD)
    a('s_add_u32 s3, s3, 1')
    a('s_cmp_gt_u32 s3, 100000')
    a('s_cbranch_scc1 %s' % LD)
    a('s_sleep 4')
    late_loads(a, part, R)
    a('s_waitcnt vmcnt(0)')
    a('s_branch %s' % LP)
    a.label(LD)


def wloads(base_sgpr, slots, frags, srd='s[4:7]', tagp='w', special=None):
    gs = wloads0(base_sgpr, slots, frags, srd, tagp, special)
    bit = {'wq': 1, 'wo': 2, 'w1': 4, 'w2': 8}[tagp]
    if OPT['wnt'] & bit:
        for g in gs:
            g[-1] = ('i', g[-1][1] + ' nt', g[-1][2])
    return gs


def wloads0(base_sgpr, slots, frags, srd='s[4:7]', tagp='w', special=None):
    groups = []
    cur = None
    for f in frags:
        g = []
        if special and f in special:
            sreg, off = special[f]
            g.append(('i', 'buffer_load_dwordx4 %s, v1, %s, s%d offen offset:%d' % (slot_reg(slots[f]), srd, sreg, off), tagp))
            groups.append(g)
            continue
        blk = f // 4
        if blk != cur:
            g.append(('i', 's_add_u32 s%d, s%d, %d' % (S_PF, base_sgpr, blk * 4096), None))
            cur = blk
        g.append(('i', 'buffer_load_dwordx4 %s, v1, %s, s%d offen offset:%d' % (slot_reg(slots[f]), srd, S_PF, (f % 4) * 1024), tagp))
        groups.append(g)
    return groups


def w2loads(frags):
    sp = {65 + q: (S_W2X, q * 1024) for q in range(4)}
    groups = wloads(S_W2, W2_SL, [f for f in frags if f != 69], tagp='w2', special=sp)
    if 69 in frags:
        groups.append([('i', 's_add_u32 s%d, s%d, 4096' % (S_PF, S_W2X), None),
                       ('i', 'buffer_load_dwordx4 %s, v1, s[4:7], s%d offen' % (slot_reg(W2_SL[69]), S_PF), 'w2')])
    return groups


def now(a, gs):
    for g in gs:
        for it in g:
            a.emit_item(it)


def gen_setup(a):
    a('s_lshl_b32 s40, s%d, 2' % S_J)
    a('s_add_u32 s40, s40, s%d' % S_W)
    make_srd(a, 12, 80, 2048 * 1280)
    a('s_min_u32 s%d, s40, 53' % S_BLK)
    a('s_mul_i32 s%d, s%d, 40960' % (S_W1, S_BLK))
    a('s_add_u32 s%d, s%d, %d' % (S_W1, S_W1, W1_T))
    a('s_mul_i32 s41, s%d, 20' % S_CG)
    a('s_mul_i32 s3, s%d, 5' % S_W)
    a('s_add_u32 s41, s41, s3')
    a('s_mul_i32 s41, s41, 5120')
    a('s_add_u32 s%d, s41, %d' % (S_WO, WO_T))
    a('s_mul_i32 s%d, s%d, 14' % (S_KS0, S_W))
    a('s_cmp_eq_u32 s%d, 3' % S_W)
    a('s_cselect_b32 s3, 1, 0')
    a('s_sub_u32 s%d, s%d, s3' % (S_KS0, S_KS0))
    a('s_mul_i32 s41, s%d, 54' % S_CG)
    a('s_add_u32 s41, s41, s%d' % S_KS0)
    a('s_mul_i32 s41, s41, 5120')
    a('s_add_u32 s%d, s41, %d' % (S_W2, W2_T))
    a('s_add_u32 s41, s%d, %d' % (S_W2, 65 * 1024))
    a('s_cmp_ge_u32 s%d, 2' % S_W)
    a('s_cselect_b32 s%d, %d, s41' % (S_W2X, OOB))
    a('s_lshl_b32 s%d, s%d, 8' % (S_TFL, S_TEAM))
    a('s_add_u32 s%d, s%d, %d' % (S_TFL, S_TFL, FL))
    a('s_lshl_b32 s3, s40, 2')
    a('s_add_u32 s%d, s%d, s3' % (S_FLAG, S_TFL))
    a('s_mov_b32 s%d, 0' % S_PH)
    a('s_mov_b32 s%d, 0' % S_XOFF)
    a('s_and_b32 s3, s%d, 7' % S_TEAM)
    a('s_cmp_eq_u32 s3, 0')
    a('s_cselect_b32 s41, 0, 1')
    a('s_sub_u32 s41, s%d, s41' % S_TEAM)
    a('s_lshl_b32 s41, s41, 3')
    a('s_add_u32 s41, s41, 7')
    a('s_mul_i32 s%d, s41, 20480' % S_HSRC)
    a('s_add_u32 s%d, s%d, %d' % (S_HSRC, S_HSRC, XB[0]))
    a('s_lshl_b32 s%d, s41, 10' % S_HSTS)
    a('s_add_u32 s%d, s%d, %d' % (S_HSTS, S_HSTS, STB[0]))
    a('v_and_b32 v70, 15, v0')
    a('v_lshrrev_b32 v71, 4, v0')
    a('v_lshlrev_b32 v71, 2, v71')
    a('v_sub_u32 v71, v71, v70')
    a('v_mov_b32 v72, 0x%x' % f32bits(-1e30))
    a('v_mov_b32 v73, 0xffff')
    a('v_mov_b32 v74, 0xffff0000')
    a('s_and_b32 s3, s%d, 7' % S_TEAM)
    a('s_or_b32 s3, s3, s%d' % S_W)
    a('s_cmp_lg_u32 s3, 0')
    a('s_cselect_b64 s[42:43], -1, 0')
    for e in range(4):
        a('v_add_u32 v75, %d, v71' % (e + 7))
        a('v_cmp_ge_u32 vcc, 7, v75')
        a('v_cndmask_b32 v%d, v72, 0, vcc' % (BIASC + e))
        a('v_cndmask_b32 v76, 0, v%d, vcc' % (73 + (e & 1)))
        if e & 1:
            a('v_or_b32 v%d, v%d, v76' % (MASKC + (e >> 1), MASKC + (e >> 1)))
        else:
            a('v_mov_b32 v%d, v76' % (MASKC + (e >> 1)))
        a('v_cmp_le_i32 vcc, 16, v75')
        a('v_cndmask_b32 v%d, v72, 0, vcc' % (BIASP + e))
        a('v_cndmask_b32 v76, 0, v%d, vcc' % (73 + (e & 1)))
        if e & 1:
            a('v_or_b32 v%d, v%d, v76' % (MASKP + (e >> 1), MASKP + (e >> 1)))
        else:
            a('v_mov_b32 v%d, v76' % (MASKP + (e >> 1)))
        a('v_cndmask_b32 v%d, v72, v%d, s[42:43]' % (BIASP0 + e, BIASP + e))


def late_consts(a):
    a('v_lshrrev_b32 v162, 4, v0')
    a('v_lshlrev_b32 v162, 3, v162')
    make_srd(a, 8, 74, 1728 * 2)
    a('s_lshl_b32 s3, s%d, 6' % S_BLK)
    a('buffer_load_dwordx2 %s, v162, s[8:11], s3 offen' % vr(B1R, 2))
    a('buffer_load_dwordx2 %s, v162, s[8:11], s3 offen offset:32' % vr(B1R + 2, 2))
    make_srd(a, 8, 78, 640 * 2)
    for s in range(5):
        a('buffer_load_dwordx2 %s, v162, s[8:11], s%d offen offset:%d' % (vr(B2R + 2 * s, 2), S_COL, 32 * s))


AQ0, AQ1, AK, AV1, AV2, AO2 = 152, 153, 154, 155, 156, 157
C_SCALE = (20 ** -0.5) * math.log2(math.e)


def attn_addr(a, T):
    a('s_mul_i32 s47, s%d, %d' % (S_W, TP))
    a('s_add_u32 s47, s47, %d' % L_SCR)
    a('v_and_b32 v%d, 15, v0' % T)
    a('v_mul_u32_u24 v%d, 272, v%d' % (T, T))
    a('v_add_u32 v%d, s47, v%d' % (T, T))
    a('v_lshrrev_b32 v%d, 4, v0' % (T + 1))
    a('v_lshlrev_b32 v%d, 3, v%d' % (T + 1, T + 1))
    for reg, tab in ((AQ0, (0, 1, 4, 16)), (AQ1, (2, 3, 15, 16)), (AK, (5, 6, 9, 9))):
        c = sum(t << (8 * i) for i, t in enumerate(tab))
        a('s_mov_b32 s3, 0x%x' % c)
        a('v_bfe_u32 v%d, s3, v%d, 8' % (reg, T + 1))
        a('v_lshl_add_u32 v%d, v%d, 4, v%d' % (reg, reg, T))
    a('v_lshrrev_b32 v%d, 2, v0' % AV2)
    a('v_mul_u32_u24 v%d, 272, v%d' % (AV2, AV2))
    a('v_add_u32 v%d, s47, v%d' % (AV2, AV2))
    a('v_and_b32 v%d, 3, v0' % T)
    a('v_lshl_add_u32 v%d, v%d, 3, v%d' % (AV1, T, AV2))
    a('v_mov_b32 v%d, 0x%x' % (T, OOB))
    a('v_cmp_gt_u32 vcc, 16, v0')
    a('v_cndmask_b32 v%d, v%d, v1, vcc' % (AO2, T))
    a('s_lshl_b32 s47, s%d, 3' % S_TEAM)
    a('s_add_u32 s47, s47, s%d' % S_W)
    a('s_mul_i32 s47, s47, 20480')
    a('s_mul_i32 s3, s%d, 1280' % S_J)
    a('s_add_u32 s47, s47, s3')
    a('s_mul_i32 s3, s%d, %d' % (S_PASS, XSZ))
    a('s_add_u32 s47, s47, s3')
    a('s_add_u32 s47, s47, %d' % OB[0])
    a('s_mov_b32 s48, 0x%x' % f32bits(C_SCALE))


def attn_units(r, units, OUTS):
    for (b, h, Q, K, S) in units:
        off = b * 4 * TP
        tg = 'q%d%d' % (b, h)
        r('ds_read_b128 %s, v%d offset:%d' % (vr(Q, 4), AQ1 if h else AQ0, off + TP), tag=tg)
        r('ds_read_b128 %s, v%d offset:%d' % (vr(K, 4), AK, off + 80 * h), tag=tg)
        r('ds_read_b128 %s, v%d offset:%d' % (vr(K + 4, 4), AK, off + 80 * h + TP), tag=tg)
    for (b, h, Q, K, S) in units:
        off = b * 4 * TP
        r.wait_lg('q%d%d' % (b, h))
        r('v_mfma_f32_16x16x32_bf16 %s, %s, %s, %s' % (vr(S, 4), vr(K, 4), vr(Q, 4), vr(BIASP0 if b == 0 else BIASP, 4)))
        r('v_mfma_f32_16x16x32_bf16 %s, %s, %s, %s' % (vr(S + 4, 4), vr(K + 4, 4), vr(Q, 4), vr(BIASC, 4)))
    for (b, h, Q, K, S) in units:
        off = b * 4 * TP
        for i in range(2):
            r('ds_read_b64_tr_b16 %s, v%d offset:%d' % (vr(K + 2 * i, 2), AV1, off + i * TP + 112 + 80 * h), tag='v%d%d' % (b, h))
            r('ds_read_b64_tr_b16 %s, v%d offset:%d' % (vr(K + 4 + 2 * i, 2), AV2, off + i * TP + 152 + 80 * h), tag='v%d%d' % (b, h))

    def each(fn):
        for (b, h, Q, K, S) in units:
            fn(Q, S)
    for e in range(4):
        each(lambda Q, S: r('v_max_f32 v%d, v%d, v%d' % (S + e, S + e, S + 4 + e)))
    each(lambda Q, S: r('v_max3_f32 v%d, v%d, v%d, v%d' % (S + 4, S, S + 1, S + 2)))
    each(lambda Q, S: r('v_max_f32 v%d, v%d, v%d' % (S + 4, S + 4, S + 3)))
    for sw in ('v_permlane16_swap_b32', 'v_permlane32_swap_b32'):
        each(lambda Q, S: r('v_mov_b32 v%d, v%d' % (S + 5, S + 4)))
        each(lambda Q, S: r('%s v%d, v%d' % (sw, S + 4, S + 5)))
        each(lambda Q, S: r('v_max_f32 v%d, v%d, v%d' % (S + 4, S + 4, S + 5)))
    each(lambda Q, S: r('v_mul_f32 v%d, s48, v%d' % (S + 4, S + 4)))
    for e in range(4):
        each(lambda Q, S: r('v_fma_f32 v%d, v%d, s48, -v%d' % (S + e, S + e, S + 4)))
    for e in range(4):
        each(lambda Q, S: r('v_exp_f32 v%d, v%d' % (S + e, S + e)))
    each(lambda Q, S: r('v_pk_add_f32 %s, %s, %s' % (vr(S + 4, 2), vr(S, 2), vr(S + 2, 2))))
    each(lambda Q, S: r('v_add_f32 v%d, v%d, v%d' % (S + 4, S + 4, S + 5)))
    for sw in ('v_permlane16_swap_b32', 'v_permlane32_swap_b32'):
        each(lambda Q, S: r('v_mov_b32 v%d, v%d' % (S + 5, S + 4)))
        each(lambda Q, S: r('%s v%d, v%d' % (sw, S + 4, S + 5)))
        each(lambda Q, S: r('v_add_f32 v%d, v%d, v%d' % (S + 4, S + 4, S + 5)))
    each(lambda Q, S: r('v_rcp_f32 v%d, v%d' % (S + 4, S + 4)))
    for q in range(2):
        each(lambda Q, S: r('v_pk_mul_f32 %s, %s, %s op_sel_hi:[1,0]' % (vr(S + 2 * q, 2), vr(S + 2 * q, 2), vr(S + 4, 2))))
    for q in range(2):
        each(lambda Q, S: r('v_cvt_pk_bf16_f32 v%d, v%d, v%d' % (S + 4 + q, S + 2 * q, S + 2 * q + 1)))
    for q, (m, x) in enumerate(((MASKP, 0), (MASKP + 1, 1), (MASKC, 0), (MASKC + 1, 1))):
        each(lambda Q, S: r('v_and_b32 v%d, v%d, v%d' % (Q + q, S + 4 + x, m)))
    for (b, h, Q, K, S) in units:
        r.wait_lg('v%d%d' % (b, h))
        r('v_mfma_f32_16x16x32_bf16 %s, %s, %s, 0' % (vr(S, 4), vr(K, 4), vr(Q, 4)))
        r('v_mfma_f32_16x16x32_bf16 %s, %s, %s, 0' % (vr(S + 4, 4), vr(K + 4, 4), vr(Q, 4)))
    for b in range(2):
        r('s_add_u32 s%d, s47, %d' % (S_QA - b, b * 4 * 20480))
    for bb in range(2):
        OUT = OUTS[bb]
        for (b, h, Q, K, S) in units:
            if b != bb:
                continue
            for t in range(2):
                for q in range(2):
                    r('v_cvt_pk_bf16_f32 v%d, v%d, v%d' % (OUT + 4 * t + 2 * h + q, S + 4 * t + 2 * q, S + 4 * t + 2 * q + 1))
        r('buffer_store_dwordx4 %s, v1, s[4:7], s%d offen sc1' % (vr(OUT, 4), S_QA - bb), tag='pub')
        r('buffer_store_dwordx4 %s, v%d, s[4:7], s%d offen offset:1024 sc1' % (vr(OUT + 4, 4), AO2, S_QA - bb), tag='pub')


P3_PENDING_W2 = []


def gen_nsplit(a, which):
    p1 = which == 1
    WSL = WQ_SL if p1 else W1_SL
    wtag = 'wq' if p1 else 'w1'
    CS = CS1 if p1 else CS3
    G = OPT['g1'] if p1 else OPT['g3']
    NSET = G + 1
    ACC0 = 64
    FR = 104
    STP = 136
    PK = 140
    VB = 148
    VSW, VSR = 150, 151
    VSTW = 158
    SRL = list(range(96, 104)) + list(range(140, 148))
    T0 = FR
    st_i = 10 if p1 else 30
    NT = 9 if p1 else 8
    xin = XB[0] if p1 else XB[1]
    stin = STB[0] if p1 else STB[1]
    LEAD = 3
    KC = 20 // G
    if p1:
        late = list(range(17 + OPT['burst4'], 40))
    else:
        late = []
        a.flush_m(pred=lambda g: g[-1][2] == wtag)

    def accset(T):
        return ACC0 + 8 * (T % NSET)

    a('s_mul_i32 s44, s%d, 5120' % S_W)
    a('s_mul_i32 s45, s%d, 163840' % S_TEAM)
    a('s_add_u32 s45, s45, s%d' % S_XOFF)
    per = 4 // G
    a('s_lshr_b32 s50, s%d, %d' % (S_W, {1: 2, 2: 1, 4: 0}[G]))
    a('s_and_b32 s51, s%d, %d' % (S_W, per - 1))
    a('s_mul_i32 s51, s51, 5120')
    a('s_mul_i32 s46, s50, 20480')
    a('s_add_u32 s46, s46, s45')
    a('s_add_u32 s46, s46, %d' % (xin - (20480 if p1 else 0)))
    if p1:
        a('s_cmp_eq_u32 s50, 0')
        a('s_cselect_b32 s46, s%d, s46' % S_HSRC)
    a('s_add_u32 s46, s46, s51')
    a('s_add_u32 s45, s45, s44')
    if p1:
        attn_addr(a, T0)
    a('v_lshrrev_b32 v%d, 4, v0' % T0)
    a('s_lshl_b32 s3, s%d, 2' % S_W)
    a('v_add_u32 v%d, s3, v%d' % (T0, T0))
    a('v_and_b32 v%d, 15, v0' % (T0 + 1))
    a('v_lshlrev_b32 v%d, 3, v%d' % (VSR, T0 + 1))
    a('v_lshl_add_u32 v%d, v%d, 10, v%d' % (T0 + 3, T0, VSR))
    a('v_add_u32 v%d, %d, v%d' % (VSR, L_STAT, VSR))
    a('v_min_u32 v%d, 11, v%d' % (VSTW, T0))
    a('v_lshl_add_u32 v%d, v%d, 7, v%d' % (VSTW, VSTW, VSR))
    a('s_lshl_b32 s40, s%d, 13' % S_TEAM)
    a('s_lshl_b32 s3, s%d, 18' % S_PASS)
    a('s_add_u32 s40, s40, s3')
    a('s_add_u32 s40, s40, %d' % (stin - (1024 if p1 else 0)))
    a('v_mov_b32 v%d, s40' % (T0 + 4))
    if p1:
        a('v_mov_b32 v%d, s%d' % (T0 + 5, S_HSTS))
        a('v_cmp_eq_u32 vcc, 0, v%d' % T0)
        a('v_cndmask_b32 v%d, v%d, v%d, vcc' % (T0 + 4, T0 + 4, T0 + 5))
    a('v_mov_b32 v%d, 0x%x' % (T0 + 5, OOB))
    a('v_cmp_gt_u32 vcc, %d, v%d' % (NT, T0))
    a('v_cndmask_b32 v%d, v%d, v%d, vcc' % (T0 + 4, T0 + 5, T0 + 4))
    a('v_add_u32 v%d, v%d, v%d' % (T0 + 3, T0 + 3, T0 + 4))
    a('v_mov_b32 v%d, v1' % VB)
    a('v_add_u32 v%d, %d, v1' % (VB + 1, 3 * SLOT))
    if p1:
        a('v_mul_u32_u24 v%d, 272, v%d' % (VSW, T0 + 1))
        a('v_lshl_add_u32 v%d, v%d, 4, v%d' % (VSW, T0, VSW))
        a('v_add_u32 v%d, %d, v%d' % (VSW, L_SCR, VSW))
    else:
        a('s_lshl_b32 s41, s%d, 3' % S_TEAM)
        a('s_mul_i32 s41, s41, 54')
        a('s_add_u32 s41, s41, s%d' % S_BLK)
        a('s_lshl_b32 s41, s41, 10')
        a('s_mul_i32 s3, s%d, %d' % (S_PASS, HSZ))
        a('s_add_u32 s41, s41, s3')
        a('s_add_u32 s41, s41, %d' % HB[0])
    a('s_mov_b32 s42, 0x%x' % f32bits(-1.0 / 640.0))
    a('s_mov_b32 s43, 0x%x' % f32bits(1e-5))

    def colsum():
        for q in range(4):
            a('v_mov_b32 v%d, 0x%x' % (STP + q, ONES))
        if not p1:
            for q in (3, 2, 1, 0):
                a('v_and_b32 v%d, 0xffff0000, v%d' % (B1R + 1 + 2 * q, B1R + q))
                a('v_lshlrev_b32 v%d, 16, v%d' % (B1R + 2 * q, B1R + q))
            a.wait_vm(wtag)
        for ks in range(20):
            for t in range(2):
                d = vr(PK + 4 * t, 4)
                a('v_mfma_f32_16x16x32_bf16 %s, %s, %s, %s' % (d, slot_reg(WSL[ks * 2 + t]), vr(STP, 4), '0' if ks == 0 else d))
        for q in range(8):
            a('v_mov_b32 v%d, v%d' % (CS + q, PK + q))

    def pass0(fn):
        L = a.newlabel('p0')
        a('s_cmp_lg_u32 s%d, 0' % S_PASS)
        a('s_cbranch_scc1 %s' % L)
        vm0 = list(a.vm)
        fn()
        a.label(L)
        a.vm = vm0

    if p1:
        LS = a.newlabel('p1_nowait')
        a('s_cmp_eq_u32 s%d, 0' % S_PASS)
        a('s_cbranch_scc1 %s' % LS)
        poll(a, S_TFL, 's%d' % S_PH)
        LH = a.newlabel('p1_nohalo')
        a('s_and_b32 s49, s%d, 7' % S_TEAM)
        a('s_cmp_eq_u32 s49, 0')
        a('s_cbranch_scc1 %s' % LH)
        a('s_lshl_b32 s49, s%d, 7' % S_TEAM)
        a('s_add_u32 s49, s49, %d' % (HF - 128))
        poll(a, 49, '1', lanes=0xff)
        a.label(LH)
        LG = a.newlabel('p1_go')
        a('s_branch %s' % LG)
        a.label(LS)
        first_deps(a)
        a.label(LG)
        a.vm = []
    else:
        pass0(colsum)
        poll(a, S_TFL, 's%d' % S_PH)
    stamp(a, st_i)
    LSKIP = None
    if not p1:
        LSKIP = a.newlabel('p3_skip')
        a('s_cmp_ge_u32 s%d, 14' % S_J)
        a('s_cbranch_scc1 %s' % LSKIP)

    def unit_dma(u):
        gs = []
        if u < G:
            sb, go = 46, u * KC * 1024
        else:
            sb, go = 45, xin + (u - 1 if p1 else u) * SLOT
        for i in range(5):
            g = []
            if i % 4 == 0:
                g.append(('i', 's_add_u32 m0, s44, %d' % ((u % NSLOT) * SLOT + i * 1024), None))
                g.append(('i', 's_add_u32 s%d, s%d, %d' % (S_DMA, sb, go + i * 1024), None))
            g.append(('i', 'buffer_load_dwordx4 v1, s[4:7], s%d offen offset:%d%s lds' % (S_DMA, (i % 4) * 1024, LDM()), 'd%d' % u))
            gs.append(g)
        return gs

    seq = []
    for u in range(NT):
        if u < G:
            for kk in range(KC):
                for tl in range(G):
                    seq.append((u, tl, u * KC + kk, tl * KC + kk))
        else:
            for ks in range(20):
                seq.append((u, u, ks, ks))

    lateg = {}
    for g, f in zip(wloads(S_WQ, WQ_SL, late, tagp='wq'), late):
        c = min((f // 2) // KC, G - 1)
        g[-1] = ('i', g[-1][1], 'wq%d' % c)
        lateg.setdefault(c, []).append(g)

    now(a, lateg.get(0, []))
    now(a, unit_dma(0))
    stl = [[('i', 'buffer_load_dwordx2 %s, v%d, s[4:7], 0 offen offset:%d%s' % (vr(SRL[2 * q], 2), 159, 128 * q, LDM()), 'dst')] for q in range(8)]
    a('v_mov_b32 v159, v%d' % (T0 + 3))
    inl = (not p1) and OPT['st3'] and G >= 2
    if not inl:
        now(a, stl)
    now(a, unit_dma(1))
    if p1:
        pass0(lambda: now(a, wloads(S_WQ, WQ_SL, range(10, 17 + OPT['burst4']), tagp='wq')))
        a('s_mov_b32 s3, 0x%x' % OOB)
        a('buffer_load_dword v163, v%d, s[4:7], s3 offen' % VZ, tag='wqE')
    r = Rec()
    r.wait_vm('dst')
    for lvl in (8, 4, 2):
        for q in range(lvl):
            r('v_add_f32 v%d, v%d, v%d' % (SRL[q], SRL[q], SRL[lvl + q]))
    S0, S1 = SRL[0], SRL[1]
    r('v_mul_f32 v%d, s42, v%d' % (S0, S0))
    r('v_mul_f32 v%d, s42, v%d' % (S1, S1))
    r('v_fma_f32 v%d, v%d, v%d, v%d' % (S1, S0, S0, S1))
    r('v_min_f32 v%d, 0, v%d' % (S1, S1))
    r('v_sub_f32 v%d, s43, v%d' % (S1, S1))
    r('v_rsq_f32 v%d, v%d' % (S1, S1))
    r('ds_write_b64 v%d, %s' % (VSTW, vr(S0, 2)), tag='stw')
    stats_items = r.items
    a.wait_vm('d0')
    a.wait_lg_all()
    a('s_barrier')
    stamp(a, st_i + 1)
    held = []
    if p1:
        held = wloads(S_WO, WO_SL, range(25), tagp='wo') + wloads(S_W1, W1_SL, range(22), tagp='w1')
    a.qm = (stl if inl else []) + lateg.get(1, []) + unit_dma(2) + lateg.get(2, []) + unit_dma(3) + lateg.get(3, []) + a.qm

    NF = NT * 20
    DEPTH = 6

    def rd(n):
        u, tl, ks, blk = seq[n]
        sl = u % NSLOT
        return ('i', 'ds_read_b128 %s, v%d offset:%d' % (vr(FR + 4 * (n % 8), 4), VB + sl // 3, (sl % 3) * SLOT + blk * 1024), 'f%d' % n)

    def epilogue(r, T, pk):
        b = accset(T)
        sp = STP + 2 * (T & 1)
        P = PK + 4 * (T & 1)
        if not p1:
            r('s_add_u32 s%d, s41, %d' % (S_QV, T * 55296))
        r.wait_lg('sp%d' % T)
        if pk:
            for q in range(4):
                r('v_pk_fma_f32 %s, %s, %s, %s op_sel_hi:[0,1,1]' % (vr(b + 2 * q, 2), vr(sp, 2), vr(CS + 2 * q, 2), vr(b + 2 * q, 2)))
            if p1:
                for q in range(4):
                    r('v_pk_mul_f32 %s, %s, %s op_sel:[1,0]' % (vr(b + 2 * q, 2), vr(sp, 2), vr(b + 2 * q, 2)))
            else:
                for q in range(4):
                    r('v_pk_fma_f32 %s, %s, %s, %s op_sel:[1,0,0]' % (vr(b + 2 * q, 2), vr(sp, 2), vr(b + 2 * q, 2), vr(B1R + 2 * q, 2)))
                for e in range(8):
                    r('v_max_f32 v%d, 0, v%d' % (b + e, b + e))
                for q in range(4):
                    r('v_pk_mul_f32 %s, %s, %s' % (vr(b + 2 * q, 2), vr(b + 2 * q, 2), vr(b + 2 * q, 2)))
        else:
            for e in range(8):
                r('v_fmac_f32 v%d, v%d, v%d' % (b + e, sp, CS + e))
            if p1:
                for e in range(8):
                    r('v_mul_f32 v%d, v%d, v%d' % (b + e, b + e, sp + 1))
            else:
                for e in range(8):
                    r('v_fma_f32 v%d, v%d, v%d, v%d' % (b + e, b + e, sp + 1, B1R + e))
                for e in range(8):
                    r('v_max_f32 v%d, 0, v%d' % (b + e, b + e))
                for e in range(8):
                    r('v_mul_f32 v%d, v%d, v%d' % (b + e, b + e, b + e))
        if T + 2 < NT:
            r.items.append(sp_read(T + 2))
        for q in range(4):
            r('v_cvt_pk_bf16_f32 v%d, v%d, v%d' % (P + q, b + 2 * q, b + 2 * q + 1))
        if p1:
            r('ds_write_b128 v%d, %s offset:%d' % (VSW, vr(P, 4), T * TP), tag='sw')
        else:
            r('buffer_store_dwordx4 %s, v1, s[4:7], s%d offen sc1' % (vr(P, 4), S_QV), tag='pub')
        r.items.append(('mark', T, None))

    def sp_read(T):
        return ('i', 'ds_read_b64 %s, v%d offset:%d' % (vr(STP + 2 * (T & 1), 2), VSR, T * 128), 'sp%d' % T)

    def flush_until(T):
        while any(it[0] == 'mark' and it[1] == T for it in a.qv):
            a.emit_item(a.qv.pop(0))

    if OPT['tstamp'] // 10 == which:
        a('s_memtime s[64:65]')
    for n in range(DEPTH):
        a.emit_item(rd(n))
    a.wait_lg('f1')
    nread = DEPTH
    quiet = OPT['quiet1'] if p1 else OPT['quiet3']
    a.pace = OPT['pace']
    edone = 0
    for n in range(NF):
        u, T, ks, blk = seq[n]
        pos = n % 20
        acc = accset(T)
        if pos == 0:
            if u >= NSET:
                flush_until(u - NSET)
            if u < G and u >= 1:
                a.flush_m(pred=lambda g: g[-1][2] == 'wq%d' % u)
                a.wait_vm('wq%d' % u)
            if p1 and u == 1:
                a.wait_vm('wqE')
                lg0 = list(a.lg)
                pass0(lambda: first_unit1(a))
                a.lg = lg0
            if p1 and u == OPT['lsu']:
                a.wait_vm('ls')
                pass0(lambda: late_sync(a, 0, 96))
            if u == G:
                if p1:
                    pass0(colsum)
                a.emit_item(sp_read(0))
                a.emit_item(sp_read(1))
        if p1 and n == OPT['lsu'] * 20 - 12:
            late_issue(a, 0, 96)
        if p1 and n == 8 * 20 - 30:
            late_issue(a, 1, 160)
        if p1 and n == 8 * 20 - 8:
            a.wait_vm('ls')
            pass0(lambda: late_sync(a, 1, 160))
        a.quiet = (NF - n) * 2 <= quiet
        for t in range(2):
            fg = []
            wait = None
            d = vr(acc + 4 * t, 4)
            if t == 0 and nread < NF:
                if nread % 20 == 0:
                    Tn = nread // 20
                    if Tn == (2 if inl else 1):
                        a.flush_v()
                        a.wait_lg('stw')
                    a.flush_m(pred=lambda g: g[-1][2] == 'd%d' % Tn)
                    a.wait_vm('d%d' % Tn)
                    a('s_barrier')
                    if OPT['tstamp'] == which * 10 + 3:
                        a('s_memtime s[%d:%d]' % (64 + 2 * Tn, 65 + 2 * Tn))
                    if p1 and Tn == OPT['lsu'] + 1:
                        a.qm += held
                    if Tn + LEAD < NT:
                        ps = max([i + 1 for i, g in enumerate(a.qm) if g[-1][2].startswith('d') or g[-1][2][:2] == 'wq'] + [0])
                        a.qm[ps:ps] = unit_dma(Tn + LEAD)
                fg.append(rd(nread))
                nread += 1
            if t == 1 and (n & 1) == 1 and n + 1 < NF:
                wait = ('wl', 'f%d' % min(n + 2, NF - 1), None)
            a.mfma('v_mfma_f32_16x16x32_bf16 %s, %s, %s, %s' % (d, slot_reg(WSL[ks * 2 + t]), vr(FR + 4 * (n % 8), 4), '0' if ks == 0 else d), fg, wait)
        if (n == 22 and inl) or (n == 1 and not inl):
            a.flush_m(pred=lambda g: g[-1][2] == 'dst')
            a.qv += stats_items
        if pos == 3 and u >= G:
            while edone < u:
                r = Rec()
                epilogue(r, edone, False)
                a.qv += r.items
                edone += 1
    a.quiet = False
    a.flush_v()
    if OPT['tstamp'] // 10 == which:
        a('s_memtime s[82:83]')
        a('s_waitcnt lgkmcnt(0)')
        a.lg = []
        a('s_lshl_b32 s99, s2, 2')
        a('s_add_u32 s99, s99, s%d' % S_W)
        a('s_lshl_b32 s99, s99, 9')
        a('s_lshl_b32 s98, s%d, 8' % S_PASS)
        a('s_add_u32 s99, s99, s98')
        a('s_add_u32 s99, s99, %d' % STAMP_BASE)
        a('s_mov_b64 exec, 1')
        for q in range(10):
            a('v_mov_b32 v163, s%d' % (64 + 2 * q))
            a('buffer_store_dword v163, v%d, s[4:7], s99 offen offset:%d' % (VZ, 4 * q), tag='stamp')
        a('s_mov_b64 exec, -1')
    stamp(a, st_i + 2)
    if p1:
        a.qm += wloads(S_W1, W1_SL, range(22, 40), tagp='w1') + w2loads(range(22))
    else:
        a.qm += w2loads(range(47, 70)) + wloads(S_WQ, WQ_SL, range(17), srd='s[16:19]', tagp='wq')
    if p1:
        a.flush_m(OPT['tail1'])
    r = Rec()
    epilogue(r, NT - 1, True)
    a.run(r, every=0)
    if p1:
        a.wait_lg_all()
        a('s_barrier')
        stamp(a, st_i + 3)
        r = Rec()
        attn_units(r, [(0, 0, 64, 68, 76), (0, 1, 84, 88, 96), (1, 0, 104, 108, 116), (1, 1, 124, 128, 136)], (64, 104))
        half = len(r.items) // 2
        r2 = Rec()
        r2.items = r.items[half:]
        r.items = r.items[:half]
        a.run(r, every=OPT['aevery'])
        a.run(r2, every=0)
        stamp(a, st_i + 4)
        publish(a)
        a.flush_m(OPT['burst1'])
    else:
        LJ = a.newlabel('p3_join')
        stamp(a, st_i + 4)
        publish(a)
        a.flush_m(pred=lambda g: g[-1][2] == 'w2')
        a('s_branch %s' % LJ)
        vm_main = list(a.vm)
        a.label(LSKIP)
        a.vm = []
        publish(a)
        now(a, w2loads(P3_PENDING_W2 + list(range(47, 70))))
        a.label(LJ)
        a.vm = vm_main
    stamp(a, st_i + 5)


def gen_ksplit(a, which):
    p2 = which == 2
    NK = 5 if p2 else 14
    KS = 20 if p2 else 54
    WSL = WO_SL if p2 else W2_SL
    wtag = 'wo' if p2 else 'w2'
    ACC = [64, 84]
    RING = 104
    NR = 14
    VW = 160
    VRD = 161
    st_i = 20 if p2 else 40
    a.flush_m(pred=lambda g: g[-1][2] == wtag)
    a('s_lshl_b32 s40, s%d, 3' % S_TEAM)
    a('s_lshr_b32 s3, s%d, 3' % S_J)
    a('s_lshl_b32 s3, s3, 2')
    a('s_add_u32 s40, s40, s3')
    a('s_mul_i32 s40, s40, %d' % KS)
    if p2:
        a('s_mul_i32 s3, s%d, 5' % S_W)
        a('s_add_u32 s40, s40, s3')
    else:
        a('s_add_u32 s40, s40, s%d' % S_KS0)
    a('s_lshl_b32 s40, s40, 10')
    a('s_mul_i32 s3, s%d, %d' % (S_PASS, XSZ if p2 else HSZ))
    a('s_add_u32 s40, s40, s3')
    a('s_add_u32 s40, s40, %d' % (OB[0] if p2 else HB[0]))
    for i in range(4):
        a('s_add_u32 s3, s%d, %d' % (S_W, 1 + i))
        a('s_and_b32 s3, s3, 3')
        a('s_mul_i32 s%d, s3, %d' % (41 + i, KS * 1024))
        a('s_add_u32 s%d, s%d, s40' % (41 + i, 41 + i))
        if i < 3:
            a('s_mul_i32 s%d, s3, 15360' % (52 + i))
        if not p2:
            a('s_add_u32 s%d, s%d, %d' % (48 + i, 41 + i, 13 * 1024))
            a('s_cmp_ge_u32 s%d, 2' % S_W)
            a('s_cselect_b32 s%d, %d, s%d' % (48 + i, OOB, 48 + i))
    a('s_mul_i32 s3, s%d, 15360' % S_W)
    a('v_add_u32 v%d, s3, v1' % VRD)
    xout = XB[1] if p2 else XB[2]
    stout = STB[1] if p2 else STB[2]
    a('s_add_u32 s36, s%d, s%d' % (S_XT, S_XOFF))
    a('s_add_u32 s36, s36, %d' % xout)
    a('s_lshl_b32 s3, s%d, 18' % S_PASS)
    a('s_add_u32 s37, s%d, s3' % S_STT)
    a('s_add_u32 s37, s37, %d' % stout)
    if not p2:
        a('s_lshl_b32 s38, s%d, 7' % S_TEAM)
        a('s_lshl_b32 s3, s%d, 2' % S_CG)
        a('s_add_u32 s38, s38, s3')
        a('s_add_u32 s38, s38, %d' % HF)
        a('s_cmp_eq_u32 s%d, 7' % S_MT)
        a('s_cselect_b32 s38, s38, %d' % OOB)
    poll(a, S_TFL, 's%d' % S_PH)
    stamp(a, st_i)
    seq = [(i, k) for i in range(4) for k in range(NK)]

    def ld(n):
        i, k = seq[n]
        g = []
        reg = vr(RING + 4 * (n % NR), 4)
        if (not p2) and k == 13:
            g.append(('i', 'buffer_load_dwordx4 %s, v1, s[4:7], s%d offen%s' % (reg, 48 + i, LDM()), 'a%d' % n))
            return g
        if k % 4 == 0:
            g.append(('i', 's_add_u32 s%d, s%d, %d' % (S_DMA, 41 + i, k * 1024), None))
        g.append(('i', 'buffer_load_dwordx4 %s, v1, s[4:7], s%d offen offset:%d%s' % (reg, S_DMA, (k % 4) * 1024, LDM()), 'a%d' % n))
        return g

    nld = OPT['kfirst']
    for n in range(nld):
        for it in ld(n):
            a.emit_item(it)
    own = ACC[1]
    ini = Rec()
    for q in range(10):
        ini('v_lshlrev_b32 v%d, 16, v%d' % (own + 2 * q, XRES + q))
        ini('v_and_b32 v%d, 0xffff0000, v%d' % (own + 2 * q + 1, XRES + q))
    if not p2:
        for q in range(10):
            ini('v_lshlrev_b32 v162, 16, v%d' % (B2R + q))
            ini('v_add_f32 v%d, v%d, v162' % (own + 2 * q, own + 2 * q))
            ini('v_and_b32 v162, 0xffff0000, v%d' % (B2R + q))
            ini('v_add_f32 v%d, v%d, v162' % (own + 2 * q + 1, own + 2 * q + 1))
    n = 0
    PS = ACC[0]
    for i in range(4):
        acc = ACC[i & 1]
        cnt = 0
        a.flush_v()
        for k in range(NK):
            a.quiet = (len(seq) - n) * 5 <= OPT['quiet4']
            a.wait_vm('a%d' % n)
            for s in range(5):
                d = vr(acc + 4 * s, 4)
                fg = []
                if nld < len(seq) and ((s == 4 and nld <= n + NR) or (s in (0, 2) and nld < n + NR)):
                    fg = ld(nld)
                    nld += 1
                first = (k == 0 and i != 3)
                a.mfma('v_mfma_f32_16x16x32_bf16 %s, %s, %s, %s' % (d, slot_reg(WSL[k * 5 + s]), vr(RING + 4 * (n % NR), 4), '0' if first else d), fg)
                cnt += 1
                if cnt == 3 and i >= 1:
                    pacc = ACC[(i - 1) & 1]
                    r = Rec()
                    r('v_add_u32 v%d, s%d, v1' % (VW, 52 + i - 1))
                    for s2 in range(5):
                        r('ds_write_b128 v%d, %s offset:%d' % (VW, vr(pacc + 4 * s2, 4), ((i - 1) * 5 + s2) * 1024), tag='pw')
                    if i == 2:
                        r.delay(3)
                        r.wait_lg('pw')
                        r.items += ini.items
                    a.qv += r.items
                if i == 3 and cnt == (14 if p2 else 30):
                    a.flush_v()
                    a.wait_lg_all()
                    a('s_barrier')
                    r = Rec()
                    for s2 in range(5):
                        r('ds_read_b128 %s, v%d offset:%d' % (vr(PS + 4 * s2, 4), VRD, s2 * 1024), tag='pr0')
                    a.qv += r.items
            n += 1
    a.quiet = False
    a.flush_v()
    stamp(a, st_i + 1)
    if p2:
        a.qm += w2loads(range(22, 47))
    else:
        a.qm += wloads(S_WQ, WQ_SL, range(17, 17 + OPT['burst4']), srd='s[16:19]', tagp='wq')
    for src in (1, 2):
        for s2 in range(5):
            a('ds_read_b128 %s, v%d offset:%d' % (vr(RING + (src - 1) * 20 + 4 * s2, 4), VRD, (src * 5 + s2) * 1024), tag='pr%d' % src)
    a.flush_m(OPT['tail2'] if p2 else OPT['tail4'])
    tile5_voff(a, 144, 145)
    stat_voff(a, 145, 146)
    a.wait_lg('pr0')
    for q in range(10):
        a('v_pk_add_f32 %s, %s, %s' % (vr(own + 2 * q, 2), vr(own + 2 * q, 2), vr(PS + 2 * q, 2)))
    for src in (1, 2):
        a.wait_lg('pr%d' % src)
        for q in range(10):
            a('v_pk_add_f32 %s, %s, %s' % (vr(own + 2 * q, 2), vr(own + 2 * q, 2), vr(RING + (src - 1) * 20 + 2 * q, 2)))
    for q in range(10):
        a('v_cvt_pk_bf16_f32 v%d, v%d, v%d' % (XRES + q, own + 2 * q, own + 2 * q + 1))
    LF = None
    if not p2:
        LF = a.newlabel('final')
        a('s_cmp_eq_u32 s%d, 1' % S_PASS)
        a('s_cbranch_scc1 %s' % LF)
    store_tile(a, XRES, 36, 144)
    tile_stats(a, XRES, 64)
    a('buffer_store_dwordx2 v[64:65], v145, s[4:7], s37 offen sc1', tag='pub')
    stamp(a, st_i + 2)
    publish(a)
    if not p2:
        a('s_mov_b64 exec, 1')
        a('buffer_store_dword v162, v%d, s[4:7], s38 offen sc1' % VZ)
        a('s_mov_b64 exec, -1')
    else:
        a.flush_m(OPT['burst2'])
    stamp(a, st_i + 3)
    return LF


def main(out):
    global P3_PENDING_W2
    a = Sched()
    name = KNAME + '_kernel'
    a.raw('; @launch grid=(256,1,1) block=(256,1,1) lds=%d' % LDS_SIZE)
    a.raw('.amdgcn_target "amdgcn-amd-amdhsa--gfx950"')
    a.raw('.text')
    a.raw('.globl %s' % name)
    a.raw('.p2align 8')
    a.raw('.type %s,@function' % name)
    a.raw('%s:' % name)
    END = 'k_end'
    gen_prologue(a, END)
    gen_prep(a)
    gen_setup(a)
    gen_roles(a)
    stamp(a, 4)
    a.label('pass_loop')
    gen_nsplit(a, 1)
    gen_ksplit(a, 2)
    a.flush_m(pred=lambda g: g[-1][2] == 'w1')
    pend = []
    for g in a.qm:
        reg = g[-1][1].split()[1].rstrip(',')
        pend.append([i for i in range(70) if slot_reg(W2_SL[i]) == reg][0])
    P3_PENDING_W2 = pend
    a.qm = w2loads(pend)
    gen_nsplit(a, 3)
    LF = gen_ksplit(a, 4)
    a.flush_m()
    a('s_mov_b32 s%d, 1' % S_PASS)
    a('s_mov_b32 s%d, %d' % (S_XOFF, 2 * XSZ))
    a('s_mov_b32 s18, 0')
    a('s_add_u32 s%d, s%d, %d' % (S_HSRC, S_HSRC, 2 * XSZ))
    a('s_add_u32 s%d, s%d, %d' % (S_HSTS, S_HSTS, 2 * STSZ))
    a('s_branch pass_loop')
    a.label(LF)
    rowmajor_voff(a, 64, 65)
    for s in range(5):
        a('buffer_store_dwordx2 %s, v64, s[12:15], s%d offen offset:%d' % (vr(XRES + 2 * s, 2), S_RM, 32 * s))
    stamp(a, 50)
    a.label(END)
    a('s_endpgm')
    a.raw('code_end:')
    a.raw('.section .rodata,"a"')
    a.raw('.p2align 6')
    a.raw('.amdhsa_kernel %s' % name)
    a.raw('  .amdhsa_next_free_vgpr 512')
    a.raw('  .amdhsa_next_free_sgpr 102')
    a.raw('  .amdhsa_accum_offset 256')
    a.raw('  .amdhsa_group_segment_fixed_size 0')
    a.raw('  .amdhsa_kernarg_size 88')
    a.raw('  .amdhsa_user_sgpr_count 2')
    a.raw('  .amdhsa_user_sgpr_kernarg_segment_ptr 1')
    a.raw('  .amdhsa_system_sgpr_workgroup_id_x 1')
    a.raw('.end_amdhsa_kernel')
    open(out, 'w').write(a.text())
    print('instructions:', a.nins, 'ws end', WS_END)


if __name__ == '__main__':
    out = sys.argv[1] if len(sys.argv) > 1 else 'cdna_kernels/%s.s' % KNAME
    for o in sys.argv[2:]:
        if '=' in o:
            k, v = o.split('=')
            OPT[k] = int(v)
        else:
            OPT[o] = True
    main(out)
```

```python
import sys, math, struct
sys.path.insert(0, 'work')
from asmlib import Sched, Rec, vr, ar, sr

KNAME = 'interleave_layers__sliding_local_dilated__dense_activation_squared_relu__prompt'

OPT = dict(stamps=False, fake_xcc=0, force_slow=False, gsleep=2, quiet1=0, quiet3=30, quiet4=20,
           burst1=8, burst2=8, pace=4, tstamp=0, attn_loop=1, ldsc1=1, wnt=0, gen_pos=0, burst4=8, g1=4, g3=2, tail1=8, tail2=4, tail4=4, aevery=20, lsu=4, cpf=1, kfirst=6, st3=0, csi=1, fastattn=1)

WS_SIZE = 268435456
WQKV_T = 0
WO_T = WQKV_T + 16 * 163840
W1_T = WO_T + 8 * 20 * 5 * 1024
W2_T = W1_T + 54 * 20 * 2 * 1024
XSZ = 16 * 8 * 20 * 1024
X0 = W2_T + 8 * 54 * 5 * 1024
XB = [X0 + i * XSZ for i in range(4)]
OB = [X0 + (4 + i) * XSZ for i in range(2)]
HSZ = 16 * 8 * 54 * 1024
HB = [X0 + 6 * XSZ + i * HSZ for i in range(2)]
STSZ = 16 * 8 * 1024
ST0 = HB[1] + HSZ
STB = [ST0 + i * STSZ for i in range(4)]
FL = ST0 + 4 * STSZ
HF = FL + 4096
PFQ = HF + 2048
PFX = PFQ + 16 * 256
PFG = PFX + 16 * 512
RXF = PFG + 1024 * 8
WS_END = RXF + 16 * 128
STAMP_BASE = 64 << 20
OOB = 0x40000000
ONES = 0x3F803F80

SLOT = 20480
NSLOT = 6
L_SCR = NSLOT * SLOT
TP = 16 * 272
L_STAT = L_SCR + 144 * 272
L_ROLE = L_STAT + 1536
LDS_SIZE = 163840

S_TEAM, S_J, S_W, S_FAST, S_PASS = 20, 21, 22, 23, 24
S_CG, S_MT = 25, 26
S_XT = 29
S_STT = 31
S_RM = 32
S_COL = 34
S_PF, S_DMA, S_QV, S_QA = 58, 57, 56, 55
S_KS0 = 59
S_FLAG, S_TFL = 60, 61
S_WQ, S_WO, S_W1, S_W2 = 62, 63, 88, 89
S_W2X, S_XOFF, S_BLK = 90, 91, 92
S_HSRC, S_HSTS = 93, 94
S_PH = 95
S_XCC, S_PFGA = 27, 28
S_N0, S_N1 = 100, 101

CS1, CS3, B1R, B2R, XRES = 2, 10, 18, 26, 36
BIASC, BIASP, BIASP0, MASKP, MASKC = 46, 50, 54, 58, 60
VL4 = 62
VZ = 63
VL8 = 161


def slot_reg(i):
    return ar(4 * i, 4) if i < 64 else vr(164 + 4 * (i - 64), 4)


_G = {}
_p = 0
for _n, _c in (('y', 25), ('z', 17), ('x', 1), ('u', 22), ('v', 22)):
    _G[_n] = list(range(_p, _p + _c))
    _p += _c
WQ_SL = _G['z'] + _G['x'] + _G['u']
WO_SL = _G['y']
W1_SL = _G['v'] + _G['x'] + _G['z']
W2_SL = _G['u'] + _G['y'] + _G['x'] + _G['v']


def xorder(sig):
    cg, i = divmod(sig, 10)
    if i < 8:
        f = 80 * cg + 32 * (i >> 2) + 4 * (i & 3)
        return f, f + 16
    f = 80 * cg + 8 * i
    return f, f + 4


def oorder(sig):
    j, i = divmod(sig, 5)
    f = 40 * j + 4 * i
    return f, f + 20


def horder(sig):
    f = 32 * (sig >> 2) + 4 * (sig & 3)
    return f, f + 16


def f32bits(x):
    return struct.unpack('<I', struct.pack('<f', x))[0]


def LDM():
    return ' sc1' if OPT['ldsc1'] else ''


def stamp(a, idx):
    if not OPT['stamps']:
        return
    if idx in (11, 12, 31, 32, 40, 41):
        stamp2(a, 52 + (11, 12, 31, 32, 40, 41).index(idx), 's_memtime')
    stamp2(a, idx, 's_memrealtime')


def stamp2(a, idx, ins):
    a('%s s[96:97]' % ins)
    a('s_lshl_b32 s99, s2, 2')
    a('s_add_u32 s99, s99, s%d' % S_W)
    a('s_lshl_b32 s99, s99, 9')
    a('s_lshl_b32 s98, s%d, 8' % S_PASS)
    a('s_add_u32 s99, s99, s98')
    a('s_add_u32 s99, s99, %d' % (STAMP_BASE + idx * 4))
    a('s_waitcnt lgkmcnt(0)')
    a.lg = []
    a('v_mov_b32 v163, s96')
    a('s_mov_b64 exec, 1')
    a('buffer_store_dword v163, v%d, s[4:7], s99 offen' % VZ, tag='stamp')
    a('s_mov_b64 exec, -1')


def make_srd(a, dst, src, nbytes):
    a('s_mov_b32 s%d, s%d' % (dst, src))
    a('s_and_b32 s%d, s%d, 0xffff' % (dst + 1, src + 1))
    a('s_mov_b32 s%d, %d' % (dst + 2, nbytes))
    a('s_mov_b32 s%d, 0x20000' % (dst + 3))


def tile_scalars(a):
    a('s_and_b32 s%d, s%d, 7' % (S_CG, S_J))
    a('s_lshr_b32 s%d, s%d, 3' % (S_MT, S_J))
    a('s_lshl_b32 s%d, s%d, 2' % (S_MT, S_MT))
    a('s_add_u32 s%d, s%d, s%d' % (S_MT, S_MT, S_W))
    a('s_lshl_b32 s%d, s%d, 3' % (S_STT, S_TEAM))
    a('s_add_u32 s%d, s%d, s%d' % (S_STT, S_STT, S_MT))
    a('s_mul_i32 s%d, s%d, 20480' % (S_XT, S_STT))
    a('s_mul_i32 s3, s%d, 2560' % S_CG)
    a('s_add_u32 s%d, s%d, s3' % (S_XT, S_XT))
    a('s_lshl_b32 s%d, s%d, 10' % (S_STT, S_STT))
    a('s_lshl_b32 s3, s%d, 7' % S_CG)
    a('s_add_u32 s%d, s%d, s3' % (S_STT, S_STT))
    a('s_mul_i32 s%d, s%d, 160' % (S_COL, S_CG))
    a('s_and_b32 s3, s%d, 7' % S_TEAM)
    a('s_lshl_b32 s3, s3, 7')
    a('s_lshl_b32 s%d, s%d, 4' % (S_RM, S_MT))
    a('s_add_u32 s3, s3, s%d' % S_RM)
    a('s_lshl_b32 s3, s3, 1')
    a('s_lshr_b32 s%d, s%d, 3' % (S_RM, S_TEAM))
    a('s_add_u32 s3, s3, s%d' % S_RM)
    a('s_mul_i32 s3, s3, 1280')
    a('s_add_u32 s%d, s3, s%d' % (S_RM, S_COL))


def rowmajor_voff(a, dst, tmp):
    a('v_and_b32 v%d, 15, v0' % dst)
    a('v_mul_u32_u24 v%d, 2560, v%d' % (dst, dst))
    a('v_lshrrev_b32 v%d, 4, v0' % tmp)
    a('v_lshl_add_u32 v%d, v%d, 3, v%d' % (dst, tmp, dst))


def tile5_voff(a, dst, tmp):
    a('v_and_b32 v%d, 15, v0' % dst)
    a('v_lshlrev_b32 v%d, 4, v%d' % (dst, dst))
    a('v_lshrrev_b32 v%d, 5, v0' % tmp)
    a('v_lshl_add_u32 v%d, v%d, 8, v%d' % (dst, tmp, dst))
    a('v_bfe_u32 v%d, v0, 4, 1' % tmp)
    a('v_lshl_add_u32 v%d, v%d, 3, v%d' % (dst, tmp, dst))


def stat_voff(a, dst, tmp):
    a('v_lshlrev_b32 v%d, 3, v0' % dst)
    a('v_mov_b32 v%d, 0x%x' % (tmp, OOB))
    a('v_cmp_gt_u32 vcc, 16, v0')
    a('v_cndmask_b32 v%d, v%d, v%d, vcc' % (dst, tmp, dst))


def two_ways(a, fn):
    LS = a.newlabel('slow')
    LJ = a.newlabel('join')
    a('s_cmp_eq_u32 s%d, 0' % S_FAST)
    a('s_cbranch_scc1 %s' % LS)
    vm0 = list(a.vm)
    fn('')
    a('s_branch %s' % LJ)
    a.label(LS)
    a.vm = vm0
    fn(' sc1')
    a.label(LJ)


def tile_stats(a, P, T):
    a('s_mov_b32 s39, 0x%x' % ONES)
    for i in range(10):
        a('v_dot2_f32_bf16 v%d, v%d, s39, %s' % (T, P + i, '0' if i == 0 else 'v%d' % T))
        a('v_dot2_f32_bf16 v%d, v%d, v%d, %s' % (T + 1, P + i, P + i, '0' if i == 0 else 'v%d' % (T + 1)))
    a('v_mov_b32 v%d, v%d' % (T + 2, T))
    a('v_mov_b32 v%d, v%d' % (T + 3, T + 1))
    a('v_permlane16_swap_b32 v%d, v%d' % (T, T + 2))
    a('v_permlane16_swap_b32 v%d, v%d' % (T + 1, T + 3))
    a('v_pk_add_f32 %s, %s, %s' % (vr(T, 2), vr(T, 2), vr(T + 2, 2)))
    a('v_mov_b32 v%d, v%d' % (T + 2, T))
    a('v_mov_b32 v%d, v%d' % (T + 3, T + 1))
    a('v_permlane32_swap_b32 v%d, v%d' % (T, T + 2))
    a('v_permlane32_swap_b32 v%d, v%d' % (T + 1, T + 3))
    a('v_pk_add_f32 %s, %s, %s' % (vr(T, 2), vr(T, 2), vr(T + 2, 2)))


def store_tile(a, P, sa, V5, tag='pub'):
    a('buffer_store_dwordx4 %s, v1, s[4:7], s%d offen sc1' % (vr(P, 4), sa), tag=tag)
    a('buffer_store_dwordx4 %s, v1, s[4:7], s%d offen offset:1024 sc1' % (vr(P + 4, 4), sa), tag=tag)
    a('buffer_store_dwordx2 %s, v%d, s[4:7], s%d offen offset:2048 sc1' % (vr(P + 8, 2), V5, sa), tag=tag)


def qkv_sg(ch, hf):
    Q, K, V = 0, 1, 2
    if ch < 4:
        h, lo = ch >> 1, (ch & 1) * 2
        return Q * 10 + h * 5 + lo + hf
    if ch == 4:
        return (Q * 10 + 4) if hf == 0 else 30
    if ch == 15:
        return (Q * 10 + 5 + 4) if hf == 0 else 30
    h = (ch - 5) // 5
    c = (ch - 5) % 5
    if c < 2:
        return K * 10 + h * 5 + c * 2 + hf
    if c < 4:
        return V * 10 + h * 5 + (c - 2) * 2 + hf
    return (K if hf == 0 else V) * 10 + h * 5 + 4


def poll(a, sbase, sval, lanes=None, sleep=0, off=0):
    if lanes:
        a('s_mov_b64 exec, 0x%x' % lanes)
    a('s_mov_b32 s3, 0')
    LP = a.newlabel('poll')
    LD = a.newlabel('polld')
    a.label(LP)
    if sleep:
        a('s_sleep %d' % sleep)
    a('buffer_load_dword v162, v%d, s[4:7], s%d offen offset:%d sc1' % (VL4, sbase, off))
    a('s_add_u32 s3, s3, 1')
    a('s_waitcnt vmcnt(0)')
    a('v_cmp_gt_u32 vcc, %s, v162' % sval)
    a('s_cmp_gt_u32 s3, 200000')
    a('s_cbranch_scc1 %s' % LD)
    a('s_cbranch_vccnz %s' % LP)
    a.label(LD)
    if lanes:
        a('s_mov_b64 exec, -1')
    a.vm = []


def poll64(a, items, sleep=0, rbase=64):
    a('s_mov_b32 s3, 0')
    LP = a.newlabel('poll')
    LD = a.newlabel('polld')
    a.label(LP)
    if sleep:
        a('s_sleep %d' % sleep)
    regs = []
    r = rbase
    for (sb, off, w, lanes) in items:
        a('buffer_load_dwordx%d %s, v%d, s[4:7], s%d offen offset:%d sc1' % (w, vr(r, w), 1 if w == 4 else VL8, sb, off))
        regs.append(r)
        r += w
    a('s_add_u32 s3, s3, 1')
    a('s_mov_b64 s[50:51], 0')
    a('s_waitcnt vmcnt(0)')
    for (sb, off, w, lanes), r in zip(items, regs):
        for q in range(0, w, 2):
            a('v_cmp_ne_u64 vcc, s[%d:%d], %s' % (S_N0, S_N1, vr(r + q, 2)))
            if lanes is not None:
                a('s_and_b64 vcc, vcc, %s' % lanes)
            a('s_or_b64 s[50:51], s[50:51], vcc')
    a('s_cmp_gt_u32 s3, 100000')
    a('s_cbranch_scc1 %s' % LD)
    a('s_cmp_lg_u64 s[50:51], 0')
    a('s_cbranch_scc1 %s' % LP)
    a.label(LD)
    a.vm = []


def flag64(a, saddr, lo=None, R=94):
    a('v_mov_b32 v%d, s%d' % (R, S_N0 if lo is None else lo))
    a('v_mov_b32 v%d, s%d' % (R + 1, S_N1))
    a('s_mov_b64 exec, 1')
    a('buffer_store_dwordx2 %s, v%d, s[4:7], s%d offen sc1' % (vr(R, 2), VZ, saddr))
    a('s_mov_b64 exec, -1')


def get_nonce(a):
    a('s_mov_b32 s3, 0')
    LP = a.newlabel('nonce')
    LD = a.newlabel('nonced')
    a.label(LP)
    a('buffer_load_dwordx2 v[94:95], v%d, s[84:87], 0 offen offset:128 sc1' % VZ)
    a('s_add_u32 s3, s3, 1')
    a('s_waitcnt vmcnt(0)')
    a('v_readfirstlane_b32 s%d, v94' % S_N0)
    a('v_readfirstlane_b32 s%d, v95' % S_N1)
    a('s_cmp_gt_u32 s3, 100000')
    a('s_cbranch_scc1 %s' % LD)
    a('s_cmp_eq_u32 s%d, 0' % S_N1)
    a('s_cbranch_scc1 %s' % LP)
    a.label(LD)
    a.vm = []


def publish(a):
    a('s_add_u32 s%d, s%d, 1' % (S_PH, S_PH))
    a('v_mov_b32 v162, s%d' % S_PH)
    a('s_mov_b64 exec, 1')

    def f(mod):
        a.wait_vm('pub')
        a('buffer_store_dword v162, v%d, s[4:7], s%d offen%s' % (VZ, S_FLAG, mod), tag='fl')
    two_ways(a, f)
    a('s_mov_b64 exec, -1')


def gen_prologue(a, END):
    a('s_cmp_ge_u32 s2, 256')
    a('s_cbranch_scc1 %s' % END)
    a('s_load_dwordx16 s[64:79], s[0:1], 0')
    a('s_load_dwordx4 s[80:83], s[0:1], 64')
    a('s_load_dwordx2 s[4:5], s[0:1], 80')
    a('v_lshrrev_b32 v1, 6, v0')
    a('v_and_b32 v0, 63, v0')
    a('v_readfirstlane_b32 s%d, v1' % S_W)
    a('v_lshlrev_b32 v1, 4, v0')
    a('v_lshlrev_b32 v%d, 2, v0' % VL4)
    a('v_mov_b32 v%d, 0' % VZ)
    a('s_mov_b32 s%d, 0' % S_PASS)
    a('s_and_b32 s3, s2, 7')
    a('s_lshr_b32 s%d, s2, 3' % S_J)
    a('s_lshr_b32 s%d, s%d, 4' % (S_TEAM, S_J))
    a('s_lshl_b32 s3, s3, 1')
    a('s_add_u32 s%d, s%d, s3' % (S_TEAM, S_TEAM))
    a('s_and_b32 s%d, s%d, 15' % (S_J, S_J))
    a('s_mov_b32 s%d, 0' % S_FAST)
    tile_scalars(a)
    rowmajor_voff(a, 64, 65)
    a('s_getreg_b32 s%d, hwreg(HW_REG_XCC_ID)' % S_XCC)
    a('s_and_b32 s%d, s%d, 15' % (S_XCC, S_XCC))
    a('s_waitcnt lgkmcnt(0)')
    make_srd(a, 12, 64, 2048 * 1280)
    a('s_and_b32 s5, s5, 0xffff')
    a('s_mov_b32 s6, %d' % WS_SIZE)
    a('s_mov_b32 s7, 0x20000')
    make_srd(a, 84, 82, 256)
    LN = a.newlabel('no_nonce')
    a('s_lshl_b32 s3, s2, 2')
    a('s_add_u32 s3, s3, s%d' % S_W)
    a('s_cmp_lg_u32 s3, 0')
    a('s_cbranch_scc1 %s' % LN)
    a('s_memrealtime s[40:41]')
    a('s_waitcnt lgkmcnt(0)')
    a('s_lshl_b32 s41, s41, 1')
    a('s_or_b32 s41, s41, 1')
    a('v_mov_b32 v94, s40')
    a('v_mov_b32 v95, s41')
    a('s_mov_b64 exec, 1')
    a('buffer_store_dwordx2 v[94:95], v%d, s[84:87], 0 offen offset:128 sc1' % VZ)
    a('s_mov_b64 exec, -1')
    a.label(LN)
    a.vm = []


def s_xorder(a, sig, first, d2, t):
    a('s_mul_i32 s%d, s%d, 205' % (t, sig))
    a('s_lshr_b32 s%d, s%d, 11' % (t, t))
    a('s_mul_i32 s%d, s%d, 10' % (first, t))
    a('s_sub_u32 s%d, s%d, s%d' % (d2, sig, first))
    a('s_mul_i32 s%d, s%d, 80' % (t, t))
    a('s_lshr_b32 s%d, s%d, 2' % (first, d2))
    a('s_lshl_b32 s%d, s%d, 4' % (first, first))
    a('s_lshl_b32 s3, s%d, 2' % d2)
    a('s_add_u32 s%d, s%d, s3' % (first, first))
    a('s_lshl_b32 s3, s%d, 3' % d2)
    a('s_cmp_lt_u32 s%d, 8' % d2)
    a('s_cselect_b32 s%d, s%d, s3' % (first, first))
    a('s_cselect_b32 s%d, 16, 4' % d2)
    a('s_add_u32 s%d, s%d, s%d' % (first, first, t))


def v_order(a, kind, sig, first, d2, t):
    if kind == 'x':
        a('v_mul_u32_u24 v%d, 205, v%d' % (t, sig))
        a('v_lshrrev_b32 v%d, 11, v%d' % (t, t))
        a('v_mul_u32_u24 v%d, 10, v%d' % (first, t))
        a('v_sub_u32 v%d, v%d, v%d' % (d2, sig, first))
        a('v_mul_u32_u24 v%d, 80, v%d' % (t, t))
        a('v_lshrrev_b32 v%d, 2, v%d' % (first, d2))
        a('v_lshlrev_b32 v%d, 4, v%d' % (first, first))
        a('v_lshl_add_u32 v%d, v%d, 2, v%d' % (first, d2, first))
        a('v_lshlrev_b32 v%d, 3, v%d' % (t + 1, d2))
        a('v_cmp_gt_u32 vcc, 8, v%d' % d2)
        a('v_cndmask_b32 v%d, v%d, v%d, vcc' % (first, t + 1, first))
        a('v_cndmask_b32 v%d, 4, 16, vcc' % d2)
        a('v_add_u32 v%d, v%d, v%d' % (first, first, t))
    elif kind == 'o':
        a('v_mul_u32_u24 v%d, 205, v%d' % (t, sig))
        a('v_lshrrev_b32 v%d, 10, v%d' % (t, t))
        a('v_mul_u32_u24 v%d, 20, v%d' % (t, t))
        a('v_lshl_add_u32 v%d, v%d, 2, v%d' % (first, sig, t))
        a('v_mov_b32 v%d, 20' % d2)
    else:
        a('v_lshrrev_b32 v%d, 2, v%d' % (t, sig))
        a('v_lshlrev_b32 v%d, 4, v%d' % (t, t))
        a('v_lshl_add_u32 v%d, v%d, 2, v%d' % (first, sig, t))
        a('v_mov_b32 v%d, 16' % d2)


G_STG = 0


def gen_prep(a):
    R0 = 96
    for s in range(5):
        a('buffer_load_dwordx2 %s, v64, s[12:15], s%d offen offset:%d' % (vr(XRES + 2 * s, 2), S_RM, 32 * s), tag='x')
    a('buffer_load_dwordx2 v[94:95], v%d, s[84:87], 0 offen offset:128 sc1' % VZ, tag='x')
    if OPT['cpf']:
        a('s_getpc_b64 s[8:9]')
        a.raw('code_ref:')
        a('s_mov_b32 s10, code_end-code_ref')
        a('s_mov_b32 s11, 0x20000')
        a('s_and_b32 s9, s9, 0xffff')
        a('v_lshlrev_b32 v96, 7, v0')
        a('s_lshl_b32 s3, s%d, 13' % S_W)
        if OPT['cpf'] == 1:
            a('s_bfe_u32 s40, s2, 0x20003')
            a('v_bfe_u32 v97, v0, 4, 2')
            a('v_mov_b32 v98, 0x%x' % OOB)
            a('v_cmp_eq_u32 vcc, s40, v97')
            a('v_cndmask_b32 v96, v98, v96, vcc')
        a('buffer_load_dword v97, v96, s[8:11], s3 offen', tag='x')
    stamp(a, 0)
    a('s_lshl_b32 s48, s%d, 8' % S_W)
    a('s_add_u32 s48, s48, s2')
    a('s_lshl_b32 s49, s%d, 13' % S_W)
    a('v_lshrrev_b32 v88, 2, v0')
    a('v_and_b32 v89, 3, v0')
    a('s_cmp_lt_u32 s48, 320')
    a('s_cselect_b32 s55, 0, %d' % OOB)
    a('s_cselect_b32 s48, s48, 0')
    a('s_mul_i32 s50, s48, 3277')
    a('s_lshr_b32 s50, s50, 16')
    a('s_mul_i32 s51, s50, 20')
    a('s_sub_u32 s51, s48, s51')
    make_srd(a, 8, 66, 640 * 3840)
    LNQ = a.newlabel('no_wq')
    a('s_cmp_lg_u32 s55, 0')
    a('s_cbranch_scc1 %s' % LNQ)
    vm0 = list(a.vm)
    a('v_and_b32 v70, 15, v0')
    a('v_lshrrev_b32 v71, 4, v0')
    a('v_mul_u32_u24 v71, 3840, v71')
    a('v_lshl_add_u32 v71, v70, 4, v71')
    a('v_mov_b32 v72, 1200')
    a('v_cmp_le_u32 vcc, 5, v70')
    a('v_cndmask_b32 v73, 0, v72, vcc')
    a('v_add_u32 v71, v71, v73')
    a('v_cmp_le_u32 vcc, 10, v70')
    a('v_cndmask_b32 v73, 0, v72, vcc')
    a('v_add_u32 v71, v71, v73')
    a('v_mov_b32 v72, 0x%x' % OOB)
    a('v_cmp_eq_u32 vcc, 15, v70')
    a('v_cndmask_b32 v71, v71, v72, vcc')
    a('s_mul_i32 s52, s50, 80')
    for g in range(4):
        a('s_lshl_b32 s40, s51, 2')
        a('s_add_u32 s40, s40, %d' % g)
        s_xorder(a, 40, 41, 42, 43)
        for half in range(2):
            if half:
                a('s_add_u32 s41, s41, s42')
            a('s_mul_i32 s53, s41, 3840')
            a('s_add_u32 m0, s49, %d' % (1024 * (half * 4 + g)))
            a('s_add_u32 s53, s53, s52')
            a('buffer_load_dwordx4 v71, s[8:11], s53 offen lds')
    a('v_lshlrev_b32 v74, 8, v88')
    a('v_add_u32 v74, s49, v74')
    a('v_lshlrev_b32 v75, 3, v89')
    for T in range(8):
        b, hf = T >> 1, T & 1
        const = sum(qkv_sg(4 * b + c, hf) << (8 * c) for c in range(4))
        a('s_mov_b32 s3, 0x%x' % const)
        a('v_bfe_u32 v%d, s3, v75, 8' % (76 + T))
        a('v_lshl_add_u32 v%d, v%d, 3, v74' % (76 + T, 76 + T))
    a('s_waitcnt vmcnt(8)')
    LX = a.newlabel('xgo')
    a('s_branch %s' % LX)
    a.label(LNQ)
    a('s_waitcnt vmcnt(0)')
    a.label(LX)
    a.vm = []
    make_srd(a, 16, 4, WS_SIZE)
    tile5_voff(a, 68, 69)
    stat_voff(a, 69, 64)
    a('s_add_u32 s36, s%d, %d' % (S_XT, XB[0]))
    a('s_add_u32 s37, s%d, %d' % (S_STT, STB[0]))
    store_tile(a, XRES, 36, 68, tag='xs')
    tile_stats(a, XRES, 64)
    a('buffer_store_dwordx2 v[64:65], v69, s[4:7], s37 offen sc1', tag='xs')
    a('v_readfirstlane_b32 s%d, v94' % S_N0)
    a('v_readfirstlane_b32 s%d, v95' % S_N1)
    LH = a.newlabel('have_nonce')
    a('s_cmp_lg_u32 s%d, 0' % S_N1)
    a('s_cbranch_scc1 %s' % LH)
    get_nonce(a)
    a.label(LH)
    a('s_lshl_b32 s38, s%d, 4' % S_TEAM)
    a('s_add_u32 s38, s38, s%d' % S_J)
    a('s_lshl_b32 s44, s38, 3')
    a('s_add_u32 s44, s44, %d' % RXF)
    a('s_lshl_b32 s45, s38, 4')
    a('s_add_u32 s45, s45, %d' % FL)
    a('s_lshl_b32 s46, s38, 3')
    a('s_add_u32 s46, s46, %d' % HF)
    a('s_cmp_eq_u32 s%d, 2' % S_W)
    a('s_cselect_b32 s44, s44, %d' % OOB)
    a('s_cselect_b32 s45, s45, %d' % OOB)
    a('s_cselect_b32 s46, s46, %d' % OOB)
    a('s_lshl_b32 s38, s38, 2')
    a('s_add_u32 s38, s38, s%d' % S_W)
    a('s_lshl_b32 s38, s38, 3')
    a('s_lshl_b32 s3, s2, 2')
    a('s_add_u32 s3, s3, s%d' % S_W)
    a('s_lshl_b32 s3, s3, 3')
    a('s_add_u32 s%d, s3, %d' % (S_PFGA, PFG))
    a('s_add_u32 s38, s38, %d' % PFX)
    LNQ2 = a.newlabel('no_wq2')
    a('s_cmp_lg_u32 s55, 0')
    a('s_cbranch_scc1 %s' % LNQ2)
    a('s_mul_i32 s54, s50, 163840')
    a('s_lshl_b32 s3, s51, 11')
    a('s_add_u32 s54, s54, s3')
    a('s_add_u32 s54, s54, %d' % WQKV_T)
    a('s_waitcnt vmcnt(4)')
    stamp(a, 5)
    for T in range(8):
        a('ds_read_b64_tr_b16 %s, v%d' % (vr(R0 + 4 * T, 2), 76 + T))
        a('ds_read_b64_tr_b16 %s, v%d offset:4096' % (vr(R0 + 2 + 4 * T, 2), 76 + T))
    a('s_mul_i32 s3, s50, 12')
    a('s_add_u32 s3, s3, s48')
    a('s_lshl_b32 s3, s3, 3')
    a('s_add_u32 s39, s3, %d' % PFQ)
    a.wait_lg_all()
    for T in range(8):
        a('s_add_u32 s53, s54, %d' % ((T >> 1) * 40960 + (T & 1) * 1024))
        a('buffer_store_dwordx4 %s, v1, s[4:7], s53 offen sc1' % vr(R0 + 4 * T, 4))
    a('s_waitcnt vmcnt(0)')
    flag64(a, 39)
    a.label(LNQ2)
    a('s_waitcnt vmcnt(1)')
    a.vm = []
    LNQ3 = a.newlabel('no_wq3')
    a('s_cmp_eq_u32 s55, 0')
    a('s_cbranch_scc1 %s' % LNQ3)
    a('s_waitcnt vmcnt(0)')
    a.label(LNQ3)
    a('s_add_u32 s47, s%d, s%d' % (S_N0, S_XCC))
    a('s_add_u32 s47, s47, 1')
    flag64(a, 38, lo=47)
    stamp(a, 1)
    a('s_mov_b64 exec, 0xf')
    a('buffer_store_dword v%d, v%d, s[4:7], s45 offen sc1' % (VZ, VL4))
    a('s_mov_b64 exec, 0x3')
    a('buffer_store_dword v%d, v%d, s[4:7], s46 offen sc1' % (VZ, VL4))
    a('s_mov_b64 exec, -1')


KG = ((45, 46), (47, 35))


def generic_addr(a):
    a('s_mul_i32 s48, s2, 5')
    a('v_bfe_u32 v70, v0, 3, 2')
    a('v_and_b32 v71, 7, v0')
    a('v_lshlrev_b32 v71, 4, v71')
    a('v_lshrrev_b32 v72, 5, v0')
    L1 = a.newlabel('pg_w1')
    L2 = a.newlabel('pg_w2')
    LD = a.newlabel('pg_go')
    a('s_cmp_ge_u32 s48, 740')
    a('s_cbranch_scc1 %s' % L2)
    a('s_cmp_ge_u32 s48, 200')
    a('s_cbranch_scc1 %s' % L1)
    for (lab, sub, src, nb, gpr, magic, pitch, dest, KS, kind) in (
            (None, 0, 68, 640 * 1280, 10, 6554, 1280, WO_T, 20, 'o'),
            (L1, 200, 72, 640 * 3456, 27, 2428, 3456, W1_T, 0, 'x'),
            (L2, 740, 76, 1728 * 1280, 10, 6554, 1280, W2_T, 54, 'h')):
        if lab:
            a.label(lab)
        if sub:
            a('s_sub_u32 s48, s48, %d' % sub)
        make_srd(a, 8, src, nb)
        a('s_mov_b32 s42, %d' % pitch)
        a('s_mov_b32 s43, %d' % dest)
        a('s_mov_b32 s44, %d' % KS)
        for uu in range(2):
            ks, G = KG[uu]
            a('s_add_u32 s3, s48, %s' % ('s%d' % S_W if uu == 0 else '4'))
            a('s_mul_i32 s%d, s3, %d' % (ks, magic))
            a('s_lshr_b32 s%d, s%d, 16' % (ks, ks))
            a('s_mul_i32 s50, s%d, %d' % (ks, gpr))
            a('s_sub_u32 s%d, s3, s50' % G)
            for gh in range(2):
                a('s_lshl_b32 s3, s%d, 2' % ks)
                a('s_add_u32 s3, s3, %d' % (2 * gh))
                a('v_add_u32 v73, s3, v72')
                idx = uu * 2 + gh
                v_order(a, kind, 73, 76 + 2 * idx, 77 + 2 * idx, 84)
        if lab != L2:
            a('s_branch %s' % LD)
    a.label(LD)
    a('s_cmp_eq_u32 s%d, 3' % S_W)
    a('s_cselect_b32 s55, 0, %d' % OOB)
    for uu in range(2):
        for i in range(4):
            idx = uu * 2 + (i & 1)
            d = 128 + uu * 4 + i
            a('v_add_u32 v%d, v%d, v70' % (d, 76 + 2 * idx))
            if i >> 1:
                a('v_add_u32 v%d, v%d, v%d' % (d, d, 77 + 2 * idx))
            a('v_mul_lo_u32 v%d, v%d, s42' % (d, d))
            a('v_add_u32 v%d, v%d, v71' % (d, d))
    a('s_lshl_b32 s49, s%d, 13' % S_W)
    a('s_add_u32 s49, s49, %d' % L_SCR)
    a('v_lshlrev_b32 v74, 7, v88')
    a('v_lshl_add_u32 v74, v89, 3, v74')
    a('v_add_u32 v74, s49, v74')


def generic_issue(a):
    for uu in range(2):
        ks, G = KG[uu]
        a('s_lshl_b32 s50, s%d, 7' % G)
        if uu:
            a('s_add_u32 s50, s50, s55')
        for i in range(4):
            a('s_add_u32 m0, s49, %d' % (4096 * uu + 1024 * i))
            a('buffer_load_dwordx4 v%d, s[8:11], s50 offen lds' % (128 + uu * 4 + i), tag='u')


def generic_finish(a):
    R0 = 96
    a.wait_vm('u')
    for uu in range(2):
        for q in range(4):
            r = R0 + 16 * uu + 4 * q
            a('ds_read_b64_tr_b16 %s, v74 offset:%d' % (vr(r, 2), 4096 * uu + 32 * q))
            a('ds_read_b64_tr_b16 %s, v74 offset:%d' % (vr(r + 2, 2), 4096 * uu + 32 * q + 2048))
    first = True
    for uu in range(2):
        ks, G = KG[uu]
        for q in range(4):
            r = R0 + 16 * uu + 4 * q
            a('s_lshl_b32 s50, s%d, 2' % G)
            a('s_add_u32 s50, s50, %d' % q)
            a('s_lshr_b32 s51, s50, 1')
            a('s_mul_i32 s51, s51, 20')
            a('s_add_u32 s51, s51, s%d' % ks)
            a('s_lshl_b32 s51, s51, 1')
            a('s_add_u32 s51, s51, %d' % (q & 1))
            a('s_mul_i32 s52, s50, 205')
            a('s_lshr_b32 s52, s52, 10')
            a('s_mul_i32 s53, s52, 5')
            a('s_sub_u32 s53, s50, s53')
            a('s_mul_i32 s52, s52, s44')
            a('s_add_u32 s52, s52, s%d' % ks)
            a('s_mul_i32 s52, s52, 5')
            a('s_add_u32 s52, s52, s53')
            a('s_cmp_eq_u32 s44, 0')
            a('s_cselect_b32 s51, s51, s52')
            a('s_lshl_b32 s51, s51, 10')
            a('s_add_u32 s51, s51, s43')
            if uu:
                a('s_add_u32 s51, s51, s55')
            if first:
                a.wait_lg_all()
                first = False
            a('buffer_store_dwordx4 %s, v1, s[4:7], s51 offen sc1' % vr(r, 4), tag='gs')


def deps_loads(a):
    a('buffer_load_dwordx2 v[64:65], v%d, s[4:7], s36 offen sc1' % VL8, tag='dp')
    a('buffer_load_dwordx2 v[66:67], v%d, s[4:7], s37 offen sc1' % VL8, tag='dp')
    a('buffer_load_dwordx2 v[68:69], v%d, s[4:7], s38 offen sc1' % VL8, tag='dp')


def gen_roles(a):
    late_consts(a)
    generic_addr(a)
    a('s_lshl_b32 s3, s%d, 2' % S_J)
    a('s_add_u32 s3, s3, s%d' % S_W)
    a('s_mul_i32 s%d, s3, 40960' % S_WQ)
    a('s_add_u32 s%d, s%d, %d' % (S_WQ, S_WQ, WQKV_T))
    a('v_lshlrev_b32 v%d, 3, v0' % VL8)
    a('s_lshl_b32 s36, s%d, 8' % S_J)
    a('s_add_u32 s36, s36, %d' % PFQ)
    a('s_lshl_b32 s37, s%d, 9' % S_TEAM)
    a('s_add_u32 s37, s37, %d' % PFX)
    a('s_and_b32 s3, s%d, 7' % S_TEAM)
    a('s_cmp_eq_u32 s3, 0')
    a('s_cselect_b32 s38, 0, 512')
    a('s_sub_u32 s38, s37, s38')
    stamp(a, 7)
    a('s_barrier')
    generic_issue(a)
    a.wait_vm('u')
    deps_loads(a)
    generic_finish(a)
    stamp(a, 2)


def first_deps(a):
    a('s_waitcnt vmcnt(8)')
    a('s_mov_b32 s52, 0')
    a('s_mov_b32 s53, 0x88888888')
    a('s_add_u32 s39, s%d, 1' % S_N0)
    a('s_mov_b32 s3, 0')
    LP = a.newlabel('dp')
    LD = a.newlabel('dpd')
    a.label(LP)
    a('v_cmp_ne_u64 vcc, s[%d:%d], v[64:65]' % (S_N0, S_N1))
    a('v_subrev_u32 v66, s39, v66')
    a('v_subrev_u32 v68, s39, v68')
    a('s_and_b64 s[50:51], vcc, 0xfffff')
    a('v_cmp_ne_u32 vcc, s%d, v67' % S_N1)
    a('s_or_b64 s[50:51], s[50:51], vcc')
    a('v_cmp_lt_u32 vcc, 15, v66')
    a('s_or_b64 s[50:51], s[50:51], vcc')
    a('v_cmp_ne_u32 vcc, s%d, v69' % S_N1)
    a('s_and_b64 vcc, vcc, s[52:53]')
    a('s_or_b64 s[50:51], s[50:51], vcc')
    a('v_cmp_lt_u32 vcc, 15, v68')
    a('s_and_b64 vcc, vcc, s[52:53]')
    a('s_or_b64 s[50:51], s[50:51], vcc')
    a('s_cmp_eq_u64 s[50:51], 0')
    a('s_cbranch_scc1 %s' % LD)
    a('s_add_u32 s3, s3, 1')
    a('s_cmp_gt_u32 s3, 100000')
    a('s_cbranch_scc1 %s' % LD)
    a('s_sleep %d' % OPT['gsleep'])
    deps_loads(a)
    a('s_waitcnt vmcnt(0)')
    a('s_branch %s' % LP)
    a.label(LD)
    a('v_cmp_ne_u32 vcc, s%d, v66' % S_XCC)
    a('s_cmp_eq_u64 vcc, 0')
    a('s_cselect_b32 s%d, %d, 0' % (S_FAST, 0 if OPT['force_slow'] else 1))
    stamp(a, 3)
    now(a, wloads(S_WQ, WQ_SL, range(10), tagp='wq'))
    a('s_waitcnt vmcnt(10)')
    flag64(a, S_PFGA, R=64)


def first_unit1(a):
    a('v_mul_u32_u24 v144, 272, v0')
    a('s_mul_i32 s3, s%d, %d' % (S_W, 32 * 272))
    a('s_add_u32 s3, s3, %d' % (L_SCR + 16 * 272 + 256))
    a('v_add_u32 v144, s3, v144')
    for q in range(4):
        a('v_mov_b32 v%d, 0' % (140 + q))
    a('s_mov_b64 exec, 0xffffffff')
    a('ds_write_b128 v144, v[140:143]')
    a('s_mov_b64 exec, -1')


def late_addr(a, part):
    n = 1280 if part == 0 else 896
    a('s_mul_i32 s36, s%d, %d' % (S_W, n))
    a('s_add_u32 s36, s36, %d' % (PFG + (0 if part == 0 else 4608)))
    a('s_cmp_eq_u32 s%d, 0' % S_PASS)
    a('s_cselect_b32 s36, s36, %d' % OOB)


def late_loads(a, part, R, tag=None):
    a('buffer_load_dwordx4 %s, v1, s[4:7], s36 offen sc1' % vr(R, 4), tag=tag)
    if part == 0:
        a('buffer_load_dwordx4 %s, v1, s[4:7], s36 offen offset:256 sc1' % vr(R + 4, 4), tag=tag)


def late_issue(a, part, R):
    late_addr(a, part)
    late_loads(a, part, R, 'ls')


def late_sync(a, part, R):
    a('s_mov_b32 s3, 0')
    LP = a.newlabel('ls')
    LD = a.newlabel('lsd')
    a.label(LP)
    a('s_mov_b64 s[50:51], 0')
    for q in range(4 if part == 0 else 2):
        a('v_cmp_ne_u64 vcc, s[%d:%d], %s' % (S_N0, S_N1, vr(R + 2 * q, 2)))
        a('s_or_b64 s[50:51], s[50:51], vcc')
    if part == 1:
        a('s_and_b32 s51, s51, 0xffffff')
    a('s_cmp_eq_u64 s[50:51], 0')
    a('s_cbranch_scc1 %s' % LD)
    a('s_add_u32 s3, s3, 1')
    a('s_cmp_gt_u32 s3, 100000')
    a('s_cbranch_scc1 %s' % LD)
    a('s_sleep 4')
    late_loads(a, part, R)
    a('s_waitcnt vmcnt(0)')
    a('s_branch %s' % LP)
    a.label(LD)


def wloads(base_sgpr, slots, frags, srd='s[4:7]', tagp='w', special=None):
    gs = wloads0(base_sgpr, slots, frags, srd, tagp, special)
    bit = {'wq': 1, 'wo': 2, 'w1': 4, 'w2': 8}[tagp]
    if OPT['wnt'] & bit:
        for g in gs:
            g[-1] = ('i', g[-1][1] + ' nt', g[-1][2])
    return gs


def wloads0(base_sgpr, slots, frags, srd='s[4:7]', tagp='w', special=None):
    groups = []
    cur = None
    for f in frags:
        g = []
        if special and f in special:
            sreg, off = special[f]
            g.append(('i', 'buffer_load_dwordx4 %s, v1, %s, s%d offen offset:%d' % (slot_reg(slots[f]), srd, sreg, off), tagp))
            groups.append(g)
            continue
        blk = f // 4
        if blk != cur:
            g.append(('i', 's_add_u32 s%d, s%d, %d' % (S_PF, base_sgpr, blk * 4096), None))
            cur = blk
        g.append(('i', 'buffer_load_dwordx4 %s, v1, %s, s%d offen offset:%d' % (slot_reg(slots[f]), srd, S_PF, (f % 4) * 1024), tagp))
        groups.append(g)
    return groups


def w2loads(frags):
    sp = {65 + q: (S_W2X, q * 1024) for q in range(4)}
    groups = wloads(S_W2, W2_SL, [f for f in frags if f != 69], tagp='w2', special=sp)
    if 69 in frags:
        groups.append([('i', 's_add_u32 s%d, s%d, 4096' % (S_PF, S_W2X), None),
                       ('i', 'buffer_load_dwordx4 %s, v1, s[4:7], s%d offen' % (slot_reg(W2_SL[69]), S_PF), 'w2')])
    return groups


def now(a, gs):
    for g in gs:
        for it in g:
            a.emit_item(it)


def gen_setup(a):
    a('s_lshl_b32 s40, s%d, 2' % S_J)
    a('s_add_u32 s40, s40, s%d' % S_W)
    make_srd(a, 12, 80, 2048 * 1280)
    a('s_min_u32 s%d, s40, 53' % S_BLK)
    a('s_mul_i32 s%d, s%d, 40960' % (S_W1, S_BLK))
    a('s_add_u32 s%d, s%d, %d' % (S_W1, S_W1, W1_T))
    a('s_mul_i32 s41, s%d, 20' % S_CG)
    a('s_mul_i32 s3, s%d, 5' % S_W)
    a('s_add_u32 s41, s41, s3')
    a('s_mul_i32 s41, s41, 5120')
    a('s_add_u32 s%d, s41, %d' % (S_WO, WO_T))
    a('s_mul_i32 s%d, s%d, 14' % (S_KS0, S_W))
    a('s_cmp_eq_u32 s%d, 3' % S_W)
    a('s_cselect_b32 s3, 1, 0')
    a('s_sub_u32 s%d, s%d, s3' % (S_KS0, S_KS0))
    a('s_mul_i32 s41, s%d, 54' % S_CG)
    a('s_add_u32 s41, s41, s%d' % S_KS0)
    a('s_mul_i32 s41, s41, 5120')
    a('s_add_u32 s%d, s41, %d' % (S_W2, W2_T))
    a('s_add_u32 s41, s%d, %d' % (S_W2, 65 * 1024))
    a('s_cmp_ge_u32 s%d, 2' % S_W)
    a('s_cselect_b32 s%d, %d, s41' % (S_W2X, OOB))
    a('s_lshl_b32 s%d, s%d, 8' % (S_TFL, S_TEAM))
    a('s_add_u32 s%d, s%d, %d' % (S_TFL, S_TFL, FL))
    a('s_lshl_b32 s3, s40, 2')
    a('s_add_u32 s%d, s%d, s3' % (S_FLAG, S_TFL))
    a('s_mov_b32 s%d, 0' % S_PH)
    a('s_mov_b32 s%d, 0' % S_XOFF)
    a('s_and_b32 s3, s%d, 7' % S_TEAM)
    a('s_cmp_eq_u32 s3, 0')
    a('s_cselect_b32 s41, 0, 1')
    a('s_sub_u32 s41, s%d, s41' % S_TEAM)
    a('s_lshl_b32 s41, s41, 3')
    a('s_add_u32 s41, s41, 7')
    a('s_mul_i32 s%d, s41, 20480' % S_HSRC)
    a('s_add_u32 s%d, s%d, %d' % (S_HSRC, S_HSRC, XB[0]))
    a('s_lshl_b32 s%d, s41, 10' % S_HSTS)
    a('s_add_u32 s%d, s%d, %d' % (S_HSTS, S_HSTS, STB[0]))
    a('v_and_b32 v70, 15, v0')
    a('v_lshrrev_b32 v71, 4, v0')
    a('v_lshlrev_b32 v71, 2, v71')
    a('v_sub_u32 v71, v71, v70')
    a('v_mov_b32 v72, 0x%x' % f32bits(-1e30))
    a('v_mov_b32 v73, 0xffff')
    a('v_mov_b32 v74, 0xffff0000')
    a('s_and_b32 s3, s%d, 7' % S_TEAM)
    a('s_or_b32 s3, s3, s%d' % S_W)
    a('s_cmp_lg_u32 s3, 0')
    a('s_cselect_b64 s[42:43], -1, 0')
    for e in range(4):
        a('v_add_u32 v75, %d, v71' % (e + 7))
        a('v_cmp_ge_u32 vcc, 7, v75')
        a('v_cndmask_b32 v%d, v72, 0, vcc' % (BIASC + e))
        a('v_cndmask_b32 v76, 0, v%d, vcc' % (73 + (e & 1)))
        if e & 1:
            a('v_or_b32 v%d, v%d, v76' % (MASKC + (e >> 1), MASKC + (e >> 1)))
        else:
            a('v_mov_b32 v%d, v76' % (MASKC + (e >> 1)))
        a('v_cmp_le_i32 vcc, 16, v75')
        a('v_cndmask_b32 v%d, v72, 0, vcc' % (BIASP + e))
        a('v_cndmask_b32 v76, 0, v%d, vcc' % (73 + (e & 1)))
        if e & 1:
            a('v_or_b32 v%d, v%d, v76' % (MASKP + (e >> 1), MASKP + (e >> 1)))
        else:
            a('v_mov_b32 v%d, v76' % (MASKP + (e >> 1)))
        a('v_cndmask_b32 v%d, v72, v%d, s[42:43]' % (BIASP0 + e, BIASP + e))


def late_consts(a):
    a('v_lshrrev_b32 v162, 4, v0')
    a('v_lshlrev_b32 v162, 3, v162')
    make_srd(a, 8, 74, 1728 * 2)
    a('s_lshl_b32 s3, s%d, 6' % S_BLK)
    a('buffer_load_dwordx2 %s, v162, s[8:11], s3 offen' % vr(B1R, 2))
    a('buffer_load_dwordx2 %s, v162, s[8:11], s3 offen offset:32' % vr(B1R + 2, 2))
    make_srd(a, 8, 78, 640 * 2)
    for s in range(5):
        a('buffer_load_dwordx2 %s, v162, s[8:11], s%d offen offset:%d' % (vr(B2R + 2 * s, 2), S_COL, 32 * s))


AQ0, AQ1, AK, AV1, AV2, AO2 = 152, 153, 154, 155, 156, 157
C_SCALE = (20 ** -0.5) * math.log2(math.e)


def attn_addr(a, T):
    a('s_mul_i32 s47, s%d, %d' % (S_W, TP))
    a('s_add_u32 s47, s47, %d' % L_SCR)
    a('v_and_b32 v%d, 15, v0' % T)
    a('v_mul_u32_u24 v%d, 272, v%d' % (T, T))
    a('v_add_u32 v%d, s47, v%d' % (T, T))
    a('v_lshrrev_b32 v%d, 4, v0' % (T + 1))
    a('v_lshlrev_b32 v%d, 3, v%d' % (T + 1, T + 1))
    for reg, tab in ((AQ0, (0, 1, 4, 16)), (AQ1, (2, 3, 15, 16)), (AK, (5, 6, 9, 9))):
        c = sum(t << (8 * i) for i, t in enumerate(tab))
        a('s_mov_b32 s3, 0x%x' % c)
        a('v_bfe_u32 v%d, s3, v%d, 8' % (reg, T + 1))
        a('v_lshl_add_u32 v%d, v%d, 4, v%d' % (reg, reg, T))
    a('v_lshrrev_b32 v%d, 2, v0' % AV2)
    a('v_mul_u32_u24 v%d, 272, v%d' % (AV2, AV2))
    a('v_add_u32 v%d, s47, v%d' % (AV2, AV2))
    a('v_and_b32 v%d, 3, v0' % T)
    a('v_lshl_add_u32 v%d, v%d, 3, v%d' % (AV1, T, AV2))
    a('v_mov_b32 v%d, 0x%x' % (T, OOB))
    a('v_cmp_gt_u32 vcc, 16, v0')
    a('v_cndmask_b32 v%d, v%d, v1, vcc' % (AO2, T))
    a('s_lshl_b32 s47, s%d, 3' % S_TEAM)
    a('s_add_u32 s47, s47, s%d' % S_W)
    a('s_mul_i32 s47, s47, 20480')
    a('s_mul_i32 s3, s%d, 1280' % S_J)
    a('s_add_u32 s47, s47, s3')
    a('s_mul_i32 s3, s%d, %d' % (S_PASS, XSZ))
    a('s_add_u32 s47, s47, s3')
    a('s_add_u32 s47, s47, %d' % OB[0])
    a('s_mov_b32 s48, 0x%x' % f32bits(C_SCALE))


def attn_units(r, units, OUTS):
    for (b, h, Q, K, S) in units:
        off = b * 4 * TP
        tg = 'q%d%d' % (b, h)
        r('ds_read_b128 %s, v%d offset:%d' % (vr(Q, 4), AQ1 if h else AQ0, off + TP), tag=tg)
        r('ds_read_b128 %s, v%d offset:%d' % (vr(K, 4), AK, off + 80 * h), tag=tg)
        r('ds_read_b128 %s, v%d offset:%d' % (vr(K + 4, 4), AK, off + 80 * h + TP), tag=tg)
    for (b, h, Q, K, S) in units:
        off = b * 4 * TP
        r.wait_lg('q%d%d' % (b, h))
        r('v_mfma_f32_16x16x32_bf16 %s, %s, %s, %s' % (vr(S, 4), vr(K, 4), vr(Q, 4), vr(BIASP0 if b == 0 else BIASP, 4)))
        r('v_mfma_f32_16x16x32_bf16 %s, %s, %s, %s' % (vr(S + 4, 4), vr(K + 4, 4), vr(Q, 4), vr(BIASC, 4)))
    for (b, h, Q, K, S) in units:
        off = b * 4 * TP
        for i in range(2):
            r('ds_read_b64_tr_b16 %s, v%d offset:%d' % (vr(K + 2 * i, 2), AV1, off + i * TP + 112 + 80 * h), tag='v%d%d' % (b, h))
            r('ds_read_b64_tr_b16 %s, v%d offset:%d' % (vr(K + 4 + 2 * i, 2), AV2, off + i * TP + 152 + 80 * h), tag='v%d%d' % (b, h))

    def each(fn):
        for (b, h, Q, K, S) in units:
            fn(Q, S)
    for e in range(4):
        each(lambda Q, S: r('v_max_f32 v%d, v%d, v%d' % (S + e, S + e, S + 4 + e)))
    each(lambda Q, S: r('v_max3_f32 v%d, v%d, v%d, v%d' % (S + 4, S, S + 1, S + 2)))
    each(lambda Q, S: r('v_max_f32 v%d, v%d, v%d' % (S + 4, S + 4, S + 3)))
    Ss = [u[4] for u in units]
    A, B, C, D = [x + 4 for x in Ss]
    r('v_permlane32_swap_b32 v%d, v%d' % (A, B))
    r('v_permlane32_swap_b32 v%d, v%d' % (C, D))
    r('v_max_f32 v%d, v%d, v%d' % (A, A, B))
    r('v_max_f32 v%d, v%d, v%d' % (C, C, D))
    r('v_permlane16_swap_b32 v%d, v%d' % (A, C))
    r('v_max_f32 v%d, v%d, v%d' % (A, A, C))
    r('v_mul_f32 v%d, s48, v%d' % (A, A))
    r('v_mov_b32 v%d, v%d' % (C, A))
    r('v_permlane16_swap_b32 v%d, v%d' % (A, C))
    r('v_mov_b32 v%d, v%d' % (B, A))
    r('v_mov_b32 v%d, v%d' % (D, C))
    r('v_permlane32_swap_b32 v%d, v%d' % (A, B))
    r('v_permlane32_swap_b32 v%d, v%d' % (C, D))
    for e in range(4):
        each(lambda Q, S: r('v_fma_f32 v%d, v%d, s48, -v%d' % (S + e, S + e, S + 4)))
    for e in range(4):
        each(lambda Q, S: r('v_exp_f32 v%d, v%d' % (S + e, S + e)))
    for q in range(4):
        r('v_mov_b32 v%d, 0x%x' % (144 + q, ONES))
    for q in range(2):
        each(lambda Q, S: r('v_cvt_pk_bf16_f32 v%d, v%d, v%d' % (S + 4 + q, S + 2 * q, S + 2 * q + 1)))
    for q, (m, x) in enumerate(((MASKP, 0), (MASKP + 1, 1), (MASKC, 0), (MASKC + 1, 1))):
        each(lambda Q, S: r('v_and_b32 v%d, v%d, v%d' % (Q + q, S + 4 + x, m)))
    for (b, h, Q, K, S) in units:
        r.wait_lg('v%d%d' % (b, h))
        r('v_mfma_f32_16x16x32_bf16 %s, %s, %s, 0' % (vr(S, 4), vr(K, 4), vr(Q, 4)))
        r('v_mfma_f32_16x16x32_bf16 %s, %s, %s, 0' % (vr(S + 4, 4), vr(K + 4, 4), vr(Q, 4)))
    for (b, h, Q, K, S) in units:
        r('v_mfma_f32_16x16x32_bf16 %s, v[144:147], %s, 0' % (vr(K + 4, 4), vr(Q, 4)))
    for b in range(2):
        r('s_add_u32 s%d, s47, %d' % (S_QA - b, b * 4 * 20480))
    for (b, h, Q, K, S) in units:
        r('v_rcp_f32 v%d, v%d' % (K + 4, K + 4))
    for (b, h, Q, K, S) in units:
        for q in range(4):
            r('v_pk_mul_f32 %s, %s, %s op_sel_hi:[1,0]' % (vr(S + 2 * q, 2), vr(S + 2 * q, 2), vr(K + 4, 2)))
    for bb in range(2):
        OUT = OUTS[bb]
        for (b, h, Q, K, S) in units:
            if b != bb:
                continue
            for t in range(2):
                for q in range(2):
                    r('v_cvt_pk_bf16_f32 v%d, v%d, v%d' % (OUT + 4 * t + 2 * h + q, S + 4 * t + 2 * q, S + 4 * t + 2 * q + 1))
        r('buffer_store_dwordx4 %s, v1, s[4:7], s%d offen sc1' % (vr(OUT, 4), S_QA - bb), tag='pub')
        r('buffer_store_dwordx4 %s, v%d, s[4:7], s%d offen offset:1024 sc1' % (vr(OUT + 4, 4), AO2, S_QA - bb), tag='pub')


P3_PENDING_W2 = []


def gen_nsplit(a, which):
    p1 = which == 1
    WSL = WQ_SL if p1 else W1_SL
    wtag = 'wq' if p1 else 'w1'
    CS = CS1 if p1 else CS3
    G = OPT['g1'] if p1 else OPT['g3']
    NSET = G + 1
    ACC0 = 64
    FR = 104
    STP = 136
    PK = 140
    VB = 148
    VSW, VSR = 150, 151
    VSTW = 158
    SRL = list(range(96, 104)) + list(range(140, 148))
    T0 = FR
    st_i = 10 if p1 else 30
    NT = 9 if p1 else 8
    xin = XB[0] if p1 else XB[1]
    stin = STB[0] if p1 else STB[1]
    LEAD = 3
    KC = 20 // G
    if p1:
        late = list(range(17 + OPT['burst4'], 40))
    else:
        late = []
        a.flush_m(pred=lambda g: g[-1][2] == wtag)

    def accset(T):
        return ACC0 + 8 * (T % NSET)

    a('s_mul_i32 s44, s%d, 5120' % S_W)
    a('s_mul_i32 s45, s%d, 163840' % S_TEAM)
    a('s_add_u32 s45, s45, s%d' % S_XOFF)
    per = 4 // G
    a('s_lshr_b32 s50, s%d, %d' % (S_W, {1: 2, 2: 1, 4: 0}[G]))
    a('s_and_b32 s51, s%d, %d' % (S_W, per - 1))
    a('s_mul_i32 s51, s51, 5120')
    a('s_mul_i32 s46, s50, 20480')
    a('s_add_u32 s46, s46, s45')
    a('s_add_u32 s46, s46, %d' % (xin - (20480 if p1 else 0)))
    if p1:
        a('s_cmp_eq_u32 s50, 0')
        a('s_cselect_b32 s46, s%d, s46' % S_HSRC)
    a('s_add_u32 s46, s46, s51')
    a('s_add_u32 s45, s45, s44')
    if p1:
        attn_addr(a, T0)
    a('v_lshrrev_b32 v%d, 4, v0' % T0)
    a('s_lshl_b32 s3, s%d, 2' % S_W)
    a('v_add_u32 v%d, s3, v%d' % (T0, T0))
    a('v_and_b32 v%d, 15, v0' % (T0 + 1))
    a('v_lshlrev_b32 v%d, 3, v%d' % (VSR, T0 + 1))
    a('v_lshl_add_u32 v%d, v%d, 10, v%d' % (T0 + 3, T0, VSR))
    a('v_add_u32 v%d, %d, v%d' % (VSR, L_STAT, VSR))
    a('v_min_u32 v%d, 11, v%d' % (VSTW, T0))
    a('v_lshl_add_u32 v%d, v%d, 7, v%d' % (VSTW, VSTW, VSR))
    a('s_lshl_b32 s40, s%d, 13' % S_TEAM)
    a('s_lshl_b32 s3, s%d, 18' % S_PASS)
    a('s_add_u32 s40, s40, s3')
    a('s_add_u32 s40, s40, %d' % (stin - (1024 if p1 else 0)))
    a('v_mov_b32 v%d, s40' % (T0 + 4))
    if p1:
        a('v_mov_b32 v%d, s%d' % (T0 + 5, S_HSTS))
        a('v_cmp_eq_u32 vcc, 0, v%d' % T0)
        a('v_cndmask_b32 v%d, v%d, v%d, vcc' % (T0 + 4, T0 + 4, T0 + 5))
    a('v_mov_b32 v%d, 0x%x' % (T0 + 5, OOB))
    a('v_cmp_gt_u32 vcc, %d, v%d' % (NT, T0))
    a('v_cndmask_b32 v%d, v%d, v%d, vcc' % (T0 + 4, T0 + 5, T0 + 4))
    a('v_add_u32 v%d, v%d, v%d' % (T0 + 3, T0 + 3, T0 + 4))
    a('v_mov_b32 v%d, v1' % VB)
    a('v_add_u32 v%d, %d, v1' % (VB + 1, 3 * SLOT))
    if p1:
        a('v_mul_u32_u24 v%d, 272, v%d' % (VSW, T0 + 1))
        a('v_lshl_add_u32 v%d, v%d, 4, v%d' % (VSW, T0, VSW))
        a('v_add_u32 v%d, %d, v%d' % (VSW, L_SCR, VSW))
    else:
        a('s_lshl_b32 s41, s%d, 3' % S_TEAM)
        a('s_mul_i32 s41, s41, 54')
        a('s_add_u32 s41, s41, s%d' % S_BLK)
        a('s_lshl_b32 s41, s41, 10')
        a('s_mul_i32 s3, s%d, %d' % (S_PASS, HSZ))
        a('s_add_u32 s41, s41, s3')
        a('s_add_u32 s41, s41, %d' % HB[0])
    a('s_mov_b32 s42, 0x%x' % f32bits(-1.0 / 640.0))
    a('s_mov_b32 s43, 0x%x' % f32bits(1e-5))

    def colsum():
        for q in range(4):
            a('v_mov_b32 v%d, 0x%x' % (STP + q, ONES))
        if not p1:
            for q in (3, 2, 1, 0):
                a('v_and_b32 v%d, 0xffff0000, v%d' % (B1R + 1 + 2 * q, B1R + q))
                a('v_lshlrev_b32 v%d, 16, v%d' % (B1R + 2 * q, B1R + q))
            a.wait_vm(wtag)
        for ks in range(20):
            for t in range(2):
                d = vr(PK + 4 * t, 4)
                a('v_mfma_f32_16x16x32_bf16 %s, %s, %s, %s' % (d, slot_reg(WSL[ks * 2 + t]), vr(STP, 4), '0' if ks == 0 else d))
        for q in range(8):
            a('v_mov_b32 v%d, v%d' % (CS + q, PK + q))

    def pass0(fn):
        L = a.newlabel('p0')
        a('s_cmp_lg_u32 s%d, 0' % S_PASS)
        a('s_cbranch_scc1 %s' % L)
        vm0 = list(a.vm)
        fn()
        a.label(L)
        a.vm = vm0

    if p1:
        LS = a.newlabel('p1_nowait')
        a('s_cmp_eq_u32 s%d, 0' % S_PASS)
        a('s_cbranch_scc1 %s' % LS)
        poll(a, S_TFL, 's%d' % S_PH)
        LH = a.newlabel('p1_nohalo')
        a('s_and_b32 s49, s%d, 7' % S_TEAM)
        a('s_cmp_eq_u32 s49, 0')
        a('s_cbranch_scc1 %s' % LH)
        a('s_lshl_b32 s49, s%d, 7' % S_TEAM)
        a('s_add_u32 s49, s49, %d' % (HF - 128))
        poll(a, 49, '1', lanes=0xff)
        a.label(LH)
        LG = a.newlabel('p1_go')
        a('s_branch %s' % LG)
        a.label(LS)
        first_deps(a)
        a.label(LG)
        a.vm = []
    else:
        pass0(colsum)
        poll(a, S_TFL, 's%d' % S_PH)
    stamp(a, st_i)
    LSKIP = None
    if not p1:
        LSKIP = a.newlabel('p3_skip')
        a('s_cmp_ge_u32 s%d, 14' % S_J)
        a('s_cbranch_scc1 %s' % LSKIP)

    def unit_dma(u):
        gs = []
        if u < G:
            sb, go = 46, u * KC * 1024
        else:
            sb, go = 45, xin + (u - 1 if p1 else u) * SLOT
        for i in range(5):
            g = []
            if i % 4 == 0:
                g.append(('i', 's_add_u32 m0, s44, %d' % ((u % NSLOT) * SLOT + i * 1024), None))
                g.append(('i', 's_add_u32 s%d, s%d, %d' % (S_DMA, sb, go + i * 1024), None))
            g.append(('i', 'buffer_load_dwordx4 v1, s[4:7], s%d offen offset:%d%s lds' % (S_DMA, (i % 4) * 1024, LDM()), 'd%d' % u))
            gs.append(g)
        return gs

    seq = []
    for u in range(NT):
        if u < G:
            for kk in range(KC):
                for tl in range(G):
                    seq.append((u, tl, u * KC + kk, tl * KC + kk))
        else:
            for ks in range(20):
                seq.append((u, u, ks, ks))

    lateg = {}
    for g, f in zip(wloads(S_WQ, WQ_SL, late, tagp='wq'), late):
        c = min((f // 2) // KC, G - 1)
        g[-1] = ('i', g[-1][1], 'wq%d' % c)
        lateg.setdefault(c, []).append(g)

    now(a, lateg.get(0, []))
    now(a, unit_dma(0))
    stl = [[('i', 'buffer_load_dwordx2 %s, v%d, s[4:7], 0 offen offset:%d%s' % (vr(SRL[2 * q], 2), 159, 128 * q, LDM()), 'dst')] for q in range(8)]
    a('v_mov_b32 v159, v%d' % (T0 + 3))
    inl = (not p1) and OPT['st3'] and G >= 2
    if not inl:
        now(a, stl)
    now(a, unit_dma(1))
    if p1:
        pass0(lambda: now(a, wloads(S_WQ, WQ_SL, range(10, 17 + OPT['burst4']), tagp='wq')))
        a('s_mov_b32 s3, 0x%x' % OOB)
        a('buffer_load_dword v163, v%d, s[4:7], s3 offen' % VZ, tag='wqE')
    r = Rec()
    r.wait_vm('dst')
    for lvl in (8, 4, 2):
        for q in range(lvl):
            r('v_add_f32 v%d, v%d, v%d' % (SRL[q], SRL[q], SRL[lvl + q]))
    S0, S1 = SRL[0], SRL[1]
    r('v_mul_f32 v%d, s42, v%d' % (S0, S0))
    r('v_mul_f32 v%d, s42, v%d' % (S1, S1))
    r('v_fma_f32 v%d, v%d, v%d, v%d' % (S1, S0, S0, S1))
    r('v_min_f32 v%d, 0, v%d' % (S1, S1))
    r('v_cvt_pk_bf16_f32 v%d, v%d, v%d' % (S1, S0, S1))
    r('v_lshlrev_b32 v%d, 16, v%d' % (S0, S1))
    r('v_and_b32 v%d, 0xffff0000, v%d' % (S1, S1))
    r('v_sub_f32 v%d, s43, v%d' % (S1, S1))
    r('v_cvt_pk_bf16_f32 v%d, 0, v%d' % (S1, S1))
    r('v_sqrt_f32 v%d, v%d' % (S1, S1))
    r('v_cvt_pk_bf16_f32 v%d, 0, v%d' % (S1, S1))
    r('v_rcp_f32 v%d, v%d' % (S1, S1))
    r('ds_write_b64 v%d, %s' % (VSTW, vr(S0, 2)), tag='stw')
    stats_items = r.items
    a.wait_vm('d0')
    a.wait_lg_all()
    a('s_barrier')
    stamp(a, st_i + 1)
    held = []
    if p1:
        held = wloads(S_WO, WO_SL, range(25), tagp='wo') + wloads(S_W1, W1_SL, range(22), tagp='w1')
    a.qm = (stl if inl else []) + lateg.get(1, []) + unit_dma(2) + lateg.get(2, []) + unit_dma(3) + lateg.get(3, []) + a.qm

    NF = NT * 20
    DEPTH = 6

    def rd(n):
        u, tl, ks, blk = seq[n]
        sl = u % NSLOT
        return ('i', 'ds_read_b128 %s, v%d offset:%d' % (vr(FR + 4 * (n % 8), 4), VB + sl // 3, (sl % 3) * SLOT + blk * 1024), 'f%d' % n)

    def epilogue(r, T, pk):
        b = accset(T)
        sp = STP + 2 * (T & 1)
        P = PK + 4 * (T & 1)
        if not p1:
            r('s_add_u32 s%d, s41, %d' % (S_QV, T * 55296))
        r.wait_lg('sp%d' % T)
        if pk:
            for q in range(4):
                r('v_pk_fma_f32 %s, %s, %s, %s op_sel_hi:[0,1,1]' % (vr(b + 2 * q, 2), vr(sp, 2), vr(CS + 2 * q, 2), vr(b + 2 * q, 2)))
            if p1:
                for q in range(4):
                    r('v_pk_mul_f32 %s, %s, %s op_sel:[1,0]' % (vr(b + 2 * q, 2), vr(sp, 2), vr(b + 2 * q, 2)))
            else:
                for q in range(4):
                    r('v_pk_fma_f32 %s, %s, %s, %s op_sel:[1,0,0]' % (vr(b + 2 * q, 2), vr(sp, 2), vr(b + 2 * q, 2), vr(B1R + 2 * q, 2)))
                for e in range(8):
                    r('v_max_f32 v%d, 0, v%d' % (b + e, b + e))
                for q in range(4):
                    r('v_pk_mul_f32 %s, %s, %s' % (vr(b + 2 * q, 2), vr(b + 2 * q, 2), vr(b + 2 * q, 2)))
        else:
            for e in range(8):
                r('v_fmac_f32 v%d, v%d, v%d' % (b + e, sp, CS + e))
            if p1:
                for e in range(8):
                    r('v_mul_f32 v%d, v%d, v%d' % (b + e, b + e, sp + 1))
            else:
                for e in range(8):
                    r('v_fma_f32 v%d, v%d, v%d, v%d' % (b + e, b + e, sp + 1, B1R + e))
                for e in range(8):
                    r('v_max_f32 v%d, 0, v%d' % (b + e, b + e))
                for e in range(8):
                    r('v_mul_f32 v%d, v%d, v%d' % (b + e, b + e, b + e))
        if T + 2 < NT:
            r.items.append(sp_read(T + 2))
        for q in range(4):
            r('v_cvt_pk_bf16_f32 v%d, v%d, v%d' % (P + q, b + 2 * q, b + 2 * q + 1))
        if p1:
            r('ds_write_b128 v%d, %s offset:%d' % (VSW, vr(P, 4), T * TP), tag='sw')
        else:
            r('buffer_store_dwordx4 %s, v1, s[4:7], s%d offen sc1' % (vr(P, 4), S_QV), tag='pub')
        r.items.append(('mark', T, None))

    def sp_read(T):
        return ('i', 'ds_read_b64 %s, v%d offset:%d' % (vr(STP + 2 * (T & 1), 2), VSR, T * 128), 'sp%d' % T)

    def flush_until(T):
        while any(it[0] == 'mark' and it[1] == T for it in a.qv):
            a.emit_item(a.qv.pop(0))

    if OPT['tstamp'] // 10 == which:
        a('s_memtime s[64:65]')
    for n in range(DEPTH):
        a.emit_item(rd(n))
    a.wait_lg('f1')
    nread = DEPTH
    quiet = OPT['quiet1'] if p1 else OPT['quiet3']
    a.pace = OPT['pace']
    edone = 0
    for n in range(NF):
        u, T, ks, blk = seq[n]
        pos = n % 20
        acc = accset(T)
        if pos == 0:
            if u >= NSET:
                flush_until(u - NSET)
            if u < G and u >= 1:
                a.flush_m(pred=lambda g: g[-1][2] == 'wq%d' % u)
                a.wait_vm('wq%d' % u)
            if p1 and u == 1:
                a.wait_vm('wqE')
                lg0 = list(a.lg)
                pass0(lambda: first_unit1(a))
                a.lg = lg0
            if p1 and u == OPT['lsu']:
                a.wait_vm('ls')
                pass0(lambda: late_sync(a, 0, 96))
            if u == G:
                if p1:
                    pass0(colsum)
                a.emit_item(sp_read(0))
                a.emit_item(sp_read(1))
        if p1 and n == OPT['lsu'] * 20 - 12:
            late_issue(a, 0, 96)
        if p1 and n == 8 * 20 - 30:
            late_issue(a, 1, 160)
        if p1 and n == 8 * 20 - 8:
            a.wait_vm('ls')
            pass0(lambda: late_sync(a, 1, 160))
        a.quiet = (NF - n) * 2 <= quiet
        for t in range(2):
            fg = []
            wait = None
            d = vr(acc + 4 * t, 4)
            if t == 0 and nread < NF:
                if nread % 20 == 0:
                    Tn = nread // 20
                    if Tn == (2 if inl else 1):
                        a.flush_v()
                        a.wait_lg('stw')
                    a.flush_m(pred=lambda g: g[-1][2] == 'd%d' % Tn)
                    a.wait_vm('d%d' % Tn)
                    a('s_barrier')
                    if OPT['tstamp'] == which * 10 + 3:
                        a('s_memtime s[%d:%d]' % (64 + 2 * Tn, 65 + 2 * Tn))
                    if p1 and Tn == OPT['lsu'] + 1:
                        a.qm += held
                    if Tn + LEAD < NT:
                        ps = max([i + 1 for i, g in enumerate(a.qm) if g[-1][2].startswith('d') or g[-1][2][:2] == 'wq'] + [0])
                        a.qm[ps:ps] = unit_dma(Tn + LEAD)
                fg.append(rd(nread))
                nread += 1
            if t == 1 and (n & 1) == 1 and n + 1 < NF:
                wait = ('wl', 'f%d' % min(n + 2, NF - 1), None)
            a.mfma('v_mfma_f32_16x16x32_bf16 %s, %s, %s, %s' % (d, slot_reg(WSL[ks * 2 + t]), vr(FR + 4 * (n % 8), 4), '0' if ks == 0 else d), fg, wait)
        if (n == 22 and inl) or (n == 1 and not inl):
            a.flush_m(pred=lambda g: g[-1][2] == 'dst')
            a.qv += stats_items
        if pos == 3 and u >= G:
            while edone < u:
                r = Rec()
                epilogue(r, edone, False)
                a.qv += r.items
                edone += 1
    a.quiet = False
    a.flush_v()
    if OPT['tstamp'] // 10 == which:
        a('s_memtime s[82:83]')
        a('s_waitcnt lgkmcnt(0)')
        a.lg = []
        a('s_lshl_b32 s99, s2, 2')
        a('s_add_u32 s99, s99, s%d' % S_W)
        a('s_lshl_b32 s99, s99, 9')
        a('s_lshl_b32 s98, s%d, 8' % S_PASS)
        a('s_add_u32 s99, s99, s98')
        a('s_add_u32 s99, s99, %d' % STAMP_BASE)
        a('s_mov_b64 exec, 1')
        for q in range(10):
            a('v_mov_b32 v163, s%d' % (64 + 2 * q))
            a('buffer_store_dword v163, v%d, s[4:7], s99 offen offset:%d' % (VZ, 4 * q), tag='stamp')
        a('s_mov_b64 exec, -1')
    stamp(a, st_i + 2)
    if p1:
        a.qm += wloads(S_W1, W1_SL, range(22, 40), tagp='w1') + w2loads(range(22))
    else:
        a.qm += w2loads(range(47, 70)) + wloads(S_WQ, WQ_SL, range(17), srd='s[16:19]', tagp='wq')
    if p1:
        a.flush_m(OPT['tail1'])
    r = Rec()
    epilogue(r, NT - 1, True)
    a.run(r, every=0)
    if p1:
        a.wait_lg_all()
        a('s_barrier')
        stamp(a, st_i + 3)
        r = Rec()
        attn_units(r, [(0, 0, 64, 68, 76), (0, 1, 84, 88, 96), (1, 0, 104, 108, 116), (1, 1, 124, 128, 136)], (64, 104))
        half = len(r.items) // 2
        r2 = Rec()
        r2.items = r.items[half:]
        r.items = r.items[:half]
        a.run(r, every=OPT['aevery'])
        a.run(r2, every=0)
        stamp(a, st_i + 4)
        publish(a)
        a.flush_m(OPT['burst1'])
    else:
        LJ = a.newlabel('p3_join')
        stamp(a, st_i + 4)
        publish(a)
        a.flush_m(pred=lambda g: g[-1][2] == 'w2')
        a('s_branch %s' % LJ)
        vm_main = list(a.vm)
        a.label(LSKIP)
        a.vm = []
        publish(a)
        now(a, w2loads(P3_PENDING_W2 + list(range(47, 70))))
        a.label(LJ)
        a.vm = vm_main
    stamp(a, st_i + 5)


def gen_ksplit(a, which):
    p2 = which == 2
    NK = 5 if p2 else 14
    KS = 20 if p2 else 54
    WSL = WO_SL if p2 else W2_SL
    wtag = 'wo' if p2 else 'w2'
    ACC = [64, 84]
    RING = 104
    NR = 14
    VW = 160
    VRD = 161
    st_i = 20 if p2 else 40
    a.flush_m(pred=lambda g: g[-1][2] == wtag)
    a('s_lshl_b32 s40, s%d, 3' % S_TEAM)
    a('s_lshr_b32 s3, s%d, 3' % S_J)
    a('s_lshl_b32 s3, s3, 2')
    a('s_add_u32 s40, s40, s3')
    a('s_mul_i32 s40, s40, %d' % KS)
    if p2:
        a('s_mul_i32 s3, s%d, 5' % S_W)
        a('s_add_u32 s40, s40, s3')
    else:
        a('s_add_u32 s40, s40, s%d' % S_KS0)
    a('s_lshl_b32 s40, s40, 10')
    a('s_mul_i32 s3, s%d, %d' % (S_PASS, XSZ if p2 else HSZ))
    a('s_add_u32 s40, s40, s3')
    a('s_add_u32 s40, s40, %d' % (OB[0] if p2 else HB[0]))
    for i in range(4):
        a('s_add_u32 s3, s%d, %d' % (S_W, 1 + i))
        a('s_and_b32 s3, s3, 3')
        a('s_mul_i32 s%d, s3, %d' % (41 + i, KS * 1024))
        a('s_add_u32 s%d, s%d, s40' % (41 + i, 41 + i))
        if i < 3:
            a('s_mul_i32 s%d, s3, 15360' % (52 + i))
        if not p2:
            a('s_add_u32 s%d, s%d, %d' % (48 + i, 41 + i, 13 * 1024))
            a('s_cmp_ge_u32 s%d, 2' % S_W)
            a('s_cselect_b32 s%d, %d, s%d' % (48 + i, OOB, 48 + i))
    a('s_mul_i32 s3, s%d, 15360' % S_W)
    a('v_add_u32 v%d, s3, v1' % VRD)
    xout = XB[1] if p2 else XB[2]
    stout = STB[1] if p2 else STB[2]
    a('s_add_u32 s36, s%d, s%d' % (S_XT, S_XOFF))
    a('s_add_u32 s36, s36, %d' % xout)
    a('s_lshl_b32 s3, s%d, 18' % S_PASS)
    a('s_add_u32 s37, s%d, s3' % S_STT)
    a('s_add_u32 s37, s37, %d' % stout)
    if not p2:
        a('s_lshl_b32 s38, s%d, 7' % S_TEAM)
        a('s_lshl_b32 s3, s%d, 2' % S_CG)
        a('s_add_u32 s38, s38, s3')
        a('s_add_u32 s38, s38, %d' % HF)
        a('s_cmp_eq_u32 s%d, 7' % S_MT)
        a('s_cselect_b32 s38, s38, %d' % OOB)
    poll(a, S_TFL, 's%d' % S_PH)
    stamp(a, st_i)
    seq = [(i, k) for i in range(4) for k in range(NK)]

    def ld(n):
        i, k = seq[n]
        g = []
        reg = vr(RING + 4 * (n % NR), 4)
        if (not p2) and k == 13:
            g.append(('i', 'buffer_load_dwordx4 %s, v1, s[4:7], s%d offen%s' % (reg, 48 + i, LDM()), 'a%d' % n))
            return g
        if k % 4 == 0:
            g.append(('i', 's_add_u32 s%d, s%d, %d' % (S_DMA, 41 + i, k * 1024), None))
        g.append(('i', 'buffer_load_dwordx4 %s, v1, s[4:7], s%d offen offset:%d%s' % (reg, S_DMA, (k % 4) * 1024, LDM()), 'a%d' % n))
        return g

    nld = OPT['kfirst']
    for n in range(nld):
        for it in ld(n):
            a.emit_item(it)
    own = ACC[1]
    ini = Rec()
    for q in range(10):
        ini('v_lshlrev_b32 v%d, 16, v%d' % (own + 2 * q, XRES + q))
        ini('v_and_b32 v%d, 0xffff0000, v%d' % (own + 2 * q + 1, XRES + q))
    if not p2:
        for q in range(10):
            ini('v_lshlrev_b32 v162, 16, v%d' % (B2R + q))
            ini('v_add_f32 v%d, v%d, v162' % (own + 2 * q, own + 2 * q))
            ini('v_and_b32 v162, 0xffff0000, v%d' % (B2R + q))
            ini('v_add_f32 v%d, v%d, v162' % (own + 2 * q + 1, own + 2 * q + 1))
    n = 0
    PS = ACC[0]
    for i in range(4):
        acc = ACC[i & 1]
        cnt = 0
        a.flush_v()
        for k in range(NK):
            a.quiet = (len(seq) - n) * 5 <= OPT['quiet4']
            a.wait_vm('a%d' % n)
            for s in range(5):
                d = vr(acc + 4 * s, 4)
                fg = []
                if nld < len(seq) and ((s == 4 and nld <= n + NR) or (s in (0, 2) and nld < n + NR)):
                    fg = ld(nld)
                    nld += 1
                first = (k == 0 and i != 3)
                a.mfma('v_mfma_f32_16x16x32_bf16 %s, %s, %s, %s' % (d, slot_reg(WSL[k * 5 + s]), vr(RING + 4 * (n % NR), 4), '0' if first else d), fg)
                cnt += 1
                if cnt == 3 and i >= 1:
                    pacc = ACC[(i - 1) & 1]
                    r = Rec()
                    r('v_add_u32 v%d, s%d, v1' % (VW, 52 + i - 1))
                    for s2 in range(5):
                        r('ds_write_b128 v%d, %s offset:%d' % (VW, vr(pacc + 4 * s2, 4), ((i - 1) * 5 + s2) * 1024), tag='pw')
                    if i == 2:
                        r.delay(3)
                        r.wait_lg('pw')
                        r.items += ini.items
                    a.qv += r.items
                if i == 3 and cnt == (14 if p2 else 30):
                    a.flush_v()
                    a.wait_lg_all()
                    a('s_barrier')
                    r = Rec()
                    for s2 in range(5):
                        r('ds_read_b128 %s, v%d offset:%d' % (vr(PS + 4 * s2, 4), VRD, s2 * 1024), tag='pr0')
                    a.qv += r.items
            n += 1
    a.quiet = False
    a.flush_v()
    stamp(a, st_i + 1)
    if p2:
        a.qm += w2loads(range(22, 47))
    else:
        a.qm += wloads(S_WQ, WQ_SL, range(17, 17 + OPT['burst4']), srd='s[16:19]', tagp='wq')
    for src in (1, 2):
        for s2 in range(5):
            a('ds_read_b128 %s, v%d offset:%d' % (vr(RING + (src - 1) * 20 + 4 * s2, 4), VRD, (src * 5 + s2) * 1024), tag='pr%d' % src)
    a.flush_m(OPT['tail2'] if p2 else OPT['tail4'])
    tile5_voff(a, 144, 145)
    stat_voff(a, 145, 146)
    a.wait_lg('pr0')
    for q in range(10):
        a('v_pk_add_f32 %s, %s, %s' % (vr(own + 2 * q, 2), vr(own + 2 * q, 2), vr(PS + 2 * q, 2)))
    for src in (1, 2):
        a.wait_lg('pr%d' % src)
        for q in range(10):
            a('v_pk_add_f32 %s, %s, %s' % (vr(own + 2 * q, 2), vr(own + 2 * q, 2), vr(RING + (src - 1) * 20 + 2 * q, 2)))
    for q in range(10):
        a('v_cvt_pk_bf16_f32 v%d, v%d, v%d' % (XRES + q, own + 2 * q, own + 2 * q + 1))
    LF = None
    if not p2:
        LF = a.newlabel('final')
        a('s_cmp_eq_u32 s%d, 1' % S_PASS)
        a('s_cbranch_scc1 %s' % LF)
    store_tile(a, XRES, 36, 144)
    tile_stats(a, XRES, 64)
    a('buffer_store_dwordx2 v[64:65], v145, s[4:7], s37 offen sc1', tag='pub')
    stamp(a, st_i + 2)
    publish(a)
    if not p2:
        a('s_mov_b64 exec, 1')
        a('buffer_store_dword v162, v%d, s[4:7], s38 offen sc1' % VZ)
        a('s_mov_b64 exec, -1')
    else:
        a.flush_m(OPT['burst2'])
    stamp(a, st_i + 3)
    return LF


def main(out):
    global P3_PENDING_W2
    a = Sched()
    name = KNAME + '_kernel'
    a.raw('; @launch grid=(256,1,1) block=(256,1,1) lds=%d' % LDS_SIZE)
    a.raw('.amdgcn_target "amdgcn-amd-amdhsa--gfx950"')
    a.raw('.text')
    a.raw('.globl %s' % name)
    a.raw('.p2align 8')
    a.raw('.type %s,@function' % name)
    a.raw('%s:' % name)
    END = 'k_end'
    gen_prologue(a, END)
    gen_prep(a)
    gen_setup(a)
    gen_roles(a)
    stamp(a, 4)
    a.label('pass_loop')
    gen_nsplit(a, 1)
    gen_ksplit(a, 2)
    a.flush_m(pred=lambda g: g[-1][2] == 'w1')
    pend = []
    for g in a.qm:
        reg = g[-1][1].split()[1].rstrip(',')
        pend.append([i for i in range(70) if slot_reg(W2_SL[i]) == reg][0])
    P3_PENDING_W2 = pend
    a.qm = w2loads(pend)
    gen_nsplit(a, 3)
    LF = gen_ksplit(a, 4)
    a.flush_m()
    a('s_mov_b32 s%d, 1' % S_PASS)
    a('s_mov_b32 s%d, %d' % (S_XOFF, 2 * XSZ))
    a('s_mov_b32 s18, 0')
    a('s_add_u32 s%d, s%d, %d' % (S_HSRC, S_HSRC, 2 * XSZ))
    a('s_add_u32 s%d, s%d, %d' % (S_HSTS, S_HSTS, 2 * STSZ))
    a('s_branch pass_loop')
    a.label(LF)
    rowmajor_voff(a, 64, 65)
    for s in range(5):
        a('buffer_store_dwordx2 %s, v64, s[12:15], s%d offen offset:%d' % (vr(XRES + 2 * s, 2), S_RM, 32 * s))
    stamp(a, 50)
    a.label(END)
    a('s_endpgm')
    a.raw('code_end:')
    a.raw('.section .rodata,"a"')
    a.raw('.p2align 6')
    a.raw('.amdhsa_kernel %s' % name)
    a.raw('  .amdhsa_next_free_vgpr 512')
    a.raw('  .amdhsa_next_free_sgpr 102')
    a.raw('  .amdhsa_accum_offset 256')
    a.raw('  .amdhsa_group_segment_fixed_size 0')
    a.raw('  .amdhsa_kernarg_size 88')
    a.raw('  .amdhsa_user_sgpr_count 2')
    a.raw('  .amdhsa_user_sgpr_kernarg_segment_ptr 1')
    a.raw('  .amdhsa_system_sgpr_workgroup_id_x 1')
    a.raw('.end_amdhsa_kernel')
    open(out, 'w').write(a.text())
    print('instructions:', a.nins, 'ws end', WS_END)


if __name__ == '__main__':
    out = sys.argv[1] if len(sys.argv) > 1 else 'cdna_kernels/%s.s' % KNAME
    for o in sys.argv[2:]:
        if '=' in o:
            k, v = o.split('=')
            OPT[k] = int(v)
        else:
            OPT[o] = True
    main(out)
```

```python
import sys, math, struct
sys.path.insert(0, 'work')
from asmlib import Sched, Rec, vr, ar, sr

KNAME = 'interleave_layers__sliding_local_dilated__dense_activation_squared_relu__prompt'

OPT = dict(stamps=False, fake_xcc=0, force_slow=False, gsleep=2, quiet1=0, quiet3=30, quiet4=20,
           burst1=8, burst2=8, pace=4, tstamp=0, attn_loop=1, ldsc1=1, wnt=0, gen_pos=0, burst4=8, g1=4, g3=2, tail1=8, tail2=4, tail4=4, aevery=20, lsu=4, cpf=1, kfirst=6, st3=0, csi=1, fastattn=1, dstamp=-1)

WS_SIZE = 268435456
WQKV_T = 0
WO_T = WQKV_T + 16 * 163840
W1_T = WO_T + 8 * 20 * 5 * 1024
W2_T = W1_T + 54 * 20 * 2 * 1024
XSZ = 16 * 8 * 20 * 1024
X0 = W2_T + 8 * 54 * 5 * 1024
XB = [X0 + i * XSZ for i in range(4)]
OB = [X0 + (4 + i) * XSZ for i in range(2)]
HSZ = 16 * 8 * 54 * 1024
HB = [X0 + 6 * XSZ + i * HSZ for i in range(2)]
STSZ = 16 * 8 * 1024
ST0 = HB[1] + HSZ
STB = [ST0 + i * STSZ for i in range(4)]
FL = ST0 + 4 * STSZ
HF = FL + 4096
PFQ = HF + 2048
PFX = PFQ + 16 * 256
PFG = PFX + 16 * 512
RXF = PFG + 1024 * 8
WS_END = RXF + 16 * 128
STAMP_BASE = 64 << 20
OOB = 0x40000000
ONES = 0x3F803F80

SLOT = 20480
NSLOT = 6
L_SCR = NSLOT * SLOT
TP = 16 * 272
L_STAT = L_SCR + 144 * 272
L_ROLE = L_STAT + 1536
LDS_SIZE = 163840

S_TEAM, S_J, S_W, S_FAST, S_PASS = 20, 21, 22, 23, 24
S_CG, S_MT = 25, 26
S_XT = 29
S_STT = 31
S_RM = 32
S_COL = 34
S_PF, S_DMA, S_QV, S_QA = 58, 57, 56, 55
S_KS0 = 59
S_FLAG, S_TFL = 60, 61
S_WQ, S_WO, S_W1, S_W2 = 62, 63, 88, 89
S_W2X, S_XOFF, S_BLK = 90, 91, 92
S_HSRC, S_HSTS = 93, 94
S_PH = 95
S_XCC, S_PFGA = 27, 28
S_N0, S_N1 = 100, 101

CS1, CS3, B1R, B2R, XRES = 2, 10, 18, 26, 36
BIASC, BIASP, BIASP0, MASKP, MASKC = 46, 50, 54, 58, 60
VL4 = 62
VZ = 63
VL8 = 161


def slot_reg(i):
    return ar(4 * i, 4) if i < 64 else vr(164 + 4 * (i - 64), 4)


_G = {}
_p = 0
for _n, _c in (('y', 25), ('z', 17), ('x', 1), ('u', 22), ('v', 22)):
    _G[_n] = list(range(_p, _p + _c))
    _p += _c
WQ_SL = _G['z'] + _G['x'] + _G['u']
WO_SL = _G['y']
W1_SL = _G['v'] + _G['x'] + _G['z']
W2_SL = _G['u'] + _G['y'] + _G['x'] + _G['v']


def xorder(sig):
    cg, i = divmod(sig, 10)
    if i < 8:
        f = 80 * cg + 32 * (i >> 2) + 4 * (i & 3)
        return f, f + 16
    f = 80 * cg + 8 * i
    return f, f + 4


def oorder(sig):
    j, i = divmod(sig, 5)
    f = 40 * j + 4 * i
    return f, f + 20


def horder(sig):
    f = 32 * (sig >> 2) + 4 * (sig & 3)
    return f, f + 16


def f32bits(x):
    return struct.unpack('<I', struct.pack('<f', x))[0]


def LDM():
    return ' sc1' if OPT['ldsc1'] else ''


DST = {0: 0, 1: 1, 3: 2, 11: 3, 12: 4, 20: 5, 30: 6, 40: 7, 50: 7}


def stamp(a, idx):
    if OPT['dstamp'] >= 0 and idx in DST:
        a('s_memrealtime s[96:97]')
        a('s_lshl_b32 s98, s%d, 5' % S_PASS)
        a('s_add_u32 s98, s98, %d' % (4 * (DST[idx] if idx != 50 else 0)))
        a('s_lshl_b32 s99, s2, 2')
        a('s_add_u32 s99, s99, s%d' % S_W)
        a('s_cmp_eq_u32 s99, %d' % (4 * OPT['dstamp']))
        a('s_cselect_b32 s98, s98, 0x1000')
        a('s_waitcnt lgkmcnt(0)')
        a.lg = []
        a('v_mov_b32 v163, s96')
        a('s_mov_b64 exec, 1')
        a('buffer_store_dword v163, v%d, s[84:87], s98 offen' % VZ, tag='stamp')
        a('s_mov_b64 exec, -1')
        return
    if not OPT['stamps']:
        return
    if idx in (11, 12, 31, 32, 40, 41):
        stamp2(a, 52 + (11, 12, 31, 32, 40, 41).index(idx), 's_memtime')
    stamp2(a, idx, 's_memrealtime')


def stamp2(a, idx, ins):
    a('%s s[96:97]' % ins)
    a('s_lshl_b32 s99, s2, 2')
    a('s_add_u32 s99, s99, s%d' % S_W)
    a('s_lshl_b32 s99, s99, 9')
    a('s_lshl_b32 s98, s%d, 8' % S_PASS)
    a('s_add_u32 s99, s99, s98')
    a('s_add_u32 s99, s99, %d' % (STAMP_BASE + idx * 4))
    a('s_waitcnt lgkmcnt(0)')
    a.lg = []
    a('v_mov_b32 v163, s96')
    a('s_mov_b64 exec, 1')
    a('buffer_store_dword v163, v%d, s[4:7], s99 offen' % VZ, tag='stamp')
    a('s_mov_b64 exec, -1')


def make_srd(a, dst, src, nbytes):
    a('s_mov_b32 s%d, s%d' % (dst, src))
    a('s_and_b32 s%d, s%d, 0xffff' % (dst + 1, src + 1))
    a('s_mov_b32 s%d, %d' % (dst + 2, nbytes))
    a('s_mov_b32 s%d, 0x20000' % (dst + 3))


def tile_scalars(a):
    a('s_and_b32 s%d, s%d, 7' % (S_CG, S_J))
    a('s_lshr_b32 s%d, s%d, 3' % (S_MT, S_J))
    a('s_lshl_b32 s%d, s%d, 2' % (S_MT, S_MT))
    a('s_add_u32 s%d, s%d, s%d' % (S_MT, S_MT, S_W))
    a('s_lshl_b32 s%d, s%d, 3' % (S_STT, S_TEAM))
    a('s_add_u32 s%d, s%d, s%d' % (S_STT, S_STT, S_MT))
    a('s_mul_i32 s%d, s%d, 20480' % (S_XT, S_STT))
    a('s_mul_i32 s3, s%d, 2560' % S_CG)
    a('s_add_u32 s%d, s%d, s3' % (S_XT, S_XT))
    a('s_lshl_b32 s%d, s%d, 10' % (S_STT, S_STT))
    a('s_lshl_b32 s3, s%d, 7' % S_CG)
    a('s_add_u32 s%d, s%d, s3' % (S_STT, S_STT))
    a('s_mul_i32 s%d, s%d, 160' % (S_COL, S_CG))
    a('s_and_b32 s3, s%d, 7' % S_TEAM)
    a('s_lshl_b32 s3, s3, 7')
    a('s_lshl_b32 s%d, s%d, 4' % (S_RM, S_MT))
    a('s_add_u32 s3, s3, s%d' % S_RM)
    a('s_lshl_b32 s3, s3, 1')
    a('s_lshr_b32 s%d, s%d, 3' % (S_RM, S_TEAM))
    a('s_add_u32 s3, s3, s%d' % S_RM)
    a('s_mul_i32 s3, s3, 1280')
    a('s_add_u32 s%d, s3, s%d' % (S_RM, S_COL))


def rowmajor_voff(a, dst, tmp):
    a('v_and_b32 v%d, 15, v0' % dst)
    a('v_mul_u32_u24 v%d, 2560, v%d' % (dst, dst))
    a('v_lshrrev_b32 v%d, 4, v0' % tmp)
    a('v_lshl_add_u32 v%d, v%d, 3, v%d' % (dst, tmp, dst))


def tile5_voff(a, dst, tmp):
    a('v_and_b32 v%d, 15, v0' % dst)
    a('v_lshlrev_b32 v%d, 4, v%d' % (dst, dst))
    a('v_lshrrev_b32 v%d, 5, v0' % tmp)
    a('v_lshl_add_u32 v%d, v%d, 8, v%d' % (dst, tmp, dst))
    a('v_bfe_u32 v%d, v0, 4, 1' % tmp)
    a('v_lshl_add_u32 v%d, v%d, 3, v%d' % (dst, tmp, dst))


def stat_voff(a, dst, tmp):
    a('v_lshlrev_b32 v%d, 3, v0' % dst)
    a('v_mov_b32 v%d, 0x%x' % (tmp, OOB))
    a('v_cmp_gt_u32 vcc, 16, v0')
    a('v_cndmask_b32 v%d, v%d, v%d, vcc' % (dst, tmp, dst))


def two_ways(a, fn):
    LS = a.newlabel('slow')
    LJ = a.newlabel('join')
    a('s_cmp_eq_u32 s%d, 0' % S_FAST)
    a('s_cbranch_scc1 %s' % LS)
    vm0 = list(a.vm)
    fn('')
    a('s_branch %s' % LJ)
    a.label(LS)
    a.vm = vm0
    fn(' sc1')
    a.label(LJ)


def tile_stats(a, P, T):
    a('s_mov_b32 s39, 0x%x' % ONES)
    for i in range(10):
        a('v_dot2_f32_bf16 v%d, v%d, s39, %s' % (T, P + i, '0' if i == 0 else 'v%d' % T))
        a('v_dot2_f32_bf16 v%d, v%d, v%d, %s' % (T + 1, P + i, P + i, '0' if i == 0 else 'v%d' % (T + 1)))
    a('v_mov_b32 v%d, v%d' % (T + 2, T))
    a('v_mov_b32 v%d, v%d' % (T + 3, T + 1))
    a('v_permlane16_swap_b32 v%d, v%d' % (T, T + 2))
    a('v_permlane16_swap_b32 v%d, v%d' % (T + 1, T + 3))
    a('v_pk_add_f32 %s, %s, %s' % (vr(T, 2), vr(T, 2), vr(T + 2, 2)))
    a('v_mov_b32 v%d, v%d' % (T + 2, T))
    a('v_mov_b32 v%d, v%d' % (T + 3, T + 1))
    a('v_permlane32_swap_b32 v%d, v%d' % (T, T + 2))
    a('v_permlane32_swap_b32 v%d, v%d' % (T + 1, T + 3))
    a('v_pk_add_f32 %s, %s, %s' % (vr(T, 2), vr(T, 2), vr(T + 2, 2)))


def store_tile(a, P, sa, V5, tag='pub'):
    a('buffer_store_dwordx4 %s, v1, s[4:7], s%d offen sc1' % (vr(P, 4), sa), tag=tag)
    a('buffer_store_dwordx4 %s, v1, s[4:7], s%d offen offset:1024 sc1' % (vr(P + 4, 4), sa), tag=tag)
    a('buffer_store_dwordx2 %s, v%d, s[4:7], s%d offen offset:2048 sc1' % (vr(P + 8, 2), V5, sa), tag=tag)


def qkv_sg(ch, hf):
    Q, K, V = 0, 1, 2
    if ch < 4:
        h, lo = ch >> 1, (ch & 1) * 2
        return Q * 10 + h * 5 + lo + hf
    if ch == 4:
        return (Q * 10 + 4) if hf == 0 else 30
    if ch == 15:
        return (Q * 10 + 5 + 4) if hf == 0 else 30
    h = (ch - 5) // 5
    c = (ch - 5) % 5
    if c < 2:
        return K * 10 + h * 5 + c * 2 + hf
    if c < 4:
        return V * 10 + h * 5 + (c - 2) * 2 + hf
    return (K if hf == 0 else V) * 10 + h * 5 + 4


def poll(a, sbase, sval, lanes=None, sleep=0, off=0):
    if lanes:
        a('s_mov_b64 exec, 0x%x' % lanes)
    a('s_mov_b32 s3, 0')
    LP = a.newlabel('poll')
    LD = a.newlabel('polld')
    a.label(LP)
    if sleep:
        a('s_sleep %d' % sleep)
    a('buffer_load_dword v162, v%d, s[4:7], s%d offen offset:%d sc1' % (VL4, sbase, off))
    a('s_add_u32 s3, s3, 1')
    a('s_waitcnt vmcnt(0)')
    a('v_cmp_gt_u32 vcc, %s, v162' % sval)
    a('s_cmp_gt_u32 s3, 200000')
    a('s_cbranch_scc1 %s' % LD)
    a('s_cbranch_vccnz %s' % LP)
    a.label(LD)
    if lanes:
        a('s_mov_b64 exec, -1')
    a.vm = []


def poll64(a, items, sleep=0, rbase=64):
    a('s_mov_b32 s3, 0')
    LP = a.newlabel('poll')
    LD = a.newlabel('polld')
    a.label(LP)
    if sleep:
        a('s_sleep %d' % sleep)
    regs = []
    r = rbase
    for (sb, off, w, lanes) in items:
        a('buffer_load_dwordx%d %s, v%d, s[4:7], s%d offen offset:%d sc1' % (w, vr(r, w), 1 if w == 4 else VL8, sb, off))
        regs.append(r)
        r += w
    a('s_add_u32 s3, s3, 1')
    a('s_mov_b64 s[50:51], 0')
    a('s_waitcnt vmcnt(0)')
    for (sb, off, w, lanes), r in zip(items, regs):
        for q in range(0, w, 2):
            a('v_cmp_ne_u64 vcc, s[%d:%d], %s' % (S_N0, S_N1, vr(r + q, 2)))
            if lanes is not None:
                a('s_and_b64 vcc, vcc, %s' % lanes)
            a('s_or_b64 s[50:51], s[50:51], vcc')
    a('s_cmp_gt_u32 s3, 100000')
    a('s_cbranch_scc1 %s' % LD)
    a('s_cmp_lg_u64 s[50:51], 0')
    a('s_cbranch_scc1 %s' % LP)
    a.label(LD)
    a.vm = []


def flag64(a, saddr, lo=None, R=94):
    a('v_mov_b32 v%d, s%d' % (R, S_N0 if lo is None else lo))
    a('v_mov_b32 v%d, s%d' % (R + 1, S_N1))
    a('s_mov_b64 exec, 1')
    a('buffer_store_dwordx2 %s, v%d, s[4:7], s%d offen sc1' % (vr(R, 2), VZ, saddr))
    a('s_mov_b64 exec, -1')


def get_nonce(a):
    a('s_mov_b32 s3, 0')
    LP = a.newlabel('nonce')
    LD = a.newlabel('nonced')
    a.label(LP)
    a('buffer_load_dwordx2 v[94:95], v%d, s[84:87], 0 offen offset:128 sc1' % VZ)
    a('s_add_u32 s3, s3, 1')
    a('s_waitcnt vmcnt(0)')
    a('v_readfirstlane_b32 s%d, v94' % S_N0)
    a('v_readfirstlane_b32 s%d, v95' % S_N1)
    a('s_cmp_gt_u32 s3, 100000')
    a('s_cbranch_scc1 %s' % LD)
    a('s_cmp_eq_u32 s%d, 0' % S_N1)
    a('s_cbranch_scc1 %s' % LP)
    a.label(LD)
    a.vm = []


def publish(a):
    a('s_add_u32 s%d, s%d, 1' % (S_PH, S_PH))
    a('v_mov_b32 v162, s%d' % S_PH)
    a('s_mov_b64 exec, 1')

    def f(mod):
        a.wait_vm('pub')
        a('buffer_store_dword v162, v%d, s[4:7], s%d offen%s' % (VZ, S_FLAG, mod), tag='fl')
    two_ways(a, f)
    a('s_mov_b64 exec, -1')


def gen_prologue(a, END):
    a('s_cmp_ge_u32 s2, 256')
    a('s_cbranch_scc1 %s' % END)
    a('s_load_dwordx16 s[64:79], s[0:1], 0')
    a('s_load_dwordx4 s[80:83], s[0:1], 64')
    a('s_load_dwordx2 s[4:5], s[0:1], 80')
    a('v_lshrrev_b32 v1, 6, v0')
    a('v_and_b32 v0, 63, v0')
    a('v_readfirstlane_b32 s%d, v1' % S_W)
    a('v_lshlrev_b32 v1, 4, v0')
    a('v_lshlrev_b32 v%d, 2, v0' % VL4)
    a('v_mov_b32 v%d, 0' % VZ)
    a('s_mov_b32 s%d, 0' % S_PASS)
    a('s_and_b32 s3, s2, 7')
    a('s_lshr_b32 s%d, s2, 3' % S_J)
    a('s_lshr_b32 s%d, s%d, 4' % (S_TEAM, S_J))
    a('s_lshl_b32 s3, s3, 1')
    a('s_add_u32 s%d, s%d, s3' % (S_TEAM, S_TEAM))
    a('s_and_b32 s%d, s%d, 15' % (S_J, S_J))
    a('s_mov_b32 s%d, 0' % S_FAST)
    tile_scalars(a)
    rowmajor_voff(a, 64, 65)
    a('s_getreg_b32 s%d, hwreg(HW_REG_XCC_ID)' % S_XCC)
    a('s_and_b32 s%d, s%d, 15' % (S_XCC, S_XCC))
    a('s_waitcnt lgkmcnt(0)')
    make_srd(a, 12, 64, 2048 * 1280)
    a('s_and_b32 s5, s5, 0xffff')
    a('s_mov_b32 s6, %d' % WS_SIZE)
    a('s_mov_b32 s7, 0x20000')
    make_srd(a, 84, 82, 256)
    LN = a.newlabel('no_nonce')
    a('s_lshl_b32 s3, s2, 2')
    a('s_add_u32 s3, s3, s%d' % S_W)
    a('s_cmp_lg_u32 s3, 0')
    a('s_cbranch_scc1 %s' % LN)
    a('s_memrealtime s[40:41]')
    a('s_waitcnt lgkmcnt(0)')
    a('s_lshl_b32 s41, s41, 1')
    a('s_or_b32 s41, s41, 1')
    a('v_mov_b32 v94, s40')
    a('v_mov_b32 v95, s41')
    a('s_mov_b64 exec, 1')
    a('buffer_store_dwordx2 v[94:95], v%d, s[84:87], 0 offen offset:128 sc1' % VZ)
    a('s_mov_b64 exec, -1')
    a.label(LN)
    a.vm = []


def s_xorder(a, sig, first, d2, t):
    a('s_mul_i32 s%d, s%d, 205' % (t, sig))
    a('s_lshr_b32 s%d, s%d, 11' % (t, t))
    a('s_mul_i32 s%d, s%d, 10' % (first, t))
    a('s_sub_u32 s%d, s%d, s%d' % (d2, sig, first))
    a('s_mul_i32 s%d, s%d, 80' % (t, t))
    a('s_lshr_b32 s%d, s%d, 2' % (first, d2))
    a('s_lshl_b32 s%d, s%d, 4' % (first, first))
    a('s_lshl_b32 s3, s%d, 2' % d2)
    a('s_add_u32 s%d, s%d, s3' % (first, first))
    a('s_lshl_b32 s3, s%d, 3' % d2)
    a('s_cmp_lt_u32 s%d, 8' % d2)
    a('s_cselect_b32 s%d, s%d, s3' % (first, first))
    a('s_cselect_b32 s%d, 16, 4' % d2)
    a('s_add_u32 s%d, s%d, s%d' % (first, first, t))


def v_order(a, kind, sig, first, d2, t):
    if kind == 'x':
        a('v_mul_u32_u24 v%d, 205, v%d' % (t, sig))
        a('v_lshrrev_b32 v%d, 11, v%d' % (t, t))
        a('v_mul_u32_u24 v%d, 10, v%d' % (first, t))
        a('v_sub_u32 v%d, v%d, v%d' % (d2, sig, first))
        a('v_mul_u32_u24 v%d, 80, v%d' % (t, t))
        a('v_lshrrev_b32 v%d, 2, v%d' % (first, d2))
        a('v_lshlrev_b32 v%d, 4, v%d' % (first, first))
        a('v_lshl_add_u32 v%d, v%d, 2, v%d' % (first, d2, first))
        a('v_lshlrev_b32 v%d, 3, v%d' % (t + 1, d2))
        a('v_cmp_gt_u32 vcc, 8, v%d' % d2)
        a('v_cndmask_b32 v%d, v%d, v%d, vcc' % (first, t + 1, first))
        a('v_cndmask_b32 v%d, 4, 16, vcc' % d2)
        a('v_add_u32 v%d, v%d, v%d' % (first, first, t))
    elif kind == 'o':
        a('v_mul_u32_u24 v%d, 205, v%d' % (t, sig))
        a('v_lshrrev_b32 v%d, 10, v%d' % (t, t))
        a('v_mul_u32_u24 v%d, 20, v%d' % (t, t))
        a('v_lshl_add_u32 v%d, v%d, 2, v%d' % (first, sig, t))
        a('v_mov_b32 v%d, 20' % d2)
    else:
        a('v_lshrrev_b32 v%d, 2, v%d' % (t, sig))
        a('v_lshlrev_b32 v%d, 4, v%d' % (t, t))
        a('v_lshl_add_u32 v%d, v%d, 2, v%d' % (first, sig, t))
        a('v_mov_b32 v%d, 16' % d2)


G_STG = 0


def gen_prep(a):
    R0 = 96
    for s in range(5):
        a('buffer_load_dwordx2 %s, v64, s[12:15], s%d offen offset:%d' % (vr(XRES + 2 * s, 2), S_RM, 32 * s), tag='x')
    a('buffer_load_dwordx2 v[94:95], v%d, s[84:87], 0 offen offset:128 sc1' % VZ, tag='x')
    if OPT['cpf']:
        a('s_getpc_b64 s[8:9]')
        a.raw('code_ref:')
        a('s_mov_b32 s10, code_end-code_ref')
        a('s_mov_b32 s11, 0x20000')
        a('s_and_b32 s9, s9, 0xffff')
        a('v_lshlrev_b32 v96, 7, v0')
        a('s_lshl_b32 s3, s%d, 13' % S_W)
        if OPT['cpf'] == 1:
            a('s_bfe_u32 s40, s2, 0x20003')
            a('v_bfe_u32 v97, v0, 4, 2')
            a('v_mov_b32 v98, 0x%x' % OOB)
            a('v_cmp_eq_u32 vcc, s40, v97')
            a('v_cndmask_b32 v96, v98, v96, vcc')
        a('buffer_load_dword v97, v96, s[8:11], s3 offen', tag='x')
    stamp(a, 0)
    a('s_lshl_b32 s48, s%d, 8' % S_W)
    a('s_add_u32 s48, s48, s2')
    a('s_lshl_b32 s49, s%d, 13' % S_W)
    a('v_lshrrev_b32 v88, 2, v0')
    a('v_and_b32 v89, 3, v0')
    a('s_cmp_lt_u32 s48, 320')
    a('s_cselect_b32 s55, 0, %d' % OOB)
    a('s_cselect_b32 s48, s48, 0')
    a('s_mul_i32 s50, s48, 3277')
    a('s_lshr_b32 s50, s50, 16')
    a('s_mul_i32 s51, s50, 20')
    a('s_sub_u32 s51, s48, s51')
    make_srd(a, 8, 66, 640 * 3840)
    LNQ = a.newlabel('no_wq')
    a('s_cmp_lg_u32 s55, 0')
    a('s_cbranch_scc1 %s' % LNQ)
    vm0 = list(a.vm)
    a('v_and_b32 v70, 15, v0')
    a('v_lshrrev_b32 v71, 4, v0')
    a('v_mul_u32_u24 v71, 3840, v71')
    a('v_lshl_add_u32 v71, v70, 4, v71')
    a('v_mov_b32 v72, 1200')
    a('v_cmp_le_u32 vcc, 5, v70')
    a('v_cndmask_b32 v73, 0, v72, vcc')
    a('v_add_u32 v71, v71, v73')
    a('v_cmp_le_u32 vcc, 10, v70')
    a('v_cndmask_b32 v73, 0, v72, vcc')
    a('v_add_u32 v71, v71, v73')
    a('v_mov_b32 v72, 0x%x' % OOB)
    a('v_cmp_eq_u32 vcc, 15, v70')
    a('v_cndmask_b32 v71, v71, v72, vcc')
    a('s_mul_i32 s52, s50, 80')
    for g in range(4):
        a('s_lshl_b32 s40, s51, 2')
        a('s_add_u32 s40, s40, %d' % g)
        s_xorder(a, 40, 41, 42, 43)
        for half in range(2):
            if half:
                a('s_add_u32 s41, s41, s42')
            a('s_mul_i32 s53, s41, 3840')
            a('s_add_u32 m0, s49, %d' % (1024 * (half * 4 + g)))
            a('s_add_u32 s53, s53, s52')
            a('buffer_load_dwordx4 v71, s[8:11], s53 offen lds')
    a('v_lshlrev_b32 v74, 8, v88')
    a('v_add_u32 v74, s49, v74')
    a('v_lshlrev_b32 v75, 3, v89')
    for T in range(8):
        b, hf = T >> 1, T & 1
        const = sum(qkv_sg(4 * b + c, hf) << (8 * c) for c in range(4))
        a('s_mov_b32 s3, 0x%x' % const)
        a('v_bfe_u32 v%d, s3, v75, 8' % (76 + T))
        a('v_lshl_add_u32 v%d, v%d, 3, v74' % (76 + T, 76 + T))
    a('s_waitcnt vmcnt(8)')
    LX = a.newlabel('xgo')
    a('s_branch %s' % LX)
    a.label(LNQ)
    a('s_waitcnt vmcnt(0)')
    a.label(LX)
    a.vm = []
    make_srd(a, 16, 4, WS_SIZE)
    tile5_voff(a, 68, 69)
    stat_voff(a, 69, 64)
    a('s_add_u32 s36, s%d, %d' % (S_XT, XB[0]))
    a('s_add_u32 s37, s%d, %d' % (S_STT, STB[0]))
    store_tile(a, XRES, 36, 68, tag='xs')
    tile_stats(a, XRES, 64)
    a('buffer_store_dwordx2 v[64:65], v69, s[4:7], s37 offen sc1', tag='xs')
    a('v_readfirstlane_b32 s%d, v94' % S_N0)
    a('v_readfirstlane_b32 s%d, v95' % S_N1)
    LH = a.newlabel('have_nonce')
    a('s_cmp_lg_u32 s%d, 0' % S_N1)
    a('s_cbranch_scc1 %s' % LH)
    get_nonce(a)
    a.label(LH)
    a('s_lshl_b32 s38, s%d, 4' % S_TEAM)
    a('s_add_u32 s38, s38, s%d' % S_J)
    a('s_lshl_b32 s44, s38, 3')
    a('s_add_u32 s44, s44, %d' % RXF)
    a('s_lshl_b32 s45, s38, 4')
    a('s_add_u32 s45, s45, %d' % FL)
    a('s_lshl_b32 s46, s38, 3')
    a('s_add_u32 s46, s46, %d' % HF)
    a('s_cmp_eq_u32 s%d, 2' % S_W)
    a('s_cselect_b32 s44, s44, %d' % OOB)
    a('s_cselect_b32 s45, s45, %d' % OOB)
    a('s_cselect_b32 s46, s46, %d' % OOB)
    a('s_lshl_b32 s38, s38, 2')
    a('s_add_u32 s38, s38, s%d' % S_W)
    a('s_lshl_b32 s38, s38, 3')
    a('s_lshl_b32 s3, s2, 2')
    a('s_add_u32 s3, s3, s%d' % S_W)
    a('s_lshl_b32 s3, s3, 3')
    a('s_add_u32 s%d, s3, %d' % (S_PFGA, PFG))
    a('s_add_u32 s38, s38, %d' % PFX)
    LNQ2 = a.newlabel('no_wq2')
    a('s_cmp_lg_u32 s55, 0')
    a('s_cbranch_scc1 %s' % LNQ2)
    a('s_mul_i32 s54, s50, 163840')
    a('s_lshl_b32 s3, s51, 11')
    a('s_add_u32 s54, s54, s3')
    a('s_add_u32 s54, s54, %d' % WQKV_T)
    a('s_waitcnt vmcnt(4)')
    stamp(a, 5)
    for T in range(8):
        a('ds_read_b64_tr_b16 %s, v%d' % (vr(R0 + 4 * T, 2), 76 + T))
        a('ds_read_b64_tr_b16 %s, v%d offset:4096' % (vr(R0 + 2 + 4 * T, 2), 76 + T))
    a('s_mul_i32 s3, s50, 12')
    a('s_add_u32 s3, s3, s48')
    a('s_lshl_b32 s3, s3, 3')
    a('s_add_u32 s39, s3, %d' % PFQ)
    a.wait_lg_all()
    for T in range(8):
        a('s_add_u32 s53, s54, %d' % ((T >> 1) * 40960 + (T & 1) * 1024))
        a('buffer_store_dwordx4 %s, v1, s[4:7], s53 offen sc1' % vr(R0 + 4 * T, 4))
    a('s_waitcnt vmcnt(0)')
    flag64(a, 39)
    a.label(LNQ2)
    a('s_waitcnt vmcnt(1)')
    a.vm = []
    LNQ3 = a.newlabel('no_wq3')
    a('s_cmp_eq_u32 s55, 0')
    a('s_cbranch_scc1 %s' % LNQ3)
    a('s_waitcnt vmcnt(0)')
    a.label(LNQ3)
    a('s_add_u32 s47, s%d, s%d' % (S_N0, S_XCC))
    a('s_add_u32 s47, s47, 1')
    flag64(a, 38, lo=47)
    stamp(a, 1)
    a('s_mov_b64 exec, 0xf')
    a('buffer_store_dword v%d, v%d, s[4:7], s45 offen sc1' % (VZ, VL4))
    a('s_mov_b64 exec, 0x3')
    a('buffer_store_dword v%d, v%d, s[4:7], s46 offen sc1' % (VZ, VL4))
    a('s_mov_b64 exec, -1')


KG = ((45, 46), (47, 35))


def generic_addr(a):
    a('s_mul_i32 s48, s2, 5')
    a('v_bfe_u32 v70, v0, 3, 2')
    a('v_and_b32 v71, 7, v0')
    a('v_lshlrev_b32 v71, 4, v71')
    a('v_lshrrev_b32 v72, 5, v0')
    L1 = a.newlabel('pg_w1')
    L2 = a.newlabel('pg_w2')
    LD = a.newlabel('pg_go')
    a('s_cmp_ge_u32 s48, 740')
    a('s_cbranch_scc1 %s' % L2)
    a('s_cmp_ge_u32 s48, 200')
    a('s_cbranch_scc1 %s' % L1)
    for (lab, sub, src, nb, gpr, magic, pitch, dest, KS, kind) in (
            (None, 0, 68, 640 * 1280, 10, 6554, 1280, WO_T, 20, 'o'),
            (L1, 200, 72, 640 * 3456, 27, 2428, 3456, W1_T, 0, 'x'),
            (L2, 740, 76, 1728 * 1280, 10, 6554, 1280, W2_T, 54, 'h')):
        if lab:
            a.label(lab)
        if sub:
            a('s_sub_u32 s48, s48, %d' % sub)
        make_srd(a, 8, src, nb)
        a('s_mov_b32 s42, %d' % pitch)
        a('s_mov_b32 s43, %d' % dest)
        a('s_mov_b32 s44, %d' % KS)
        for uu in range(2):
            ks, G = KG[uu]
            a('s_add_u32 s3, s48, %s' % ('s%d' % S_W if uu == 0 else '4'))
            a('s_mul_i32 s%d, s3, %d' % (ks, magic))
            a('s_lshr_b32 s%d, s%d, 16' % (ks, ks))
            a('s_mul_i32 s50, s%d, %d' % (ks, gpr))
            a('s_sub_u32 s%d, s3, s50' % G)
            for gh in range(2):
                a('s_lshl_b32 s3, s%d, 2' % ks)
                a('s_add_u32 s3, s3, %d' % (2 * gh))
                a('v_add_u32 v73, s3, v72')
                idx = uu * 2 + gh
                v_order(a, kind, 73, 76 + 2 * idx, 77 + 2 * idx, 84)
        if lab != L2:
            a('s_branch %s' % LD)
    a.label(LD)
    a('s_cmp_eq_u32 s%d, 3' % S_W)
    a('s_cselect_b32 s55, 0, %d' % OOB)
    for uu in range(2):
        for i in range(4):
            idx = uu * 2 + (i & 1)
            d = 128 + uu * 4 + i
            a('v_add_u32 v%d, v%d, v70' % (d, 76 + 2 * idx))
            if i >> 1:
                a('v_add_u32 v%d, v%d, v%d' % (d, d, 77 + 2 * idx))
            a('v_mul_lo_u32 v%d, v%d, s42' % (d, d))
            a('v_add_u32 v%d, v%d, v71' % (d, d))
    a('s_lshl_b32 s49, s%d, 13' % S_W)
    a('s_add_u32 s49, s49, %d' % L_SCR)
    a('v_lshlrev_b32 v74, 7, v88')
    a('v_lshl_add_u32 v74, v89, 3, v74')
    a('v_add_u32 v74, s49, v74')


def generic_issue(a):
    for uu in range(2):
        ks, G = KG[uu]
        a('s_lshl_b32 s50, s%d, 7' % G)
        if uu:
            a('s_add_u32 s50, s50, s55')
        for i in range(4):
            a('s_add_u32 m0, s49, %d' % (4096 * uu + 1024 * i))
            a('buffer_load_dwordx4 v%d, s[8:11], s50 offen lds' % (128 + uu * 4 + i), tag='u')


def generic_finish(a):
    R0 = 96
    a.wait_vm('u')
    for uu in range(2):
        for q in range(4):
            r = R0 + 16 * uu + 4 * q
            a('ds_read_b64_tr_b16 %s, v74 offset:%d' % (vr(r, 2), 4096 * uu + 32 * q))
            a('ds_read_b64_tr_b16 %s, v74 offset:%d' % (vr(r + 2, 2), 4096 * uu + 32 * q + 2048))
    first = True
    for uu in range(2):
        ks, G = KG[uu]
        for q in range(4):
            r = R0 + 16 * uu + 4 * q
            a('s_lshl_b32 s50, s%d, 2' % G)
            a('s_add_u32 s50, s50, %d' % q)
            a('s_lshr_b32 s51, s50, 1')
            a('s_mul_i32 s51, s51, 20')
            a('s_add_u32 s51, s51, s%d' % ks)
            a('s_lshl_b32 s51, s51, 1')
            a('s_add_u32 s51, s51, %d' % (q & 1))
            a('s_mul_i32 s52, s50, 205')
            a('s_lshr_b32 s52, s52, 10')
            a('s_mul_i32 s53, s52, 5')
            a('s_sub_u32 s53, s50, s53')
            a('s_mul_i32 s52, s52, s44')
            a('s_add_u32 s52, s52, s%d' % ks)
            a('s_mul_i32 s52, s52, 5')
            a('s_add_u32 s52, s52, s53')
            a('s_cmp_eq_u32 s44, 0')
            a('s_cselect_b32 s51, s51, s52')
            a('s_lshl_b32 s51, s51, 10')
            a('s_add_u32 s51, s51, s43')
            if uu:
                a('s_add_u32 s51, s51, s55')
            if first:
                a.wait_lg_all()
                first = False
            a('buffer_store_dwordx4 %s, v1, s[4:7], s51 offen sc1' % vr(r, 4), tag='gs')


def deps_loads(a):
    a('buffer_load_dwordx2 v[64:65], v%d, s[4:7], s36 offen sc1' % VL8, tag='dp')
    a('buffer_load_dwordx2 v[66:67], v%d, s[4:7], s37 offen sc1' % VL8, tag='dp')
    a('buffer_load_dwordx2 v[68:69], v%d, s[4:7], s38 offen sc1' % VL8, tag='dp')


def gen_roles(a):
    late_consts(a)
    generic_addr(a)
    a('s_lshl_b32 s3, s%d, 2' % S_J)
    a('s_add_u32 s3, s3, s%d' % S_W)
    a('s_mul_i32 s%d, s3, 40960' % S_WQ)
    a('s_add_u32 s%d, s%d, %d' % (S_WQ, S_WQ, WQKV_T))
    a('v_lshlrev_b32 v%d, 3, v0' % VL8)
    a('s_lshl_b32 s36, s%d, 8' % S_J)
    a('s_add_u32 s36, s36, %d' % PFQ)
    a('s_lshl_b32 s37, s%d, 9' % S_TEAM)
    a('s_add_u32 s37, s37, %d' % PFX)
    a('s_and_b32 s3, s%d, 7' % S_TEAM)
    a('s_cmp_eq_u32 s3, 0')
    a('s_cselect_b32 s38, 0, 512')
    a('s_sub_u32 s38, s37, s38')
    stamp(a, 7)
    a('s_barrier')
    generic_issue(a)
    a.wait_vm('u')
    deps_loads(a)
    generic_finish(a)
    stamp(a, 2)


def first_deps(a):
    a('s_waitcnt vmcnt(8)')
    a('s_mov_b32 s52, 0')
    a('s_mov_b32 s53, 0x88888888')
    a('s_add_u32 s39, s%d, 1' % S_N0)
    a('s_mov_b32 s3, 0')
    LP = a.newlabel('dp')
    LD = a.newlabel('dpd')
    a.label(LP)
    a('v_cmp_ne_u64 vcc, s[%d:%d], v[64:65]' % (S_N0, S_N1))
    a('v_subrev_u32 v66, s39, v66')
    a('v_subrev_u32 v68, s39, v68')
    a('s_and_b64 s[50:51], vcc, 0xfffff')
    a('v_cmp_ne_u32 vcc, s%d, v67' % S_N1)
    a('s_or_b64 s[50:51], s[50:51], vcc')
    a('v_cmp_lt_u32 vcc, 15, v66')
    a('s_or_b64 s[50:51], s[50:51], vcc')
    a('v_cmp_ne_u32 vcc, s%d, v69' % S_N1)
    a('s_and_b64 vcc, vcc, s[52:53]')
    a('s_or_b64 s[50:51], s[50:51], vcc')
    a('v_cmp_lt_u32 vcc, 15, v68')
    a('s_and_b64 vcc, vcc, s[52:53]')
    a('s_or_b64 s[50:51], s[50:51], vcc')
    a('s_cmp_eq_u64 s[50:51], 0')
    a('s_cbranch_scc1 %s' % LD)
    a('s_add_u32 s3, s3, 1')
    a('s_cmp_gt_u32 s3, 100000')
    a('s_cbranch_scc1 %s' % LD)
    a('s_sleep %d' % OPT['gsleep'])
    deps_loads(a)
    a('s_waitcnt vmcnt(0)')
    a('s_branch %s' % LP)
    a.label(LD)
    a('v_cmp_ne_u32 vcc, s%d, v66' % S_XCC)
    a('s_cmp_eq_u64 vcc, 0')
    a('s_cselect_b32 s%d, %d, 0' % (S_FAST, 0 if OPT['force_slow'] else 1))
    stamp(a, 3)
    now(a, wloads(S_WQ, WQ_SL, range(10), tagp='wq'))
    a('s_waitcnt vmcnt(10)')
    flag64(a, S_PFGA, R=64)


def first_unit1(a):
    a('v_mul_u32_u24 v144, 272, v0')
    a('s_mul_i32 s3, s%d, %d' % (S_W, 32 * 272))
    a('s_add_u32 s3, s3, %d' % (L_SCR + 16 * 272 + 256))
    a('v_add_u32 v144, s3, v144')
    for q in range(4):
        a('v_mov_b32 v%d, 0' % (140 + q))
    a('s_mov_b64 exec, 0xffffffff')
    a('ds_write_b128 v144, v[140:143]')
    a('s_mov_b64 exec, -1')


def late_addr(a, part):
    n = 1280 if part == 0 else 896
    a('s_mul_i32 s36, s%d, %d' % (S_W, n))
    a('s_add_u32 s36, s36, %d' % (PFG + (0 if part == 0 else 4608)))
    a('s_cmp_eq_u32 s%d, 0' % S_PASS)
    a('s_cselect_b32 s36, s36, %d' % OOB)


def late_loads(a, part, R, tag=None):
    a('buffer_load_dwordx4 %s, v1, s[4:7], s36 offen sc1' % vr(R, 4), tag=tag)
    if part == 0:
        a('buffer_load_dwordx4 %s, v1, s[4:7], s36 offen offset:256 sc1' % vr(R + 4, 4), tag=tag)


def late_issue(a, part, R):
    late_addr(a, part)
    late_loads(a, part, R, 'ls')


def late_sync(a, part, R):
    a('s_mov_b32 s3, 0')
    LP = a.newlabel('ls')
    LD = a.newlabel('lsd')
    a.label(LP)
    a('s_mov_b64 s[50:51], 0')
    for q in range(4 if part == 0 else 2):
        a('v_cmp_ne_u64 vcc, s[%d:%d], %s' % (S_N0, S_N1, vr(R + 2 * q, 2)))
        a('s_or_b64 s[50:51], s[50:51], vcc')
    if part == 1:
        a('s_and_b32 s51, s51, 0xffffff')
    a('s_cmp_eq_u64 s[50:51], 0')
    a('s_cbranch_scc1 %s' % LD)
    a('s_add_u32 s3, s3, 1')
    a('s_cmp_gt_u32 s3, 100000')
    a('s_cbranch_scc1 %s' % LD)
    a('s_sleep 4')
    late_loads(a, part, R)
    a('s_waitcnt vmcnt(0)')
    a('s_branch %s' % LP)
    a.label(LD)


def wloads(base_sgpr, slots, frags, srd='s[4:7]', tagp='w', special=None):
    gs = wloads0(base_sgpr, slots, frags, srd, tagp, special)
    bit = {'wq': 1, 'wo': 2, 'w1': 4, 'w2': 8}[tagp]
    if OPT['wnt'] & bit:
        for g in gs:
            g[-1] = ('i', g[-1][1] + ' nt', g[-1][2])
    return gs


def wloads0(base_sgpr, slots, frags, srd='s[4:7]', tagp='w', special=None):
    groups = []
    cur = None
    for f in frags:
        g = []
        if special and f in special:
            sreg, off = special[f]
            g.append(('i', 'buffer_load_dwordx4 %s, v1, %s, s%d offen offset:%d' % (slot_reg(slots[f]), srd, sreg, off), tagp))
            groups.append(g)
            continue
        blk = f // 4
        if blk != cur:
            g.append(('i', 's_add_u32 s%d, s%d, %d' % (S_PF, base_sgpr, blk * 4096), None))
            cur = blk
        g.append(('i', 'buffer_load_dwordx4 %s, v1, %s, s%d offen offset:%d' % (slot_reg(slots[f]), srd, S_PF, (f % 4) * 1024), tagp))
        groups.append(g)
    return groups


def w2loads(frags):
    sp = {65 + q: (S_W2X, q * 1024) for q in range(4)}
    groups = wloads(S_W2, W2_SL, [f for f in frags if f != 69], tagp='w2', special=sp)
    if 69 in frags:
        groups.append([('i', 's_add_u32 s%d, s%d, 4096' % (S_PF, S_W2X), None),
                       ('i', 'buffer_load_dwordx4 %s, v1, s[4:7], s%d offen' % (slot_reg(W2_SL[69]), S_PF), 'w2')])
    return groups


def now(a, gs):
    for g in gs:
        for it in g:
            a.emit_item(it)


def gen_setup(a):
    a('s_lshl_b32 s40, s%d, 2' % S_J)
    a('s_add_u32 s40, s40, s%d' % S_W)
    make_srd(a, 12, 80, 2048 * 1280)
    a('s_min_u32 s%d, s40, 53' % S_BLK)
    a('s_mul_i32 s%d, s%d, 40960' % (S_W1, S_BLK))
    a('s_add_u32 s%d, s%d, %d' % (S_W1, S_W1, W1_T))
    a('s_mul_i32 s41, s%d, 20' % S_CG)
    a('s_mul_i32 s3, s%d, 5' % S_W)
    a('s_add_u32 s41, s41, s3')
    a('s_mul_i32 s41, s41, 5120')
    a('s_add_u32 s%d, s41, %d' % (S_WO, WO_T))
    a('s_mul_i32 s%d, s%d, 14' % (S_KS0, S_W))
    a('s_cmp_eq_u32 s%d, 3' % S_W)
    a('s_cselect_b32 s3, 1, 0')
    a('s_sub_u32 s%d, s%d, s3' % (S_KS0, S_KS0))
    a('s_mul_i32 s41, s%d, 54' % S_CG)
    a('s_add_u32 s41, s41, s%d' % S_KS0)
    a('s_mul_i32 s41, s41, 5120')
    a('s_add_u32 s%d, s41, %d' % (S_W2, W2_T))
    a('s_add_u32 s41, s%d, %d' % (S_W2, 65 * 1024))
    a('s_cmp_ge_u32 s%d, 2' % S_W)
    a('s_cselect_b32 s%d, %d, s41' % (S_W2X, OOB))
    a('s_lshl_b32 s%d, s%d, 8' % (S_TFL, S_TEAM))
    a('s_add_u32 s%d, s%d, %d' % (S_TFL, S_TFL, FL))
    a('s_lshl_b32 s3, s40, 2')
    a('s_add_u32 s%d, s%d, s3' % (S_FLAG, S_TFL))
    a('s_mov_b32 s%d, 0' % S_PH)
    a('s_mov_b32 s%d, 0' % S_XOFF)
    a('s_and_b32 s3, s%d, 7' % S_TEAM)
    a('s_cmp_eq_u32 s3, 0')
    a('s_cselect_b32 s41, 0, 1')
    a('s_sub_u32 s41, s%d, s41' % S_TEAM)
    a('s_lshl_b32 s41, s41, 3')
    a('s_add_u32 s41, s41, 7')
    a('s_mul_i32 s%d, s41, 20480' % S_HSRC)
    a('s_add_u32 s%d, s%d, %d' % (S_HSRC, S_HSRC, XB[0]))
    a('s_lshl_b32 s%d, s41, 10' % S_HSTS)
    a('s_add_u32 s%d, s%d, %d' % (S_HSTS, S_HSTS, STB[0]))
    a('v_and_b32 v70, 15, v0')
    a('v_lshrrev_b32 v71, 4, v0')
    a('v_lshlrev_b32 v71, 2, v71')
    a('v_sub_u32 v71, v71, v70')
    a('v_mov_b32 v72, 0x%x' % f32bits(-1e30))
    a('v_mov_b32 v73, 0xffff')
    a('v_mov_b32 v74, 0xffff0000')
    a('s_and_b32 s3, s%d, 7' % S_TEAM)
    a('s_or_b32 s3, s3, s%d' % S_W)
    a('s_cmp_lg_u32 s3, 0')
    a('s_cselect_b64 s[42:43], -1, 0')
    for e in range(4):
        a('v_add_u32 v75, %d, v71' % (e + 7))
        a('v_cmp_ge_u32 vcc, 7, v75')
        a('v_cndmask_b32 v%d, v72, 0, vcc' % (BIASC + e))
        a('v_cndmask_b32 v76, 0, v%d, vcc' % (73 + (e & 1)))
        if e & 1:
            a('v_or_b32 v%d, v%d, v76' % (MASKC + (e >> 1), MASKC + (e >> 1)))
        else:
            a('v_mov_b32 v%d, v76' % (MASKC + (e >> 1)))
        a('v_cmp_le_i32 vcc, 16, v75')
        a('v_cndmask_b32 v%d, v72, 0, vcc' % (BIASP + e))
        a('v_cndmask_b32 v76, 0, v%d, vcc' % (73 + (e & 1)))
        if e & 1:
            a('v_or_b32 v%d, v%d, v76' % (MASKP + (e >> 1), MASKP + (e >> 1)))
        else:
            a('v_mov_b32 v%d, v76' % (MASKP + (e >> 1)))
        a('v_cndmask_b32 v%d, v72, v%d, s[42:43]' % (BIASP0 + e, BIASP + e))


def late_consts(a):
    a('v_lshrrev_b32 v162, 4, v0')
    a('v_lshlrev_b32 v162, 3, v162')
    make_srd(a, 8, 74, 1728 * 2)
    a('s_lshl_b32 s3, s%d, 6' % S_BLK)
    a('buffer_load_dwordx2 %s, v162, s[8:11], s3 offen' % vr(B1R, 2))
    a('buffer_load_dwordx2 %s, v162, s[8:11], s3 offen offset:32' % vr(B1R + 2, 2))
    make_srd(a, 8, 78, 640 * 2)
    for s in range(5):
        a('buffer_load_dwordx2 %s, v162, s[8:11], s%d offen offset:%d' % (vr(B2R + 2 * s, 2), S_COL, 32 * s))


AQ0, AQ1, AK, AV1, AV2, AO2 = 152, 153, 154, 155, 156, 157
C_SCALE = (20 ** -0.5) * math.log2(math.e)


def attn_addr(a, T):
    a('s_mul_i32 s47, s%d, %d' % (S_W, TP))
    a('s_add_u32 s47, s47, %d' % L_SCR)
    a('v_and_b32 v%d, 15, v0' % T)
    a('v_mul_u32_u24 v%d, 272, v%d' % (T, T))
    a('v_add_u32 v%d, s47, v%d' % (T, T))
    a('v_lshrrev_b32 v%d, 4, v0' % (T + 1))
    a('v_lshlrev_b32 v%d, 3, v%d' % (T + 1, T + 1))
    for reg, tab in ((AQ0, (0, 1, 4, 16)), (AQ1, (2, 3, 15, 16)), (AK, (5, 6, 9, 9))):
        c = sum(t << (8 * i) for i, t in enumerate(tab))
        a('s_mov_b32 s3, 0x%x' % c)
        a('v_bfe_u32 v%d, s3, v%d, 8' % (reg, T + 1))
        a('v_lshl_add_u32 v%d, v%d, 4, v%d' % (reg, reg, T))
    a('v_lshrrev_b32 v%d, 2, v0' % AV2)
    a('v_mul_u32_u24 v%d, 272, v%d' % (AV2, AV2))
    a('v_add_u32 v%d, s47, v%d' % (AV2, AV2))
    a('v_and_b32 v%d, 3, v0' % T)
    a('v_lshl_add_u32 v%d, v%d, 3, v%d' % (AV1, T, AV2))
    a('v_mov_b32 v%d, 0x%x' % (T, OOB))
    a('v_cmp_gt_u32 vcc, 16, v0')
    a('v_cndmask_b32 v%d, v%d, v1, vcc' % (AO2, T))
    a('s_lshl_b32 s47, s%d, 3' % S_TEAM)
    a('s_add_u32 s47, s47, s%d' % S_W)
    a('s_mul_i32 s47, s47, 20480')
    a('s_mul_i32 s3, s%d, 1280' % S_J)
    a('s_add_u32 s47, s47, s3')
    a('s_mul_i32 s3, s%d, %d' % (S_PASS, XSZ))
    a('s_add_u32 s47, s47, s3')
    a('s_add_u32 s47, s47, %d' % OB[0])
    a('s_mov_b32 s48, 0x%x' % f32bits(C_SCALE))


def attn_units(r, units, OUTS):
    for (b, h, Q, K, S) in units:
        off = b * 4 * TP
        tg = 'q%d%d' % (b, h)
        r('ds_read_b128 %s, v%d offset:%d' % (vr(Q, 4), AQ1 if h else AQ0, off + TP), tag=tg)
        r('ds_read_b128 %s, v%d offset:%d' % (vr(K, 4), AK, off + 80 * h), tag=tg)
        r('ds_read_b128 %s, v%d offset:%d' % (vr(K + 4, 4), AK, off + 80 * h + TP), tag=tg)
    for (b, h, Q, K, S) in units:
        off = b * 4 * TP
        r.wait_lg('q%d%d' % (b, h))
        r('v_mfma_f32_16x16x32_bf16 %s, %s, %s, %s' % (vr(S, 4), vr(K, 4), vr(Q, 4), vr(BIASP0 if b == 0 else BIASP, 4)))
        r('v_mfma_f32_16x16x32_bf16 %s, %s, %s, %s' % (vr(S + 4, 4), vr(K + 4, 4), vr(Q, 4), vr(BIASC, 4)))
    for (b, h, Q, K, S) in units:
        off = b * 4 * TP
        for i in range(2):
            r('ds_read_b64_tr_b16 %s, v%d offset:%d' % (vr(K + 2 * i, 2), AV1, off + i * TP + 112 + 80 * h), tag='v%d%d' % (b, h))
            r('ds_read_b64_tr_b16 %s, v%d offset:%d' % (vr(K + 4 + 2 * i, 2), AV2, off + i * TP + 152 + 80 * h), tag='v%d%d' % (b, h))

    def each(fn):
        for (b, h, Q, K, S) in units:
            fn(Q, S)
    for e in range(4):
        each(lambda Q, S: r('v_max_f32 v%d, v%d, v%d' % (S + e, S + e, S + 4 + e)))
    each(lambda Q, S: r('v_max3_f32 v%d, v%d, v%d, v%d' % (S + 4, S, S + 1, S + 2)))
    each(lambda Q, S: r('v_max_f32 v%d, v%d, v%d' % (S + 4, S + 4, S + 3)))
    Ss = [u[4] for u in units]
    A, B, C, D = [x + 4 for x in Ss]
    r('v_permlane32_swap_b32 v%d, v%d' % (A, B))
    r('v_permlane32_swap_b32 v%d, v%d' % (C, D))
    r('v_max_f32 v%d, v%d, v%d' % (A, A, B))
    r('v_max_f32 v%d, v%d, v%d' % (C, C, D))
    r('v_permlane16_swap_b32 v%d, v%d' % (A, C))
    r('v_max_f32 v%d, v%d, v%d' % (A, A, C))
    r('v_mul_f32 v%d, s48, v%d' % (A, A))
    r('v_mov_b32 v%d, v%d' % (C, A))
    r('v_permlane16_swap_b32 v%d, v%d' % (A, C))
    r('v_mov_b32 v%d, v%d' % (B, A))
    r('v_mov_b32 v%d, v%d' % (D, C))
    r('v_permlane32_swap_b32 v%d, v%d' % (A, B))
    r('v_permlane32_swap_b32 v%d, v%d' % (C, D))
    for e in range(4):
        each(lambda Q, S: r('v_fma_f32 v%d, v%d, s48, -v%d' % (S + e, S + e, S + 4)))
    for e in range(4):
        each(lambda Q, S: r('v_exp_f32 v%d, v%d' % (S + e, S + e)))
    for q in range(4):
        r('v_mov_b32 v%d, 0x%x' % (144 + q, ONES))
    for q in range(2):
        each(lambda Q, S: r('v_cvt_pk_bf16_f32 v%d, v%d, v%d' % (S + 4 + q, S + 2 * q, S + 2 * q + 1)))
    for q, (m, x) in enumerate(((MASKP, 0), (MASKP + 1, 1), (MASKC, 0), (MASKC + 1, 1))):
        each(lambda Q, S: r('v_and_b32 v%d, v%d, v%d' % (Q + q, S + 4 + x, m)))
    for (b, h, Q, K, S) in units:
        r.wait_lg('v%d%d' % (b, h))
        r('v_mfma_f32_16x16x32_bf16 %s, %s, %s, 0' % (vr(S, 4), vr(K, 4), vr(Q, 4)))
        r('v_mfma_f32_16x16x32_bf16 %s, %s, %s, 0' % (vr(S + 4, 4), vr(K + 4, 4), vr(Q, 4)))
    for (b, h, Q, K, S) in units:
        r('v_mfma_f32_16x16x32_bf16 %s, v[144:147], %s, 0' % (vr(K + 4, 4), vr(Q, 4)))
    for b in range(2):
        r('s_add_u32 s%d, s47, %d' % (S_QA - b, b * 4 * 20480))
    for (b, h, Q, K, S) in units:
        r('v_rcp_f32 v%d, v%d' % (K + 4, K + 4))
    for (b, h, Q, K, S) in units:
        for q in range(4):
            r('v_pk_mul_f32 %s, %s, %s op_sel_hi:[1,0]' % (vr(S + 2 * q, 2), vr(S + 2 * q, 2), vr(K + 4, 2)))
    for bb in range(2):
        OUT = OUTS[bb]
        for (b, h, Q, K, S) in units:
            if b != bb:
                continue
            for t in range(2):
                for q in range(2):
                    r('v_cvt_pk_bf16_f32 v%d, v%d, v%d' % (OUT + 4 * t + 2 * h + q, S + 4 * t + 2 * q, S + 4 * t + 2 * q + 1))
        r('buffer_store_dwordx4 %s, v1, s[4:7], s%d offen sc1' % (vr(OUT, 4), S_QA - bb), tag='pub')
        r('buffer_store_dwordx4 %s, v%d, s[4:7], s%d offen offset:1024 sc1' % (vr(OUT + 4, 4), AO2, S_QA - bb), tag='pub')


P3_PENDING_W2 = []


def gen_nsplit(a, which):
    p1 = which == 1
    WSL = WQ_SL if p1 else W1_SL
    wtag = 'wq' if p1 else 'w1'
    CS = CS1 if p1 else CS3
    G = OPT['g1'] if p1 else OPT['g3']
    NSET = G + 1
    ACC0 = 64
    FR = 104
    STP = 136
    PK = 140
    VB = 148
    VSW, VSR = 150, 151
    VSTW = 158
    SRL = list(range(96, 104)) + list(range(140, 148))
    T0 = FR
    st_i = 10 if p1 else 30
    NT = 9 if p1 else 8
    xin = XB[0] if p1 else XB[1]
    stin = STB[0] if p1 else STB[1]
    LEAD = 3
    KC = 20 // G
    if p1:
        late = list(range(17 + OPT['burst4'], 40))
    else:
        late = []
        a.flush_m(pred=lambda g: g[-1][2] == wtag)

    def accset(T):
        return ACC0 + 8 * (T % NSET)

    a('s_mul_i32 s44, s%d, 5120' % S_W)
    a('s_mul_i32 s45, s%d, 163840' % S_TEAM)
    a('s_add_u32 s45, s45, s%d' % S_XOFF)
    per = 4 // G
    a('s_lshr_b32 s50, s%d, %d' % (S_W, {1: 2, 2: 1, 4: 0}[G]))
    a('s_and_b32 s51, s%d, %d' % (S_W, per - 1))
    a('s_mul_i32 s51, s51, 5120')
    a('s_mul_i32 s46, s50, 20480')
    a('s_add_u32 s46, s46, s45')
    a('s_add_u32 s46, s46, %d' % (xin - (20480 if p1 else 0)))
    if p1:
        a('s_cmp_eq_u32 s50, 0')
        a('s_cselect_b32 s46, s%d, s46' % S_HSRC)
    a('s_add_u32 s46, s46, s51')
    a('s_add_u32 s45, s45, s44')
    if p1:
        attn_addr(a, T0)
    a('v_lshrrev_b32 v%d, 4, v0' % T0)
    a('s_lshl_b32 s3, s%d, 2' % S_W)
    a('v_add_u32 v%d, s3, v%d' % (T0, T0))
    a('v_and_b32 v%d, 15, v0' % (T0 + 1))
    a('v_lshlrev_b32 v%d, 3, v%d' % (VSR, T0 + 1))
    a('v_lshl_add_u32 v%d, v%d, 10, v%d' % (T0 + 3, T0, VSR))
    a('v_add_u32 v%d, %d, v%d' % (VSR, L_STAT, VSR))
    a('v_min_u32 v%d, 11, v%d' % (VSTW, T0))
    a('v_lshl_add_u32 v%d, v%d, 7, v%d' % (VSTW, VSTW, VSR))
    a('s_lshl_b32 s40, s%d, 13' % S_TEAM)
    a('s_lshl_b32 s3, s%d, 18' % S_PASS)
    a('s_add_u32 s40, s40, s3')
    a('s_add_u32 s40, s40, %d' % (stin - (1024 if p1 else 0)))
    a('v_mov_b32 v%d, s40' % (T0 + 4))
    if p1:
        a('v_mov_b32 v%d, s%d' % (T0 + 5, S_HSTS))
        a('v_cmp_eq_u32 vcc, 0, v%d' % T0)
        a('v_cndmask_b32 v%d, v%d, v%d, vcc' % (T0 + 4, T0 + 4, T0 + 5))
    a('v_mov_b32 v%d, 0x%x' % (T0 + 5, OOB))
    a('v_cmp_gt_u32 vcc, %d, v%d' % (NT, T0))
    a('v_cndmask_b32 v%d, v%d, v%d, vcc' % (T0 + 4, T0 + 5, T0 + 4))
    a('v_add_u32 v%d, v%d, v%d' % (T0 + 3, T0 + 3, T0 + 4))
    a('v_mov_b32 v%d, v1' % VB)
    a('v_add_u32 v%d, %d, v1' % (VB + 1, 3 * SLOT))
    if p1:
        a('v_mul_u32_u24 v%d, 272, v%d' % (VSW, T0 + 1))
        a('v_lshl_add_u32 v%d, v%d, 4, v%d' % (VSW, T0, VSW))
        a('v_add_u32 v%d, %d, v%d' % (VSW, L_SCR, VSW))
    else:
        a('s_lshl_b32 s41, s%d, 3' % S_TEAM)
        a('s_mul_i32 s41, s41, 54')
        a('s_add_u32 s41, s41, s%d' % S_BLK)
        a('s_lshl_b32 s41, s41, 10')
        a('s_mul_i32 s3, s%d, %d' % (S_PASS, HSZ))
        a('s_add_u32 s41, s41, s3')
        a('s_add_u32 s41, s41, %d' % HB[0])
    a('s_mov_b32 s42, 0x%x' % f32bits(-1.0 / 640.0))
    a('s_mov_b32 s43, 0x%x' % f32bits(1e-5))

    def colsum():
        for q in range(4):
            a('v_mov_b32 v%d, 0x%x' % (STP + q, ONES))
        if not p1:
            for q in (3, 2, 1, 0):
                a('v_and_b32 v%d, 0xffff0000, v%d' % (B1R + 1 + 2 * q, B1R + q))
                a('v_lshlrev_b32 v%d, 16, v%d' % (B1R + 2 * q, B1R + q))
            a.wait_vm(wtag)
        for ks in range(20):
            for t in range(2):
                d = vr(PK + 4 * t, 4)
                a('v_mfma_f32_16x16x32_bf16 %s, %s, %s, %s' % (d, slot_reg(WSL[ks * 2 + t]), vr(STP, 4), '0' if ks == 0 else d))
        for q in range(8):
            a('v_mov_b32 v%d, v%d' % (CS + q, PK + q))

    def pass0(fn):
        L = a.newlabel('p0')
        a('s_cmp_lg_u32 s%d, 0' % S_PASS)
        a('s_cbranch_scc1 %s' % L)
        vm0 = list(a.vm)
        fn()
        a.label(L)
        a.vm = vm0

    if p1:
        LS = a.newlabel('p1_nowait')
        a('s_cmp_eq_u32 s%d, 0' % S_PASS)
        a('s_cbranch_scc1 %s' % LS)
        poll(a, S_TFL, 's%d' % S_PH)
        LH = a.newlabel('p1_nohalo')
        a('s_and_b32 s49, s%d, 7' % S_TEAM)
        a('s_cmp_eq_u32 s49, 0')
        a('s_cbranch_scc1 %s' % LH)
        a('s_lshl_b32 s49, s%d, 7' % S_TEAM)
        a('s_add_u32 s49, s49, %d' % (HF - 128))
        poll(a, 49, '1', lanes=0xff)
        a.label(LH)
        LG = a.newlabel('p1_go')
        a('s_branch %s' % LG)
        a.label(LS)
        first_deps(a)
        a.label(LG)
        a.vm = []
    else:
        pass0(colsum)
        poll(a, S_TFL, 's%d' % S_PH)
    stamp(a, st_i)
    LSKIP = None
    if not p1:
        LSKIP = a.newlabel('p3_skip')
        a('s_cmp_ge_u32 s%d, 14' % S_J)
        a('s_cbranch_scc1 %s' % LSKIP)

    def unit_dma(u):
        gs = []
        if u < G:
            sb, go = 46, u * KC * 1024
        else:
            sb, go = 45, xin + (u - 1 if p1 else u) * SLOT
        for i in range(5):
            g = []
            if i % 4 == 0:
                g.append(('i', 's_add_u32 m0, s44, %d' % ((u % NSLOT) * SLOT + i * 1024), None))
                g.append(('i', 's_add_u32 s%d, s%d, %d' % (S_DMA, sb, go + i * 1024), None))
            g.append(('i', 'buffer_load_dwordx4 v1, s[4:7], s%d offen offset:%d%s lds' % (S_DMA, (i % 4) * 1024, LDM()), 'd%d' % u))
            gs.append(g)
        return gs

    seq = []
    for u in range(NT):
        if u < G:
            for kk in range(KC):
                for tl in range(G):
                    seq.append((u, tl, u * KC + kk, tl * KC + kk))
        else:
            for ks in range(20):
                seq.append((u, u, ks, ks))

    lateg = {}
    for g, f in zip(wloads(S_WQ, WQ_SL, late, tagp='wq'), late):
        c = min((f // 2) // KC, G - 1)
        g[-1] = ('i', g[-1][1], 'wq%d' % c)
        lateg.setdefault(c, []).append(g)

    now(a, lateg.get(0, []))
    now(a, unit_dma(0))
    stl = [[('i', 'buffer_load_dwordx2 %s, v%d, s[4:7], 0 offen offset:%d%s' % (vr(SRL[2 * q], 2), 159, 128 * q, LDM()), 'dst')] for q in range(8)]
    a('v_mov_b32 v159, v%d' % (T0 + 3))
    inl = (not p1) and OPT['st3'] and G >= 2
    if not inl:
        now(a, stl)
    now(a, unit_dma(1))
    if p1:
        pass0(lambda: now(a, wloads(S_WQ, WQ_SL, range(10, 17 + OPT['burst4']), tagp='wq')))
        a('s_mov_b32 s3, 0x%x' % OOB)
        a('buffer_load_dword v163, v%d, s[4:7], s3 offen' % VZ, tag='wqE')
    r = Rec()
    r.wait_vm('dst')
    for lvl in (8, 4, 2):
        for q in range(lvl):
            r('v_add_f32 v%d, v%d, v%d' % (SRL[q], SRL[q], SRL[lvl + q]))
    S0, S1 = SRL[0], SRL[1]
    r('v_mul_f32 v%d, s42, v%d' % (S0, S0))
    r('v_mul_f32 v%d, s42, v%d' % (S1, S1))
    r('v_fma_f32 v%d, v%d, v%d, v%d' % (S1, S0, S0, S1))
    r('v_min_f32 v%d, 0, v%d' % (S1, S1))
    r('v_cvt_pk_bf16_f32 v%d, v%d, v%d' % (S1, S0, S1))
    r('v_lshlrev_b32 v%d, 16, v%d' % (S0, S1))
    r('v_and_b32 v%d, 0xffff0000, v%d' % (S1, S1))
    r('v_sub_f32 v%d, s43, v%d' % (S1, S1))
    r('v_cvt_pk_bf16_f32 v%d, 0, v%d' % (S1, S1))
    r('v_sqrt_f32 v%d, v%d' % (S1, S1))
    r('v_cvt_pk_bf16_f32 v%d, 0, v%d' % (S1, S1))
    r('v_rcp_f32 v%d, v%d' % (S1, S1))
    r('ds_write_b64 v%d, %s' % (VSTW, vr(S0, 2)), tag='stw')
    stats_items = r.items
    a.wait_vm('d0')
    a.wait_lg_all()
    a('s_barrier')
    stamp(a, st_i + 1)
    held = []
    if p1:
        held = wloads(S_WO, WO_SL, range(25), tagp='wo') + wloads(S_W1, W1_SL, range(22), tagp='w1')
    a.qm = (stl if inl else []) + lateg.get(1, []) + unit_dma(2) + lateg.get(2, []) + unit_dma(3) + lateg.get(3, []) + a.qm

    NF = NT * 20
    DEPTH = 6

    def rd(n):
        u, tl, ks, blk = seq[n]
        sl = u % NSLOT
        return ('i', 'ds_read_b128 %s, v%d offset:%d' % (vr(FR + 4 * (n % 8), 4), VB + sl // 3, (sl % 3) * SLOT + blk * 1024), 'f%d' % n)

    def epilogue(r, T, pk):
        b = accset(T)
        sp = STP + 2 * (T & 1)
        P = PK + 4 * (T & 1)
        if not p1:
            r('s_add_u32 s%d, s41, %d' % (S_QV, T * 55296))
        r.wait_lg('sp%d' % T)
        if pk:
            for q in range(4):
                r('v_pk_fma_f32 %s, %s, %s, %s op_sel_hi:[0,1,1]' % (vr(b + 2 * q, 2), vr(sp, 2), vr(CS + 2 * q, 2), vr(b + 2 * q, 2)))
            if p1:
                for q in range(4):
                    r('v_pk_mul_f32 %s, %s, %s op_sel:[1,0]' % (vr(b + 2 * q, 2), vr(sp, 2), vr(b + 2 * q, 2)))
            else:
                for q in range(4):
                    r('v_pk_fma_f32 %s, %s, %s, %s op_sel:[1,0,0]' % (vr(b + 2 * q, 2), vr(sp, 2), vr(b + 2 * q, 2), vr(B1R + 2 * q, 2)))
                for e in range(8):
                    r('v_max_f32 v%d, 0, v%d' % (b + e, b + e))
                for q in range(4):
                    r('v_pk_mul_f32 %s, %s, %s' % (vr(b + 2 * q, 2), vr(b + 2 * q, 2), vr(b + 2 * q, 2)))
        else:
            for e in range(8):
                r('v_fmac_f32 v%d, v%d, v%d' % (b + e, sp, CS + e))
            if p1:
                for e in range(8):
                    r('v_mul_f32 v%d, v%d, v%d' % (b + e, b + e, sp + 1))
            else:
                for e in range(8):
                    r('v_fma_f32 v%d, v%d, v%d, v%d' % (b + e, b + e, sp + 1, B1R + e))
                for e in range(8):
                    r('v_max_f32 v%d, 0, v%d' % (b + e, b + e))
                for e in range(8):
                    r('v_mul_f32 v%d, v%d, v%d' % (b + e, b + e, b + e))
        if T + 2 < NT:
            r.items.append(sp_read(T + 2))
        for q in range(4):
            r('v_cvt_pk_bf16_f32 v%d, v%d, v%d' % (P + q, b + 2 * q, b + 2 * q + 1))
        if p1:
            r('ds_write_b128 v%d, %s offset:%d' % (VSW, vr(P, 4), T * TP), tag='sw')
        else:
            r('buffer_store_dwordx4 %s, v1, s[4:7], s%d offen sc1' % (vr(P, 4), S_QV), tag='pub')
        r.items.append(('mark', T, None))

    def sp_read(T):
        return ('i', 'ds_read_b64 %s, v%d offset:%d' % (vr(STP + 2 * (T & 1), 2), VSR, T * 128), 'sp%d' % T)

    def flush_until(T):
        while any(it[0] == 'mark' and it[1] == T for it in a.qv):
            a.emit_item(a.qv.pop(0))

    if OPT['tstamp'] // 10 == which:
        a('s_memtime s[64:65]')
    for n in range(DEPTH):
        a.emit_item(rd(n))
    a.wait_lg('f1')
    nread = DEPTH
    quiet = OPT['quiet1'] if p1 else OPT['quiet3']
    a.pace = OPT['pace']
    edone = 0
    for n in range(NF):
        u, T, ks, blk = seq[n]
        pos = n % 20
        acc = accset(T)
        if pos == 0:
            if u >= NSET:
                flush_until(u - NSET)
            if u < G and u >= 1:
                a.flush_m(pred=lambda g: g[-1][2] == 'wq%d' % u)
                a.wait_vm('wq%d' % u)
            if p1 and u == 1:
                a.wait_vm('wqE')
                lg0 = list(a.lg)
                pass0(lambda: first_unit1(a))
                a.lg = lg0
            if p1 and u == OPT['lsu']:
                a.wait_vm('ls')
                pass0(lambda: late_sync(a, 0, 96))
            if u == G:
                if p1:
                    pass0(colsum)
                a.emit_item(sp_read(0))
                a.emit_item(sp_read(1))
        if p1 and n == OPT['lsu'] * 20 - 12:
            late_issue(a, 0, 96)
        if p1 and n == 8 * 20 - 30:
            late_issue(a, 1, 160)
        if p1 and n == 8 * 20 - 8:
            a.wait_vm('ls')
            pass0(lambda: late_sync(a, 1, 160))
        a.quiet = (NF - n) * 2 <= quiet
        for t in range(2):
            fg = []
            wait = None
            d = vr(acc + 4 * t, 4)
            if t == 0 and nread < NF:
                if nread % 20 == 0:
                    Tn = nread // 20
                    if Tn == (2 if inl else 1):
                        a.flush_v()
                        a.wait_lg('stw')
                    a.flush_m(pred=lambda g: g[-1][2] == 'd%d' % Tn)
                    a.wait_vm('d%d' % Tn)
                    a('s_barrier')
                    if OPT['tstamp'] == which * 10 + 3:
                        a('s_memtime s[%d:%d]' % (64 + 2 * Tn, 65 + 2 * Tn))
                    if p1 and Tn == OPT['lsu'] + 1:
                        a.qm += held
                    if Tn + LEAD < NT:
                        ps = max([i + 1 for i, g in enumerate(a.qm) if g[-1][2].startswith('d') or g[-1][2][:2] == 'wq'] + [0])
                        a.qm[ps:ps] = unit_dma(Tn + LEAD)
                fg.append(rd(nread))
                nread += 1
            if t == 1 and (n & 1) == 1 and n + 1 < NF:
                wait = ('wl', 'f%d' % min(n + 2, NF - 1), None)
            a.mfma('v_mfma_f32_16x16x32_bf16 %s, %s, %s, %s' % (d, slot_reg(WSL[ks * 2 + t]), vr(FR + 4 * (n % 8), 4), '0' if ks == 0 else d), fg, wait)
        if (n == 22 and inl) or (n == 1 and not inl):
            a.flush_m(pred=lambda g: g[-1][2] == 'dst')
            a.qv += stats_items
        if pos == 3 and u >= G:
            while edone < u:
                r = Rec()
                epilogue(r, edone, False)
                a.qv += r.items
                edone += 1
    a.quiet = False
    a.flush_v()
    if OPT['tstamp'] // 10 == which:
        a('s_memtime s[82:83]')
        a('s_waitcnt lgkmcnt(0)')
        a.lg = []
        a('s_lshl_b32 s99, s2, 2')
        a('s_add_u32 s99, s99, s%d' % S_W)
        a('s_lshl_b32 s99, s99, 9')
        a('s_lshl_b32 s98, s%d, 8' % S_PASS)
        a('s_add_u32 s99, s99, s98')
        a('s_add_u32 s99, s99, %d' % STAMP_BASE)
        a('s_mov_b64 exec, 1')
        for q in range(10):
            a('v_mov_b32 v163, s%d' % (64 + 2 * q))
            a('buffer_store_dword v163, v%d, s[4:7], s99 offen offset:%d' % (VZ, 4 * q), tag='stamp')
        a('s_mov_b64 exec, -1')
    stamp(a, st_i + 2)
    if p1:
        a.qm += wloads(S_W1, W1_SL, range(22, 40), tagp='w1') + w2loads(range(22))
    else:
        a.qm += w2loads(range(47, 70)) + wloads(S_WQ, WQ_SL, range(17), srd='s[16:19]', tagp='wq')
    if p1:
        a.flush_m(OPT['tail1'])
    r = Rec()
    epilogue(r, NT - 1, True)
    a.run(r, every=0)
    if p1:
        a.wait_lg_all()
        a('s_barrier')
        stamp(a, st_i + 3)
        r = Rec()
        attn_units(r, [(0, 0, 64, 68, 76), (0, 1, 84, 88, 96), (1, 0, 104, 108, 116), (1, 1, 124, 128, 136)], (64, 104))
        half = len(r.items) // 2
        r2 = Rec()
        r2.items = r.items[half:]
        r.items = r.items[:half]
        a.run(r, every=OPT['aevery'])
        a.run(r2, every=0)
        stamp(a, st_i + 4)
        publish(a)
        a.flush_m(OPT['burst1'])
    else:
        LJ = a.newlabel('p3_join')
        stamp(a, st_i + 4)
        publish(a)
        a.flush_m(pred=lambda g: g[-1][2] == 'w2')
        a('s_branch %s' % LJ)
        vm_main = list(a.vm)
        a.label(LSKIP)
        a.vm = []
        publish(a)
        now(a, w2loads(P3_PENDING_W2 + list(range(47, 70))))
        a.label(LJ)
        a.vm = vm_main
    stamp(a, st_i + 5)


def gen_ksplit(a, which):
    p2 = which == 2
    NK = 5 if p2 else 14
    KS = 20 if p2 else 54
    WSL = WO_SL if p2 else W2_SL
    wtag = 'wo' if p2 else 'w2'
    ACC = [64, 84]
    RING = 104
    NR = 14
    VW = 160
    VRD = 161
    st_i = 20 if p2 else 40
    a.flush_m(pred=lambda g: g[-1][2] == wtag)
    a('s_lshl_b32 s40, s%d, 3' % S_TEAM)
    a('s_lshr_b32 s3, s%d, 3' % S_J)
    a('s_lshl_b32 s3, s3, 2')
    a('s_add_u32 s40, s40, s3')
    a('s_mul_i32 s40, s40, %d' % KS)
    if p2:
        a('s_mul_i32 s3, s%d, 5' % S_W)
        a('s_add_u32 s40, s40, s3')
    else:
        a('s_add_u32 s40, s40, s%d' % S_KS0)
    a('s_lshl_b32 s40, s40, 10')
    a('s_mul_i32 s3, s%d, %d' % (S_PASS, XSZ if p2 else HSZ))
    a('s_add_u32 s40, s40, s3')
    a('s_add_u32 s40, s40, %d' % (OB[0] if p2 else HB[0]))
    for i in range(4):
        a('s_add_u32 s3, s%d, %d' % (S_W, 1 + i))
        a('s_and_b32 s3, s3, 3')
        a('s_mul_i32 s%d, s3, %d' % (41 + i, KS * 1024))
        a('s_add_u32 s%d, s%d, s40' % (41 + i, 41 + i))
        if i < 3:
            a('s_mul_i32 s%d, s3, 15360' % (52 + i))
        if not p2:
            a('s_add_u32 s%d, s%d, %d' % (48 + i, 41 + i, 13 * 1024))
            a('s_cmp_ge_u32 s%d, 2' % S_W)
            a('s_cselect_b32 s%d, %d, s%d' % (48 + i, OOB, 48 + i))
    a('s_mul_i32 s3, s%d, 15360' % S_W)
    a('v_add_u32 v%d, s3, v1' % VRD)
    xout = XB[1] if p2 else XB[2]
    stout = STB[1] if p2 else STB[2]
    a('s_add_u32 s36, s%d, s%d' % (S_XT, S_XOFF))
    a('s_add_u32 s36, s36, %d' % xout)
    a('s_lshl_b32 s3, s%d, 18' % S_PASS)
    a('s_add_u32 s37, s%d, s3' % S_STT)
    a('s_add_u32 s37, s37, %d' % stout)
    if not p2:
        a('s_lshl_b32 s38, s%d, 7' % S_TEAM)
        a('s_lshl_b32 s3, s%d, 2' % S_CG)
        a('s_add_u32 s38, s38, s3')
        a('s_add_u32 s38, s38, %d' % HF)
        a('s_cmp_eq_u32 s%d, 7' % S_MT)
        a('s_cselect_b32 s38, s38, %d' % OOB)
    poll(a, S_TFL, 's%d' % S_PH)
    stamp(a, st_i)
    seq = [(i, k) for i in range(4) for k in range(NK)]

    def ld(n):
        i, k = seq[n]
        g = []
        reg = vr(RING + 4 * (n % NR), 4)
        if (not p2) and k == 13:
            g.append(('i', 'buffer_load_dwordx4 %s, v1, s[4:7], s%d offen%s' % (reg, 48 + i, LDM()), 'a%d' % n))
            return g
        if k % 4 == 0:
            g.append(('i', 's_add_u32 s%d, s%d, %d' % (S_DMA, 41 + i, k * 1024), None))
        g.append(('i', 'buffer_load_dwordx4 %s, v1, s[4:7], s%d offen offset:%d%s' % (reg, S_DMA, (k % 4) * 1024, LDM()), 'a%d' % n))
        return g

    nld = OPT['kfirst']
    for n in range(nld):
        for it in ld(n):
            a.emit_item(it)
    own = ACC[1]
    ini = Rec()
    for q in range(10):
        ini('v_lshlrev_b32 v%d, 16, v%d' % (own + 2 * q, XRES + q))
        ini('v_and_b32 v%d, 0xffff0000, v%d' % (own + 2 * q + 1, XRES + q))
    if not p2:
        for q in range(10):
            ini('v_lshlrev_b32 v162, 16, v%d' % (B2R + q))
            ini('v_add_f32 v%d, v%d, v162' % (own + 2 * q, own + 2 * q))
            ini('v_and_b32 v162, 0xffff0000, v%d' % (B2R + q))
            ini('v_add_f32 v%d, v%d, v162' % (own + 2 * q + 1, own + 2 * q + 1))
    n = 0
    PS = ACC[0]
    for i in range(4):
        acc = ACC[i & 1]
        cnt = 0
        a.flush_v()
        for k in range(NK):
            a.quiet = (len(seq) - n) * 5 <= OPT['quiet4']
            a.wait_vm('a%d' % n)
            for s in range(5):
                d = vr(acc + 4 * s, 4)
                fg = []
                if nld < len(seq) and ((s == 4 and nld <= n + NR) or (s in (0, 2) and nld < n + NR)):
                    fg = ld(nld)
                    nld += 1
                first = (k == 0 and i != 3)
                a.mfma('v_mfma_f32_16x16x32_bf16 %s, %s, %s, %s' % (d, slot_reg(WSL[k * 5 + s]), vr(RING + 4 * (n % NR), 4), '0' if first else d), fg)
                cnt += 1
                if cnt == 3 and i >= 1:
                    pacc = ACC[(i - 1) & 1]
                    r = Rec()
                    r('v_add_u32 v%d, s%d, v1' % (VW, 52 + i - 1))
                    for s2 in range(5):
                        r('ds_write_b128 v%d, %s offset:%d' % (VW, vr(pacc + 4 * s2, 4), ((i - 1) * 5 + s2) * 1024), tag='pw')
                    if i == 2:
                        r.delay(3)
                        r.wait_lg('pw')
                        r.items += ini.items
                    a.qv += r.items
                if i == 3 and cnt == (14 if p2 else 30):
                    a.flush_v()
                    a.wait_lg_all()
                    a('s_barrier')
                    r = Rec()
                    for s2 in range(5):
                        r('ds_read_b128 %s, v%d offset:%d' % (vr(PS + 4 * s2, 4), VRD, s2 * 1024), tag='pr0')
                    a.qv += r.items
            n += 1
    a.quiet = False
    a.flush_v()
    stamp(a, st_i + 1)
    if p2:
        a.qm += w2loads(range(22, 47))
    else:
        a.qm += wloads(S_WQ, WQ_SL, range(17, 17 + OPT['burst4']), srd='s[16:19]', tagp='wq')
    for src in (1, 2):
        for s2 in range(5):
            a('ds_read_b128 %s, v%d offset:%d' % (vr(RING + (src - 1) * 20 + 4 * s2, 4), VRD, (src * 5 + s2) * 1024), tag='pr%d' % src)
    a.flush_m(OPT['tail2'] if p2 else OPT['tail4'])
    tile5_voff(a, 144, 145)
    stat_voff(a, 145, 146)
    a.wait_lg('pr0')
    for q in range(10):
        a('v_pk_add_f32 %s, %s, %s' % (vr(own + 2 * q, 2), vr(own + 2 * q, 2), vr(PS + 2 * q, 2)))
    for src in (1, 2):
        a.wait_lg('pr%d' % src)
        for q in range(10):
            a('v_pk_add_f32 %s, %s, %s' % (vr(own + 2 * q, 2), vr(own + 2 * q, 2), vr(RING + (src - 1) * 20 + 2 * q, 2)))
    for q in range(10):
        a('v_cvt_pk_bf16_f32 v%d, v%d, v%d' % (XRES + q, own + 2 * q, own + 2 * q + 1))
    LF = None
    if not p2:
        LF = a.newlabel('final')
        a('s_cmp_eq_u32 s%d, 1' % S_PASS)
        a('s_cbranch_scc1 %s' % LF)
    store_tile(a, XRES, 36, 144)
    tile_stats(a, XRES, 64)
    a('buffer_store_dwordx2 v[64:65], v145, s[4:7], s37 offen sc1', tag='pub')
    stamp(a, st_i + 2)
    publish(a)
    if not p2:
        a('s_mov_b64 exec, 1')
        a('buffer_store_dword v162, v%d, s[4:7], s38 offen sc1' % VZ)
        a('s_mov_b64 exec, -1')
    else:
        a.flush_m(OPT['burst2'])
    stamp(a, st_i + 3)
    return LF


def main(out):
    global P3_PENDING_W2
    a = Sched()
    name = KNAME + '_kernel'
    a.raw('; @launch grid=(256,1,1) block=(256,1,1) lds=%d' % LDS_SIZE)
    a.raw('.amdgcn_target "amdgcn-amd-amdhsa--gfx950"')
    a.raw('.text')
    a.raw('.globl %s' % name)
    a.raw('.p2align 8')
    a.raw('.type %s,@function' % name)
    a.raw('%s:' % name)
    END = 'k_end'
    gen_prologue(a, END)
    gen_prep(a)
    gen_setup(a)
    gen_roles(a)
    stamp(a, 4)
    a.label('pass_loop')
    gen_nsplit(a, 1)
    gen_ksplit(a, 2)
    a.flush_m(pred=lambda g: g[-1][2] == 'w1')
    pend = []
    for g in a.qm:
        reg = g[-1][1].split()[1].rstrip(',')
        pend.append([i for i in range(70) if slot_reg(W2_SL[i]) == reg][0])
    P3_PENDING_W2 = pend
    a.qm = w2loads(pend)
    gen_nsplit(a, 3)
    LF = gen_ksplit(a, 4)
    a.flush_m()
    a('s_mov_b32 s%d, 1' % S_PASS)
    a('s_mov_b32 s%d, %d' % (S_XOFF, 2 * XSZ))
    a('s_mov_b32 s18, 0')
    a('s_add_u32 s%d, s%d, %d' % (S_HSRC, S_HSRC, 2 * XSZ))
    a('s_add_u32 s%d, s%d, %d' % (S_HSTS, S_HSTS, 2 * STSZ))
    a('s_branch pass_loop')
    a.label(LF)
    rowmajor_voff(a, 64, 65)
    for s in range(5):
        a('buffer_store_dwordx2 %s, v64, s[12:15], s%d offen offset:%d' % (vr(XRES + 2 * s, 2), S_RM, 32 * s))
    stamp(a, 50)
    a.label(END)
    a('s_endpgm')
    a.raw('code_end:')
    a.raw('.section .rodata,"a"')
    a.raw('.p2align 6')
    a.raw('.amdhsa_kernel %s' % name)
    a.raw('  .amdhsa_next_free_vgpr 512')
    a.raw('  .amdhsa_next_free_sgpr 102')
    a.raw('  .amdhsa_accum_offset 256')
    a.raw('  .amdhsa_group_segment_fixed_size 0')
    a.raw('  .amdhsa_kernarg_size 88')
    a.raw('  .amdhsa_user_sgpr_count 2')
    a.raw('  .amdhsa_user_sgpr_kernarg_segment_ptr 1')
    a.raw('  .amdhsa_system_sgpr_workgroup_id_x 1')
    a.raw('.end_amdhsa_kernel')
    open(out, 'w').write(a.text())
    print('instructions:', a.nins, 'ws end', WS_END)


if __name__ == '__main__':
    out = sys.argv[1] if len(sys.argv) > 1 else 'cdna_kernels/%s.s' % KNAME
    for o in sys.argv[2:]:
        if '=' in o:
            k, v = o.split('=')
            OPT[k] = int(v)
        else:
            OPT[o] = True
    main(out)
```

```python
import sys, math, struct
sys.path.insert(0, 'work')
from asmlib import Sched, Rec, vr, ar, sr

KNAME = 'interleave_layers__sliding_local_dilated__dense_activation_squared_relu__prompt'

OPT = dict(stamps=False, fake_xcc=0, force_slow=False, gsleep=2, quiet1=0, quiet3=30, quiet4=20,
           burst1=8, burst2=8, pace=4, tstamp=0, attn_loop=1, ldsc1=1, wnt=0, gen_pos=0, burst4=8, g1=4, g3=2, tail1=8, tail2=4, tail4=4, aevery=20, lsu=4, cpf=1, kfirst=6, st3=0, csi=1, fastattn=1, dstamp=-1, lead=3, map2=0)

WS_SIZE = 268435456
WQKV_T = 0
WO_T = WQKV_T + 16 * 163840
W1_T = WO_T + 8 * 20 * 5 * 1024
W2_T = W1_T + 54 * 20 * 2 * 1024
XSZ = 16 * 8 * 20 * 1024
X0 = W2_T + 8 * 54 * 5 * 1024
XB = [X0 + i * XSZ for i in range(4)]
OB = [X0 + (4 + i) * XSZ for i in range(2)]
HSZ = 16 * 8 * 54 * 1024
HB = [X0 + 6 * XSZ + i * HSZ for i in range(2)]
STSZ = 16 * 8 * 1024
ST0 = HB[1] + HSZ
STB = [ST0 + i * STSZ for i in range(4)]
FL = ST0 + 4 * STSZ
HF = FL + 4096
PFQ = HF + 2048
PFX = PFQ + 16 * 256
PFG = PFX + 16 * 512
RXF = PFG + 1024 * 8
WS_END = RXF + 16 * 128
STAMP_BASE = 64 << 20
OOB = 0x40000000
ONES = 0x3F803F80

SLOT = 20480
NSLOT = 6
L_SCR = NSLOT * SLOT
TP = 16 * 272
L_STAT = L_SCR + 144 * 272
L_ROLE = L_STAT + 1536
LDS_SIZE = 163840

S_TEAM, S_J, S_W, S_FAST, S_PASS = 20, 21, 22, 23, 24
S_CG, S_MT = 25, 26
S_XT = 29
S_STT = 31
S_RM = 32
S_COL = 34
S_PF, S_DMA, S_QV, S_QA = 58, 57, 56, 55
S_KS0 = 59
S_FLAG, S_TFL = 60, 61
S_WQ, S_WO, S_W1, S_W2 = 62, 63, 88, 89
S_W2X, S_XOFF, S_BLK = 90, 91, 92
S_HSRC, S_HSTS = 93, 94
S_PH = 95
S_XCC, S_PFGA = 27, 28
S_N0, S_N1 = 100, 101

CS1, CS3, B1R, B2R, XRES = 2, 10, 18, 26, 36
BIASC, BIASP, BIASP0, MASKP, MASKC = 46, 50, 54, 58, 60
VL4 = 62
VZ = 63
VL8 = 161


def slot_reg(i):
    return ar(4 * i, 4) if i < 64 else vr(164 + 4 * (i - 64), 4)


_G = {}
_p = 0
for _n, _c in (('y', 25), ('z', 17), ('x', 1), ('u', 22), ('v', 22)):
    _G[_n] = list(range(_p, _p + _c))
    _p += _c
WQ_SL = _G['z'] + _G['x'] + _G['u']
WO_SL = _G['y']
W1_SL = _G['v'] + _G['x'] + _G['z']
W2_SL = _G['u'] + _G['y'] + _G['x'] + _G['v']


def xorder(sig):
    cg, i = divmod(sig, 10)
    if i < 8:
        f = 80 * cg + 32 * (i >> 2) + 4 * (i & 3)
        return f, f + 16
    f = 80 * cg + 8 * i
    return f, f + 4


def oorder(sig):
    j, i = divmod(sig, 5)
    f = 40 * j + 4 * i
    return f, f + 20


def horder(sig):
    f = 32 * (sig >> 2) + 4 * (sig & 3)
    return f, f + 16


def f32bits(x):
    return struct.unpack('<I', struct.pack('<f', x))[0]


def LDM():
    return ' sc1' if OPT['ldsc1'] else ''


DST = {0: 0, 1: 1, 3: 2, 11: 3, 12: 4, 20: 5, 30: 6, 40: 7, 50: 7}


def stamp(a, idx):
    if OPT['dstamp'] >= 0 and idx in DST:
        a('s_memrealtime s[96:97]')
        a('s_lshl_b32 s98, s%d, 5' % S_PASS)
        a('s_add_u32 s98, s98, %d' % (4 * (DST[idx] if idx != 50 else 0)))
        a('s_lshl_b32 s99, s2, 2')
        a('s_add_u32 s99, s99, s%d' % S_W)
        a('s_cmp_eq_u32 s99, %d' % (4 * OPT['dstamp']))
        a('s_cselect_b32 s98, s98, 0x1000')
        a('s_waitcnt lgkmcnt(0)')
        a.lg = []
        a('v_mov_b32 v163, s96')
        a('s_mov_b64 exec, 1')
        a('buffer_store_dword v163, v%d, s[84:87], s98 offen' % VZ, tag='stamp')
        a('s_mov_b64 exec, -1')
        return
    if not OPT['stamps']:
        return
    if idx in (11, 12, 31, 32, 40, 41):
        stamp2(a, 52 + (11, 12, 31, 32, 40, 41).index(idx), 's_memtime')
    stamp2(a, idx, 's_memrealtime')


def stamp2(a, idx, ins):
    a('%s s[96:97]' % ins)
    a('s_lshl_b32 s99, s2, 2')
    a('s_add_u32 s99, s99, s%d' % S_W)
    a('s_lshl_b32 s99, s99, 9')
    a('s_lshl_b32 s98, s%d, 8' % S_PASS)
    a('s_add_u32 s99, s99, s98')
    a('s_add_u32 s99, s99, %d' % (STAMP_BASE + idx * 4))
    a('s_waitcnt lgkmcnt(0)')
    a.lg = []
    a('v_mov_b32 v163, s96')
    a('s_mov_b64 exec, 1')
    a('buffer_store_dword v163, v%d, s[4:7], s99 offen' % VZ, tag='stamp')
    a('s_mov_b64 exec, -1')


def make_srd(a, dst, src, nbytes):
    a('s_mov_b32 s%d, s%d' % (dst, src))
    a('s_and_b32 s%d, s%d, 0xffff' % (dst + 1, src + 1))
    a('s_mov_b32 s%d, %d' % (dst + 2, nbytes))
    a('s_mov_b32 s%d, 0x20000' % (dst + 3))


def tile_scalars(a):
    a('s_and_b32 s%d, s%d, 7' % (S_CG, S_J))
    a('s_lshr_b32 s%d, s%d, 3' % (S_MT, S_J))
    a('s_lshl_b32 s%d, s%d, 2' % (S_MT, S_MT))
    a('s_add_u32 s%d, s%d, s%d' % (S_MT, S_MT, S_W))
    a('s_lshl_b32 s%d, s%d, 3' % (S_STT, S_TEAM))
    a('s_add_u32 s%d, s%d, s%d' % (S_STT, S_STT, S_MT))
    a('s_mul_i32 s%d, s%d, 20480' % (S_XT, S_STT))
    a('s_mul_i32 s3, s%d, 2560' % S_CG)
    a('s_add_u32 s%d, s%d, s3' % (S_XT, S_XT))
    a('s_lshl_b32 s%d, s%d, 10' % (S_STT, S_STT))
    a('s_lshl_b32 s3, s%d, 7' % S_CG)
    a('s_add_u32 s%d, s%d, s3' % (S_STT, S_STT))
    a('s_mul_i32 s%d, s%d, 160' % (S_COL, S_CG))
    a('s_and_b32 s3, s%d, 7' % S_TEAM)
    a('s_lshl_b32 s3, s3, 7')
    a('s_lshl_b32 s%d, s%d, 4' % (S_RM, S_MT))
    a('s_add_u32 s3, s3, s%d' % S_RM)
    a('s_lshl_b32 s3, s3, 1')
    a('s_lshr_b32 s%d, s%d, 3' % (S_RM, S_TEAM))
    a('s_add_u32 s3, s3, s%d' % S_RM)
    a('s_mul_i32 s3, s3, 1280')
    a('s_add_u32 s%d, s3, s%d' % (S_RM, S_COL))


def rowmajor_voff(a, dst, tmp):
    a('v_and_b32 v%d, 15, v0' % dst)
    a('v_mul_u32_u24 v%d, 2560, v%d' % (dst, dst))
    a('v_lshrrev_b32 v%d, 4, v0' % tmp)
    a('v_lshl_add_u32 v%d, v%d, 3, v%d' % (dst, tmp, dst))


def tile5_voff(a, dst, tmp):
    a('v_and_b32 v%d, 15, v0' % dst)
    a('v_lshlrev_b32 v%d, 4, v%d' % (dst, dst))
    a('v_lshrrev_b32 v%d, 5, v0' % tmp)
    a('v_lshl_add_u32 v%d, v%d, 8, v%d' % (dst, tmp, dst))
    a('v_bfe_u32 v%d, v0, 4, 1' % tmp)
    a('v_lshl_add_u32 v%d, v%d, 3, v%d' % (dst, tmp, dst))


def stat_voff(a, dst, tmp):
    a('v_lshlrev_b32 v%d, 3, v0' % dst)
    a('v_mov_b32 v%d, 0x%x' % (tmp, OOB))
    a('v_cmp_gt_u32 vcc, 16, v0')
    a('v_cndmask_b32 v%d, v%d, v%d, vcc' % (dst, tmp, dst))


def two_ways(a, fn):
    LS = a.newlabel('slow')
    LJ = a.newlabel('join')
    a('s_cmp_eq_u32 s%d, 0' % S_FAST)
    a('s_cbranch_scc1 %s' % LS)
    vm0 = list(a.vm)
    fn('')
    a('s_branch %s' % LJ)
    a.label(LS)
    a.vm = vm0
    fn(' sc1')
    a.label(LJ)


def tile_stats(a, P, T):
    a('s_mov_b32 s39, 0x%x' % ONES)
    for i in range(10):
        a('v_dot2_f32_bf16 v%d, v%d, s39, %s' % (T, P + i, '0' if i == 0 else 'v%d' % T))
        a('v_dot2_f32_bf16 v%d, v%d, v%d, %s' % (T + 1, P + i, P + i, '0' if i == 0 else 'v%d' % (T + 1)))
    a('v_mov_b32 v%d, v%d' % (T + 2, T))
    a('v_mov_b32 v%d, v%d' % (T + 3, T + 1))
    a('v_permlane16_swap_b32 v%d, v%d' % (T, T + 2))
    a('v_permlane16_swap_b32 v%d, v%d' % (T + 1, T + 3))
    a('v_pk_add_f32 %s, %s, %s' % (vr(T, 2), vr(T, 2), vr(T + 2, 2)))
    a('v_mov_b32 v%d, v%d' % (T + 2, T))
    a('v_mov_b32 v%d, v%d' % (T + 3, T + 1))
    a('v_permlane32_swap_b32 v%d, v%d' % (T, T + 2))
    a('v_permlane32_swap_b32 v%d, v%d' % (T + 1, T + 3))
    a('v_pk_add_f32 %s, %s, %s' % (vr(T, 2), vr(T, 2), vr(T + 2, 2)))


def store_tile(a, P, sa, V5, tag='pub'):
    a('buffer_store_dwordx4 %s, v1, s[4:7], s%d offen sc1' % (vr(P, 4), sa), tag=tag)
    a('buffer_store_dwordx4 %s, v1, s[4:7], s%d offen offset:1024 sc1' % (vr(P + 4, 4), sa), tag=tag)
    a('buffer_store_dwordx2 %s, v%d, s[4:7], s%d offen offset:2048 sc1' % (vr(P + 8, 2), V5, sa), tag=tag)


def qkv_sg(ch, hf):
    Q, K, V = 0, 1, 2
    if ch < 4:
        h, lo = ch >> 1, (ch & 1) * 2
        return Q * 10 + h * 5 + lo + hf
    if ch == 4:
        return (Q * 10 + 4) if hf == 0 else 30
    if ch == 15:
        return (Q * 10 + 5 + 4) if hf == 0 else 30
    h = (ch - 5) // 5
    c = (ch - 5) % 5
    if c < 2:
        return K * 10 + h * 5 + c * 2 + hf
    if c < 4:
        return V * 10 + h * 5 + (c - 2) * 2 + hf
    return (K if hf == 0 else V) * 10 + h * 5 + 4


def poll(a, sbase, sval, lanes=None, sleep=0, off=0):
    if lanes:
        a('s_mov_b64 exec, 0x%x' % lanes)
    a('s_mov_b32 s3, 0')
    LP = a.newlabel('poll')
    LD = a.newlabel('polld')
    a.label(LP)
    if sleep:
        a('s_sleep %d' % sleep)
    a('buffer_load_dword v162, v%d, s[4:7], s%d offen offset:%d sc1' % (VL4, sbase, off))
    a('s_add_u32 s3, s3, 1')
    a('s_waitcnt vmcnt(0)')
    a('v_cmp_gt_u32 vcc, %s, v162' % sval)
    a('s_cmp_gt_u32 s3, 200000')
    a('s_cbranch_scc1 %s' % LD)
    a('s_cbranch_vccnz %s' % LP)
    a.label(LD)
    if lanes:
        a('s_mov_b64 exec, -1')
    a.vm = []


def poll64(a, items, sleep=0, rbase=64):
    a('s_mov_b32 s3, 0')
    LP = a.newlabel('poll')
    LD = a.newlabel('polld')
    a.label(LP)
    if sleep:
        a('s_sleep %d' % sleep)
    regs = []
    r = rbase
    for (sb, off, w, lanes) in items:
        a('buffer_load_dwordx%d %s, v%d, s[4:7], s%d offen offset:%d sc1' % (w, vr(r, w), 1 if w == 4 else VL8, sb, off))
        regs.append(r)
        r += w
    a('s_add_u32 s3, s3, 1')
    a('s_mov_b64 s[50:51], 0')
    a('s_waitcnt vmcnt(0)')
    for (sb, off, w, lanes), r in zip(items, regs):
        for q in range(0, w, 2):
            a('v_cmp_ne_u64 vcc, s[%d:%d], %s' % (S_N0, S_N1, vr(r + q, 2)))
            if lanes is not None:
                a('s_and_b64 vcc, vcc, %s' % lanes)
            a('s_or_b64 s[50:51], s[50:51], vcc')
    a('s_cmp_gt_u32 s3, 100000')
    a('s_cbranch_scc1 %s' % LD)
    a('s_cmp_lg_u64 s[50:51], 0')
    a('s_cbranch_scc1 %s' % LP)
    a.label(LD)
    a.vm = []


def flag64(a, saddr, lo=None, R=94):
    a('v_mov_b32 v%d, s%d' % (R, S_N0 if lo is None else lo))
    a('v_mov_b32 v%d, s%d' % (R + 1, S_N1))
    a('s_mov_b64 exec, 1')
    a('buffer_store_dwordx2 %s, v%d, s[4:7], s%d offen sc1' % (vr(R, 2), VZ, saddr))
    a('s_mov_b64 exec, -1')


def get_nonce(a):
    a('s_mov_b32 s3, 0')
    LP = a.newlabel('nonce')
    LD = a.newlabel('nonced')
    a.label(LP)
    a('buffer_load_dwordx2 v[94:95], v%d, s[84:87], 0 offen offset:128 sc1' % VZ)
    a('s_add_u32 s3, s3, 1')
    a('s_waitcnt vmcnt(0)')
    a('v_readfirstlane_b32 s%d, v94' % S_N0)
    a('v_readfirstlane_b32 s%d, v95' % S_N1)
    a('s_cmp_gt_u32 s3, 100000')
    a('s_cbranch_scc1 %s' % LD)
    a('s_cmp_eq_u32 s%d, 0' % S_N1)
    a('s_cbranch_scc1 %s' % LP)
    a.label(LD)
    a.vm = []


def publish(a):
    a('s_add_u32 s%d, s%d, 1' % (S_PH, S_PH))
    a('v_mov_b32 v162, s%d' % S_PH)
    a('s_mov_b64 exec, 1')

    def f(mod):
        a.wait_vm('pub')
        a('buffer_store_dword v162, v%d, s[4:7], s%d offen%s' % (VZ, S_FLAG, mod), tag='fl')
    two_ways(a, f)
    a('s_mov_b64 exec, -1')


def gen_prologue(a, END):
    a('s_cmp_ge_u32 s2, 256')
    a('s_cbranch_scc1 %s' % END)
    a('s_load_dwordx16 s[64:79], s[0:1], 0')
    a('s_load_dwordx4 s[80:83], s[0:1], 64')
    a('s_load_dwordx2 s[4:5], s[0:1], 80')
    a('v_lshrrev_b32 v1, 6, v0')
    a('v_and_b32 v0, 63, v0')
    a('v_readfirstlane_b32 s%d, v1' % S_W)
    a('v_lshlrev_b32 v1, 4, v0')
    a('v_lshlrev_b32 v%d, 2, v0' % VL4)
    a('v_mov_b32 v%d, 0' % VZ)
    a('s_mov_b32 s%d, 0' % S_PASS)
    a('s_and_b32 s3, s2, 7')
    a('s_lshr_b32 s%d, s2, 3' % S_J)
    a('s_lshr_b32 s%d, s%d, 4' % (S_TEAM, S_J))
    a('s_lshl_b32 s3, s3, 1')
    a('s_add_u32 s%d, s%d, s3' % (S_TEAM, S_TEAM))
    a('s_and_b32 s%d, s%d, 15' % (S_J, S_J))
    if OPT['map2']:
        a('s_bfe_u32 s%d, s2, 0x20001' % S_TEAM)
        a('s_lshl_b32 s%d, s%d, 2' % (S_TEAM, S_TEAM))
        a('s_lshr_b32 s3, s2, 6')
        a('s_add_u32 s%d, s%d, s3' % (S_TEAM, S_TEAM))
        a('s_bfe_u32 s%d, s2, 0x20003' % S_J)
        a('s_and_b32 s3, s2, 1')
        a('s_lshl_b32 s3, s3, 2')
        a('s_add_u32 s%d, s%d, s3' % (S_J, S_J))
        a('s_bfe_u32 s3, s2, 0x10005')
        a('s_lshl_b32 s3, s3, 3')
        a('s_add_u32 s%d, s%d, s3' % (S_J, S_J))
    a('s_mov_b32 s%d, 0' % S_FAST)
    tile_scalars(a)
    rowmajor_voff(a, 64, 65)
    a('s_getreg_b32 s%d, hwreg(HW_REG_XCC_ID)' % S_XCC)
    a('s_and_b32 s%d, s%d, 15' % (S_XCC, S_XCC))
    a('s_waitcnt lgkmcnt(0)')
    make_srd(a, 12, 64, 2048 * 1280)
    a('s_and_b32 s5, s5, 0xffff')
    a('s_mov_b32 s6, %d' % WS_SIZE)
    a('s_mov_b32 s7, 0x20000')
    make_srd(a, 84, 82, 256)
    LN = a.newlabel('no_nonce')
    a('s_lshl_b32 s3, s2, 2')
    a('s_add_u32 s3, s3, s%d' % S_W)
    a('s_cmp_lg_u32 s3, 0')
    a('s_cbranch_scc1 %s' % LN)
    a('s_memrealtime s[40:41]')
    a('s_waitcnt lgkmcnt(0)')
    a('s_lshl_b32 s41, s41, 1')
    a('s_or_b32 s41, s41, 1')
    a('v_mov_b32 v94, s40')
    a('v_mov_b32 v95, s41')
    a('s_mov_b64 exec, 1')
    a('buffer_store_dwordx2 v[94:95], v%d, s[84:87], 0 offen offset:128 sc1' % VZ)
    a('s_mov_b64 exec, -1')
    a.label(LN)
    a.vm = []


def s_xorder(a, sig, first, d2, t):
    a('s_mul_i32 s%d, s%d, 205' % (t, sig))
    a('s_lshr_b32 s%d, s%d, 11' % (t, t))
    a('s_mul_i32 s%d, s%d, 10' % (first, t))
    a('s_sub_u32 s%d, s%d, s%d' % (d2, sig, first))
    a('s_mul_i32 s%d, s%d, 80' % (t, t))
    a('s_lshr_b32 s%d, s%d, 2' % (first, d2))
    a('s_lshl_b32 s%d, s%d, 4' % (first, first))
    a('s_lshl_b32 s3, s%d, 2' % d2)
    a('s_add_u32 s%d, s%d, s3' % (first, first))
    a('s_lshl_b32 s3, s%d, 3' % d2)
    a('s_cmp_lt_u32 s%d, 8' % d2)
    a('s_cselect_b32 s%d, s%d, s3' % (first, first))
    a('s_cselect_b32 s%d, 16, 4' % d2)
    a('s_add_u32 s%d, s%d, s%d' % (first, first, t))


def v_order(a, kind, sig, first, d2, t):
    if kind == 'x':
        a('v_mul_u32_u24 v%d, 205, v%d' % (t, sig))
        a('v_lshrrev_b32 v%d, 11, v%d' % (t, t))
        a('v_mul_u32_u24 v%d, 10, v%d' % (first, t))
        a('v_sub_u32 v%d, v%d, v%d' % (d2, sig, first))
        a('v_mul_u32_u24 v%d, 80, v%d' % (t, t))
        a('v_lshrrev_b32 v%d, 2, v%d' % (first, d2))
        a('v_lshlrev_b32 v%d, 4, v%d' % (first, first))
        a('v_lshl_add_u32 v%d, v%d, 2, v%d' % (first, d2, first))
        a('v_lshlrev_b32 v%d, 3, v%d' % (t + 1, d2))
        a('v_cmp_gt_u32 vcc, 8, v%d' % d2)
        a('v_cndmask_b32 v%d, v%d, v%d, vcc' % (first, t + 1, first))
        a('v_cndmask_b32 v%d, 4, 16, vcc' % d2)
        a('v_add_u32 v%d, v%d, v%d' % (first, first, t))
    elif kind == 'o':
        a('v_mul_u32_u24 v%d, 205, v%d' % (t, sig))
        a('v_lshrrev_b32 v%d, 10, v%d' % (t, t))
        a('v_mul_u32_u24 v%d, 20, v%d' % (t, t))
        a('v_lshl_add_u32 v%d, v%d, 2, v%d' % (first, sig, t))
        a('v_mov_b32 v%d, 20' % d2)
    else:
        a('v_lshrrev_b32 v%d, 2, v%d' % (t, sig))
        a('v_lshlrev_b32 v%d, 4, v%d' % (t, t))
        a('v_lshl_add_u32 v%d, v%d, 2, v%d' % (first, sig, t))
        a('v_mov_b32 v%d, 16' % d2)


G_STG = 0


def gen_prep(a):
    R0 = 96
    for s in range(5):
        a('buffer_load_dwordx2 %s, v64, s[12:15], s%d offen offset:%d' % (vr(XRES + 2 * s, 2), S_RM, 32 * s), tag='x')
    a('buffer_load_dwordx2 v[94:95], v%d, s[84:87], 0 offen offset:128 sc1' % VZ, tag='x')
    if OPT['cpf']:
        a('s_getpc_b64 s[8:9]')
        a.raw('code_ref:')
        a('s_mov_b32 s10, code_end-code_ref')
        a('s_mov_b32 s11, 0x20000')
        a('s_and_b32 s9, s9, 0xffff')
        a('v_lshlrev_b32 v96, 7, v0')
        a('s_lshl_b32 s3, s%d, 13' % S_W)
        if OPT['cpf'] == 1:
            a('s_bfe_u32 s40, s2, 0x20003')
            a('v_bfe_u32 v97, v0, 4, 2')
            a('v_mov_b32 v98, 0x%x' % OOB)
            a('v_cmp_eq_u32 vcc, s40, v97')
            a('v_cndmask_b32 v96, v98, v96, vcc')
        a('buffer_load_dword v97, v96, s[8:11], s3 offen', tag='x')
    stamp(a, 0)
    a('s_lshl_b32 s48, s%d, 8' % S_W)
    a('s_add_u32 s48, s48, s2')
    a('s_lshl_b32 s49, s%d, 13' % S_W)
    a('v_lshrrev_b32 v88, 2, v0')
    a('v_and_b32 v89, 3, v0')
    a('s_cmp_lt_u32 s48, 320')
    a('s_cselect_b32 s55, 0, %d' % OOB)
    a('s_cselect_b32 s48, s48, 0')
    a('s_mul_i32 s50, s48, 3277')
    a('s_lshr_b32 s50, s50, 16')
    a('s_mul_i32 s51, s50, 20')
    a('s_sub_u32 s51, s48, s51')
    make_srd(a, 8, 66, 640 * 3840)
    LNQ = a.newlabel('no_wq')
    a('s_cmp_lg_u32 s55, 0')
    a('s_cbranch_scc1 %s' % LNQ)
    vm0 = list(a.vm)
    a('v_and_b32 v70, 15, v0')
    a('v_lshrrev_b32 v71, 4, v0')
    a('v_mul_u32_u24 v71, 3840, v71')
    a('v_lshl_add_u32 v71, v70, 4, v71')
    a('v_mov_b32 v72, 1200')
    a('v_cmp_le_u32 vcc, 5, v70')
    a('v_cndmask_b32 v73, 0, v72, vcc')
    a('v_add_u32 v71, v71, v73')
    a('v_cmp_le_u32 vcc, 10, v70')
    a('v_cndmask_b32 v73, 0, v72, vcc')
    a('v_add_u32 v71, v71, v73')
    a('v_mov_b32 v72, 0x%x' % OOB)
    a('v_cmp_eq_u32 vcc, 15, v70')
    a('v_cndmask_b32 v71, v71, v72, vcc')
    a('s_mul_i32 s52, s50, 80')
    for g in range(4):
        a('s_lshl_b32 s40, s51, 2')
        a('s_add_u32 s40, s40, %d' % g)
        s_xorder(a, 40, 41, 42, 43)
        for half in range(2):
            if half:
                a('s_add_u32 s41, s41, s42')
            a('s_mul_i32 s53, s41, 3840')
            a('s_add_u32 m0, s49, %d' % (1024 * (half * 4 + g)))
            a('s_add_u32 s53, s53, s52')
            a('buffer_load_dwordx4 v71, s[8:11], s53 offen lds')
    a('v_lshlrev_b32 v74, 8, v88')
    a('v_add_u32 v74, s49, v74')
    a('v_lshlrev_b32 v75, 3, v89')
    for T in range(8):
        b, hf = T >> 1, T & 1
        const = sum(qkv_sg(4 * b + c, hf) << (8 * c) for c in range(4))
        a('s_mov_b32 s3, 0x%x' % const)
        a('v_bfe_u32 v%d, s3, v75, 8' % (76 + T))
        a('v_lshl_add_u32 v%d, v%d, 3, v74' % (76 + T, 76 + T))
    a('s_waitcnt vmcnt(8)')
    LX = a.newlabel('xgo')
    a('s_branch %s' % LX)
    a.label(LNQ)
    a('s_waitcnt vmcnt(0)')
    a.label(LX)
    a.vm = []
    make_srd(a, 16, 4, WS_SIZE)
    tile5_voff(a, 68, 69)
    stat_voff(a, 69, 64)
    a('s_add_u32 s36, s%d, %d' % (S_XT, XB[0]))
    a('s_add_u32 s37, s%d, %d' % (S_STT, STB[0]))
    store_tile(a, XRES, 36, 68, tag='xs')
    tile_stats(a, XRES, 64)
    a('buffer_store_dwordx2 v[64:65], v69, s[4:7], s37 offen sc1', tag='xs')
    a('v_readfirstlane_b32 s%d, v94' % S_N0)
    a('v_readfirstlane_b32 s%d, v95' % S_N1)
    LH = a.newlabel('have_nonce')
    a('s_cmp_lg_u32 s%d, 0' % S_N1)
    a('s_cbranch_scc1 %s' % LH)
    get_nonce(a)
    a.label(LH)
    a('s_lshl_b32 s38, s%d, 4' % S_TEAM)
    a('s_add_u32 s38, s38, s%d' % S_J)
    a('s_lshl_b32 s44, s38, 3')
    a('s_add_u32 s44, s44, %d' % RXF)
    a('s_lshl_b32 s45, s38, 4')
    a('s_add_u32 s45, s45, %d' % FL)
    a('s_lshl_b32 s46, s38, 3')
    a('s_add_u32 s46, s46, %d' % HF)
    a('s_cmp_eq_u32 s%d, 2' % S_W)
    a('s_cselect_b32 s44, s44, %d' % OOB)
    a('s_cselect_b32 s45, s45, %d' % OOB)
    a('s_cselect_b32 s46, s46, %d' % OOB)
    a('s_lshl_b32 s38, s38, 2')
    a('s_add_u32 s38, s38, s%d' % S_W)
    a('s_lshl_b32 s38, s38, 3')
    a('s_lshl_b32 s3, s2, 2')
    a('s_add_u32 s3, s3, s%d' % S_W)
    a('s_lshl_b32 s3, s3, 3')
    a('s_add_u32 s%d, s3, %d' % (S_PFGA, PFG))
    a('s_add_u32 s38, s38, %d' % PFX)
    LNQ2 = a.newlabel('no_wq2')
    a('s_cmp_lg_u32 s55, 0')
    a('s_cbranch_scc1 %s' % LNQ2)
    a('s_mul_i32 s54, s50, 163840')
    a('s_lshl_b32 s3, s51, 11')
    a('s_add_u32 s54, s54, s3')
    a('s_add_u32 s54, s54, %d' % WQKV_T)
    a('s_waitcnt vmcnt(4)')
    stamp(a, 5)
    for T in range(8):
        a('ds_read_b64_tr_b16 %s, v%d' % (vr(R0 + 4 * T, 2), 76 + T))
        a('ds_read_b64_tr_b16 %s, v%d offset:4096' % (vr(R0 + 2 + 4 * T, 2), 76 + T))
    a('s_mul_i32 s3, s50, 12')
    a('s_add_u32 s3, s3, s48')
    a('s_lshl_b32 s3, s3, 3')
    a('s_add_u32 s39, s3, %d' % PFQ)
    a.wait_lg_all()
    for T in range(8):
        a('s_add_u32 s53, s54, %d' % ((T >> 1) * 40960 + (T & 1) * 1024))
        a('buffer_store_dwordx4 %s, v1, s[4:7], s53 offen sc1' % vr(R0 + 4 * T, 4))
    a('s_waitcnt vmcnt(0)')
    flag64(a, 39)
    a.label(LNQ2)
    a('s_waitcnt vmcnt(1)')
    a.vm = []
    LNQ3 = a.newlabel('no_wq3')
    a('s_cmp_eq_u32 s55, 0')
    a('s_cbranch_scc1 %s' % LNQ3)
    a('s_waitcnt vmcnt(0)')
    a.label(LNQ3)
    a('s_add_u32 s47, s%d, s%d' % (S_N0, S_XCC))
    a('s_add_u32 s47, s47, 1')
    flag64(a, 38, lo=47)
    stamp(a, 1)
    a('s_mov_b64 exec, 0xf')
    a('buffer_store_dword v%d, v%d, s[4:7], s45 offen sc1' % (VZ, VL4))
    a('s_mov_b64 exec, 0x3')
    a('buffer_store_dword v%d, v%d, s[4:7], s46 offen sc1' % (VZ, VL4))
    a('s_mov_b64 exec, -1')


KG = ((45, 46), (47, 35))


def generic_addr(a):
    a('s_mul_i32 s48, s2, 5')
    a('v_bfe_u32 v70, v0, 3, 2')
    a('v_and_b32 v71, 7, v0')
    a('v_lshlrev_b32 v71, 4, v71')
    a('v_lshrrev_b32 v72, 5, v0')
    L1 = a.newlabel('pg_w1')
    L2 = a.newlabel('pg_w2')
    LD = a.newlabel('pg_go')
    a('s_cmp_ge_u32 s48, 740')
    a('s_cbranch_scc1 %s' % L2)
    a('s_cmp_ge_u32 s48, 200')
    a('s_cbranch_scc1 %s' % L1)
    for (lab, sub, src, nb, gpr, magic, pitch, dest, KS, kind) in (
            (None, 0, 68, 640 * 1280, 10, 6554, 1280, WO_T, 20, 'o'),
            (L1, 200, 72, 640 * 3456, 27, 2428, 3456, W1_T, 0, 'x'),
            (L2, 740, 76, 1728 * 1280, 10, 6554, 1280, W2_T, 54, 'h')):
        if lab:
            a.label(lab)
        if sub:
            a('s_sub_u32 s48, s48, %d' % sub)
        make_srd(a, 8, src, nb)
        a('s_mov_b32 s42, %d' % pitch)
        a('s_mov_b32 s43, %d' % dest)
        a('s_mov_b32 s44, %d' % KS)
        for uu in range(2):
            ks, G = KG[uu]
            a('s_add_u32 s3, s48, %s' % ('s%d' % S_W if uu == 0 else '4'))
            a('s_mul_i32 s%d, s3, %d' % (ks, magic))
            a('s_lshr_b32 s%d, s%d, 16' % (ks, ks))
            a('s_mul_i32 s50, s%d, %d' % (ks, gpr))
            a('s_sub_u32 s%d, s3, s50' % G)
            for gh in range(2):
                a('s_lshl_b32 s3, s%d, 2' % ks)
                a('s_add_u32 s3, s3, %d' % (2 * gh))
                a('v_add_u32 v73, s3, v72')
                idx = uu * 2 + gh
                v_order(a, kind, 73, 76 + 2 * idx, 77 + 2 * idx, 84)
        if lab != L2:
            a('s_branch %s' % LD)
    a.label(LD)
    a('s_cmp_eq_u32 s%d, 3' % S_W)
    a('s_cselect_b32 s55, 0, %d' % OOB)
    for uu in range(2):
        for i in range(4):
            idx = uu * 2 + (i & 1)
            d = 128 + uu * 4 + i
            a('v_add_u32 v%d, v%d, v70' % (d, 76 + 2 * idx))
            if i >> 1:
                a('v_add_u32 v%d, v%d, v%d' % (d, d, 77 + 2 * idx))
            a('v_mul_lo_u32 v%d, v%d, s42' % (d, d))
            a('v_add_u32 v%d, v%d, v71' % (d, d))
    a('s_lshl_b32 s49, s%d, 13' % S_W)
    a('s_add_u32 s49, s49, %d' % L_SCR)
    a('v_lshlrev_b32 v74, 7, v88')
    a('v_lshl_add_u32 v74, v89, 3, v74')
    a('v_add_u32 v74, s49, v74')


def generic_issue(a):
    for uu in range(2):
        ks, G = KG[uu]
        a('s_lshl_b32 s50, s%d, 7' % G)
        if uu:
            a('s_add_u32 s50, s50, s55')
        for i in range(4):
            a('s_add_u32 m0, s49, %d' % (4096 * uu + 1024 * i))
            a('buffer_load_dwordx4 v%d, s[8:11], s50 offen lds' % (128 + uu * 4 + i), tag='u')


def generic_finish(a):
    R0 = 96
    a.wait_vm('u')
    for uu in range(2):
        for q in range(4):
            r = R0 + 16 * uu + 4 * q
            a('ds_read_b64_tr_b16 %s, v74 offset:%d' % (vr(r, 2), 4096 * uu + 32 * q))
            a('ds_read_b64_tr_b16 %s, v74 offset:%d' % (vr(r + 2, 2), 4096 * uu + 32 * q + 2048))
    first = True
    for uu in range(2):
        ks, G = KG[uu]
        for q in range(4):
            r = R0 + 16 * uu + 4 * q
            a('s_lshl_b32 s50, s%d, 2' % G)
            a('s_add_u32 s50, s50, %d' % q)
            a('s_lshr_b32 s51, s50, 1')
            a('s_mul_i32 s51, s51, 20')
            a('s_add_u32 s51, s51, s%d' % ks)
            a('s_lshl_b32 s51, s51, 1')
            a('s_add_u32 s51, s51, %d' % (q & 1))
            a('s_mul_i32 s52, s50, 205')
            a('s_lshr_b32 s52, s52, 10')
            a('s_mul_i32 s53, s52, 5')
            a('s_sub_u32 s53, s50, s53')
            a('s_mul_i32 s52, s52, s44')
            a('s_add_u32 s52, s52, s%d' % ks)
            a('s_mul_i32 s52, s52, 5')
            a('s_add_u32 s52, s52, s53')
            a('s_cmp_eq_u32 s44, 0')
            a('s_cselect_b32 s51, s51, s52')
            a('s_lshl_b32 s51, s51, 10')
            a('s_add_u32 s51, s51, s43')
            if uu:
                a('s_add_u32 s51, s51, s55')
            if first:
                a.wait_lg_all()
                first = False
            a('buffer_store_dwordx4 %s, v1, s[4:7], s51 offen sc1' % vr(r, 4), tag='gs')


def deps_loads(a):
    a('buffer_load_dwordx2 v[64:65], v%d, s[4:7], s36 offen sc1' % VL8, tag='dp')
    a('buffer_load_dwordx2 v[66:67], v%d, s[4:7], s37 offen sc1' % VL8, tag='dp')
    a('buffer_load_dwordx2 v[68:69], v%d, s[4:7], s38 offen sc1' % VL8, tag='dp')


def gen_roles(a):
    late_consts(a)
    generic_addr(a)
    a('s_lshl_b32 s3, s%d, 2' % S_J)
    a('s_add_u32 s3, s3, s%d' % S_W)
    a('s_mul_i32 s%d, s3, 40960' % S_WQ)
    a('s_add_u32 s%d, s%d, %d' % (S_WQ, S_WQ, WQKV_T))
    a('v_lshlrev_b32 v%d, 3, v0' % VL8)
    a('s_lshl_b32 s36, s%d, 8' % S_J)
    a('s_add_u32 s36, s36, %d' % PFQ)
    a('s_lshl_b32 s37, s%d, 9' % S_TEAM)
    a('s_add_u32 s37, s37, %d' % PFX)
    a('s_and_b32 s3, s%d, 7' % S_TEAM)
    a('s_cmp_eq_u32 s3, 0')
    a('s_cselect_b32 s38, 0, 512')
    a('s_sub_u32 s38, s37, s38')
    stamp(a, 7)
    a('s_barrier')
    generic_issue(a)
    a.wait_vm('u')
    deps_loads(a)
    generic_finish(a)
    stamp(a, 2)


def first_deps(a):
    a('s_waitcnt vmcnt(8)')
    a('s_mov_b32 s52, 0')
    a('s_mov_b32 s53, 0x88888888')
    a('s_add_u32 s39, s%d, 1' % S_N0)
    a('s_mov_b32 s3, 0')
    LP = a.newlabel('dp')
    LD = a.newlabel('dpd')
    a.label(LP)
    a('v_cmp_ne_u64 vcc, s[%d:%d], v[64:65]' % (S_N0, S_N1))
    a('v_subrev_u32 v66, s39, v66')
    a('v_subrev_u32 v68, s39, v68')
    a('s_and_b64 s[50:51], vcc, 0xfffff')
    a('v_cmp_ne_u32 vcc, s%d, v67' % S_N1)
    a('s_or_b64 s[50:51], s[50:51], vcc')
    a('v_cmp_lt_u32 vcc, 15, v66')
    a('s_or_b64 s[50:51], s[50:51], vcc')
    a('v_cmp_ne_u32 vcc, s%d, v69' % S_N1)
    a('s_and_b64 vcc, vcc, s[52:53]')
    a('s_or_b64 s[50:51], s[50:51], vcc')
    a('v_cmp_lt_u32 vcc, 15, v68')
    a('s_and_b64 vcc, vcc, s[52:53]')
    a('s_or_b64 s[50:51], s[50:51], vcc')
    a('s_cmp_eq_u64 s[50:51], 0')
    a('s_cbranch_scc1 %s' % LD)
    a('s_add_u32 s3, s3, 1')
    a('s_cmp_gt_u32 s3, 100000')
    a('s_cbranch_scc1 %s' % LD)
    a('s_sleep %d' % OPT['gsleep'])
    deps_loads(a)
    a('s_waitcnt vmcnt(0)')
    a('s_branch %s' % LP)
    a.label(LD)
    a('v_cmp_ne_u32 vcc, s%d, v66' % S_XCC)
    a('s_cmp_eq_u64 vcc, 0')
    a('s_cselect_b32 s%d, %d, 0' % (S_FAST, 0 if OPT['force_slow'] else 1))
    stamp(a, 3)
    now(a, wloads(S_WQ, WQ_SL, range(10), tagp='wq'))
    a('s_waitcnt vmcnt(10)')
    flag64(a, S_PFGA, R=64)


def first_unit1(a):
    a('v_mul_u32_u24 v144, 272, v0')
    a('s_mul_i32 s3, s%d, %d' % (S_W, 32 * 272))
    a('s_add_u32 s3, s3, %d' % (L_SCR + 16 * 272 + 256))
    a('v_add_u32 v144, s3, v144')
    for q in range(4):
        a('v_mov_b32 v%d, 0' % (140 + q))
    a('s_mov_b64 exec, 0xffffffff')
    a('ds_write_b128 v144, v[140:143]')
    a('s_mov_b64 exec, -1')


def late_addr(a, part):
    n = 1280 if part == 0 else 896
    a('s_mul_i32 s36, s%d, %d' % (S_W, n))
    a('s_add_u32 s36, s36, %d' % (PFG + (0 if part == 0 else 4608)))
    a('s_cmp_eq_u32 s%d, 0' % S_PASS)
    a('s_cselect_b32 s36, s36, %d' % OOB)


def late_loads(a, part, R, tag=None):
    a('buffer_load_dwordx4 %s, v1, s[4:7], s36 offen sc1' % vr(R, 4), tag=tag)
    if part == 0:
        a('buffer_load_dwordx4 %s, v1, s[4:7], s36 offen offset:256 sc1' % vr(R + 4, 4), tag=tag)


def late_issue(a, part, R):
    late_addr(a, part)
    late_loads(a, part, R, 'ls')


def late_sync(a, part, R):
    a('s_mov_b32 s3, 0')
    LP = a.newlabel('ls')
    LD = a.newlabel('lsd')
    a.label(LP)
    a('s_mov_b64 s[50:51], 0')
    for q in range(4 if part == 0 else 2):
        a('v_cmp_ne_u64 vcc, s[%d:%d], %s' % (S_N0, S_N1, vr(R + 2 * q, 2)))
        a('s_or_b64 s[50:51], s[50:51], vcc')
    if part == 1:
        a('s_and_b32 s51, s51, 0xffffff')
    a('s_cmp_eq_u64 s[50:51], 0')
    a('s_cbranch_scc1 %s' % LD)
    a('s_add_u32 s3, s3, 1')
    a('s_cmp_gt_u32 s3, 100000')
    a('s_cbranch_scc1 %s' % LD)
    a('s_sleep 4')
    late_loads(a, part, R)
    a('s_waitcnt vmcnt(0)')
    a('s_branch %s' % LP)
    a.label(LD)


def wloads(base_sgpr, slots, frags, srd='s[4:7]', tagp='w', special=None):
    gs = wloads0(base_sgpr, slots, frags, srd, tagp, special)
    bit = {'wq': 1, 'wo': 2, 'w1': 4, 'w2': 8}[tagp]
    if OPT['wnt'] & bit:
        for g in gs:
            g[-1] = ('i', g[-1][1] + ' nt', g[-1][2])
    return gs


def wloads0(base_sgpr, slots, frags, srd='s[4:7]', tagp='w', special=None):
    groups = []
    cur = None
    for f in frags:
        g = []
        if special and f in special:
            sreg, off = special[f]
            g.append(('i', 'buffer_load_dwordx4 %s, v1, %s, s%d offen offset:%d' % (slot_reg(slots[f]), srd, sreg, off), tagp))
            groups.append(g)
            continue
        blk = f // 4
        if blk != cur:
            g.append(('i', 's_add_u32 s%d, s%d, %d' % (S_PF, base_sgpr, blk * 4096), None))
            cur = blk
        g.append(('i', 'buffer_load_dwordx4 %s, v1, %s, s%d offen offset:%d' % (slot_reg(slots[f]), srd, S_PF, (f % 4) * 1024), tagp))
        groups.append(g)
    return groups


def w2loads(frags):
    sp = {65 + q: (S_W2X, q * 1024) for q in range(4)}
    groups = wloads(S_W2, W2_SL, [f for f in frags if f != 69], tagp='w2', special=sp)
    if 69 in frags:
        groups.append([('i', 's_add_u32 s%d, s%d, 4096' % (S_PF, S_W2X), None),
                       ('i', 'buffer_load_dwordx4 %s, v1, s[4:7], s%d offen' % (slot_reg(W2_SL[69]), S_PF), 'w2')])
    return groups


def now(a, gs):
    for g in gs:
        for it in g:
            a.emit_item(it)


def gen_setup(a):
    a('s_lshl_b32 s40, s%d, 2' % S_J)
    a('s_add_u32 s40, s40, s%d' % S_W)
    make_srd(a, 12, 80, 2048 * 1280)
    a('s_min_u32 s%d, s40, 53' % S_BLK)
    a('s_mul_i32 s%d, s%d, 40960' % (S_W1, S_BLK))
    a('s_add_u32 s%d, s%d, %d' % (S_W1, S_W1, W1_T))
    a('s_mul_i32 s41, s%d, 20' % S_CG)
    a('s_mul_i32 s3, s%d, 5' % S_W)
    a('s_add_u32 s41, s41, s3')
    a('s_mul_i32 s41, s41, 5120')
    a('s_add_u32 s%d, s41, %d' % (S_WO, WO_T))
    a('s_mul_i32 s%d, s%d, 14' % (S_KS0, S_W))
    a('s_cmp_eq_u32 s%d, 3' % S_W)
    a('s_cselect_b32 s3, 1, 0')
    a('s_sub_u32 s%d, s%d, s3' % (S_KS0, S_KS0))
    a('s_mul_i32 s41, s%d, 54' % S_CG)
    a('s_add_u32 s41, s41, s%d' % S_KS0)
    a('s_mul_i32 s41, s41, 5120')
    a('s_add_u32 s%d, s41, %d' % (S_W2, W2_T))
    a('s_add_u32 s41, s%d, %d' % (S_W2, 65 * 1024))
    a('s_cmp_ge_u32 s%d, 2' % S_W)
    a('s_cselect_b32 s%d, %d, s41' % (S_W2X, OOB))
    a('s_lshl_b32 s%d, s%d, 8' % (S_TFL, S_TEAM))
    a('s_add_u32 s%d, s%d, %d' % (S_TFL, S_TFL, FL))
    a('s_lshl_b32 s3, s40, 2')
    a('s_add_u32 s%d, s%d, s3' % (S_FLAG, S_TFL))
    a('s_mov_b32 s%d, 0' % S_PH)
    a('s_mov_b32 s%d, 0' % S_XOFF)
    a('s_and_b32 s3, s%d, 7' % S_TEAM)
    a('s_cmp_eq_u32 s3, 0')
    a('s_cselect_b32 s41, 0, 1')
    a('s_sub_u32 s41, s%d, s41' % S_TEAM)
    a('s_lshl_b32 s41, s41, 3')
    a('s_add_u32 s41, s41, 7')
    a('s_mul_i32 s%d, s41, 20480' % S_HSRC)
    a('s_add_u32 s%d, s%d, %d' % (S_HSRC, S_HSRC, XB[0]))
    a('s_lshl_b32 s%d, s41, 10' % S_HSTS)
    a('s_add_u32 s%d, s%d, %d' % (S_HSTS, S_HSTS, STB[0]))
    a('v_and_b32 v70, 15, v0')
    a('v_lshrrev_b32 v71, 4, v0')
    a('v_lshlrev_b32 v71, 2, v71')
    a('v_sub_u32 v71, v71, v70')
    a('v_mov_b32 v72, 0x%x' % f32bits(-1e30))
    a('v_mov_b32 v73, 0xffff')
    a('v_mov_b32 v74, 0xffff0000')
    a('s_and_b32 s3, s%d, 7' % S_TEAM)
    a('s_or_b32 s3, s3, s%d' % S_W)
    a('s_cmp_lg_u32 s3, 0')
    a('s_cselect_b64 s[42:43], -1, 0')
    for e in range(4):
        a('v_add_u32 v75, %d, v71' % (e + 7))
        a('v_cmp_ge_u32 vcc, 7, v75')
        a('v_cndmask_b32 v%d, v72, 0, vcc' % (BIASC + e))
        a('v_cndmask_b32 v76, 0, v%d, vcc' % (73 + (e & 1)))
        if e & 1:
            a('v_or_b32 v%d, v%d, v76' % (MASKC + (e >> 1), MASKC + (e >> 1)))
        else:
            a('v_mov_b32 v%d, v76' % (MASKC + (e >> 1)))
        a('v_cmp_le_i32 vcc, 16, v75')
        a('v_cndmask_b32 v%d, v72, 0, vcc' % (BIASP + e))
        a('v_cndmask_b32 v76, 0, v%d, vcc' % (73 + (e & 1)))
        if e & 1:
            a('v_or_b32 v%d, v%d, v76' % (MASKP + (e >> 1), MASKP + (e >> 1)))
        else:
            a('v_mov_b32 v%d, v76' % (MASKP + (e >> 1)))
        a('v_cndmask_b32 v%d, v72, v%d, s[42:43]' % (BIASP0 + e, BIASP + e))


def late_consts(a):
    a('v_lshrrev_b32 v162, 4, v0')
    a('v_lshlrev_b32 v162, 3, v162')
    make_srd(a, 8, 74, 1728 * 2)
    a('s_lshl_b32 s3, s%d, 6' % S_BLK)
    a('buffer_load_dwordx2 %s, v162, s[8:11], s3 offen' % vr(B1R, 2))
    a('buffer_load_dwordx2 %s, v162, s[8:11], s3 offen offset:32' % vr(B1R + 2, 2))
    make_srd(a, 8, 78, 640 * 2)
    for s in range(5):
        a('buffer_load_dwordx2 %s, v162, s[8:11], s%d offen offset:%d' % (vr(B2R + 2 * s, 2), S_COL, 32 * s))


AQ0, AQ1, AK, AV1, AV2, AO2 = 152, 153, 154, 155, 156, 157
C_SCALE = (20 ** -0.5) * math.log2(math.e)


def attn_addr(a, T):
    a('s_mul_i32 s47, s%d, %d' % (S_W, TP))
    a('s_add_u32 s47, s47, %d' % L_SCR)
    a('v_and_b32 v%d, 15, v0' % T)
    a('v_mul_u32_u24 v%d, 272, v%d' % (T, T))
    a('v_add_u32 v%d, s47, v%d' % (T, T))
    a('v_lshrrev_b32 v%d, 4, v0' % (T + 1))
    a('v_lshlrev_b32 v%d, 3, v%d' % (T + 1, T + 1))
    for reg, tab in ((AQ0, (0, 1, 4, 16)), (AQ1, (2, 3, 15, 16)), (AK, (5, 6, 9, 9))):
        c = sum(t << (8 * i) for i, t in enumerate(tab))
        a('s_mov_b32 s3, 0x%x' % c)
        a('v_bfe_u32 v%d, s3, v%d, 8' % (reg, T + 1))
        a('v_lshl_add_u32 v%d, v%d, 4, v%d' % (reg, reg, T))
    a('v_lshrrev_b32 v%d, 2, v0' % AV2)
    a('v_mul_u32_u24 v%d, 272, v%d' % (AV2, AV2))
    a('v_add_u32 v%d, s47, v%d' % (AV2, AV2))
    a('v_and_b32 v%d, 3, v0' % T)
    a('v_lshl_add_u32 v%d, v%d, 3, v%d' % (AV1, T, AV2))
    a('v_mov_b32 v%d, 0x%x' % (T, OOB))
    a('v_cmp_gt_u32 vcc, 16, v0')
    a('v_cndmask_b32 v%d, v%d, v1, vcc' % (AO2, T))
    a('s_lshl_b32 s47, s%d, 3' % S_TEAM)
    a('s_add_u32 s47, s47, s%d' % S_W)
    a('s_mul_i32 s47, s47, 20480')
    a('s_mul_i32 s3, s%d, 1280' % S_J)
    a('s_add_u32 s47, s47, s3')
    a('s_mul_i32 s3, s%d, %d' % (S_PASS, XSZ))
    a('s_add_u32 s47, s47, s3')
    a('s_add_u32 s47, s47, %d' % OB[0])
    a('s_mov_b32 s48, 0x%x' % f32bits(C_SCALE))


def attn_units(r, units, OUTS):
    for (b, h, Q, K, S) in units:
        off = b * 4 * TP
        tg = 'q%d%d' % (b, h)
        r('ds_read_b128 %s, v%d offset:%d' % (vr(Q, 4), AQ1 if h else AQ0, off + TP), tag=tg)
        r('ds_read_b128 %s, v%d offset:%d' % (vr(K, 4), AK, off + 80 * h), tag=tg)
        r('ds_read_b128 %s, v%d offset:%d' % (vr(K + 4, 4), AK, off + 80 * h + TP), tag=tg)
    for (b, h, Q, K, S) in units:
        off = b * 4 * TP
        r.wait_lg('q%d%d' % (b, h))
        r('v_mfma_f32_16x16x32_bf16 %s, %s, %s, %s' % (vr(S, 4), vr(K, 4), vr(Q, 4), vr(BIASP0 if b == 0 else BIASP, 4)))
        r('v_mfma_f32_16x16x32_bf16 %s, %s, %s, %s' % (vr(S + 4, 4), vr(K + 4, 4), vr(Q, 4), vr(BIASC, 4)))
    for (b, h, Q, K, S) in units:
        off = b * 4 * TP
        for i in range(2):
            r('ds_read_b64_tr_b16 %s, v%d offset:%d' % (vr(K + 2 * i, 2), AV1, off + i * TP + 112 + 80 * h), tag='v%d%d' % (b, h))
            r('ds_read_b64_tr_b16 %s, v%d offset:%d' % (vr(K + 4 + 2 * i, 2), AV2, off + i * TP + 152 + 80 * h), tag='v%d%d' % (b, h))

    def each(fn):
        for (b, h, Q, K, S) in units:
            fn(Q, S)
    for e in range(4):
        each(lambda Q, S: r('v_max_f32 v%d, v%d, v%d' % (S + e, S + e, S + 4 + e)))
    each(lambda Q, S: r('v_max3_f32 v%d, v%d, v%d, v%d' % (S + 4, S, S + 1, S + 2)))
    each(lambda Q, S: r('v_max_f32 v%d, v%d, v%d' % (S + 4, S + 4, S + 3)))
    Ss = [u[4] for u in units]
    A, B, C, D = [x + 4 for x in Ss]
    r('v_permlane32_swap_b32 v%d, v%d' % (A, B))
    r('v_permlane32_swap_b32 v%d, v%d' % (C, D))
    r('v_max_f32 v%d, v%d, v%d' % (A, A, B))
    r('v_max_f32 v%d, v%d, v%d' % (C, C, D))
    r('v_permlane16_swap_b32 v%d, v%d' % (A, C))
    r('v_max_f32 v%d, v%d, v%d' % (A, A, C))
    r('v_mul_f32 v%d, s48, v%d' % (A, A))
    r('v_mov_b32 v%d, v%d' % (C, A))
    r('v_permlane16_swap_b32 v%d, v%d' % (A, C))
    r('v_mov_b32 v%d, v%d' % (B, A))
    r('v_mov_b32 v%d, v%d' % (D, C))
    r('v_permlane32_swap_b32 v%d, v%d' % (A, B))
    r('v_permlane32_swap_b32 v%d, v%d' % (C, D))
    for e in range(4):
        each(lambda Q, S: r('v_fma_f32 v%d, v%d, s48, -v%d' % (S + e, S + e, S + 4)))
    for e in range(4):
        each(lambda Q, S: r('v_exp_f32 v%d, v%d' % (S + e, S + e)))
    for q in range(4):
        r('v_mov_b32 v%d, 0x%x' % (144 + q, ONES))
    for q in range(2):
        each(lambda Q, S: r('v_cvt_pk_bf16_f32 v%d, v%d, v%d' % (S + 4 + q, S + 2 * q, S + 2 * q + 1)))
    for q, (m, x) in enumerate(((MASKP, 0), (MASKP + 1, 1), (MASKC, 0), (MASKC + 1, 1))):
        each(lambda Q, S: r('v_and_b32 v%d, v%d, v%d' % (Q + q, S + 4 + x, m)))
    for (b, h, Q, K, S) in units:
        r.wait_lg('v%d%d' % (b, h))
        r('v_mfma_f32_16x16x32_bf16 %s, %s, %s, 0' % (vr(S, 4), vr(K, 4), vr(Q, 4)))
        r('v_mfma_f32_16x16x32_bf16 %s, %s, %s, 0' % (vr(S + 4, 4), vr(K + 4, 4), vr(Q, 4)))
    for (b, h, Q, K, S) in units:
        r('v_mfma_f32_16x16x32_bf16 %s, v[144:147], %s, 0' % (vr(K + 4, 4), vr(Q, 4)))
    for b in range(2):
        r('s_add_u32 s%d, s47, %d' % (S_QA - b, b * 4 * 20480))
    for (b, h, Q, K, S) in units:
        r('v_rcp_f32 v%d, v%d' % (K + 4, K + 4))
    for (b, h, Q, K, S) in units:
        for q in range(4):
            r('v_pk_mul_f32 %s, %s, %s op_sel_hi:[1,0]' % (vr(S + 2 * q, 2), vr(S + 2 * q, 2), vr(K + 4, 2)))
    for bb in range(2):
        OUT = OUTS[bb]
        for (b, h, Q, K, S) in units:
            if b != bb:
                continue
            for t in range(2):
                for q in range(2):
                    r('v_cvt_pk_bf16_f32 v%d, v%d, v%d' % (OUT + 4 * t + 2 * h + q, S + 4 * t + 2 * q, S + 4 * t + 2 * q + 1))
        r('buffer_store_dwordx4 %s, v1, s[4:7], s%d offen sc1' % (vr(OUT, 4), S_QA - bb), tag='pub')
        r('buffer_store_dwordx4 %s, v%d, s[4:7], s%d offen offset:1024 sc1' % (vr(OUT + 4, 4), AO2, S_QA - bb), tag='pub')


P3_PENDING_W2 = []


def gen_nsplit(a, which):
    p1 = which == 1
    WSL = WQ_SL if p1 else W1_SL
    wtag = 'wq' if p1 else 'w1'
    CS = CS1 if p1 else CS3
    G = OPT['g1'] if p1 else OPT['g3']
    NSET = G + 1
    ACC0 = 64
    FR = 104
    STP = 136
    PK = 140
    VB = 148
    VSW, VSR = 150, 151
    VSTW = 158
    SRL = list(range(96, 104)) + list(range(140, 148))
    T0 = FR
    st_i = 10 if p1 else 30
    NT = 9 if p1 else 8
    xin = XB[0] if p1 else XB[1]
    stin = STB[0] if p1 else STB[1]
    LEAD = OPT['lead']
    KC = 20 // G
    if p1:
        late = list(range(17 + OPT['burst4'], 40))
    else:
        late = []
        a.flush_m(pred=lambda g: g[-1][2] == wtag)

    def accset(T):
        return ACC0 + 8 * (T % NSET)

    a('s_mul_i32 s44, s%d, 5120' % S_W)
    a('s_mul_i32 s45, s%d, 163840' % S_TEAM)
    a('s_add_u32 s45, s45, s%d' % S_XOFF)
    per = 4 // G
    a('s_lshr_b32 s50, s%d, %d' % (S_W, {1: 2, 2: 1, 4: 0}[G]))
    a('s_and_b32 s51, s%d, %d' % (S_W, per - 1))
    a('s_mul_i32 s51, s51, 5120')
    a('s_mul_i32 s46, s50, 20480')
    a('s_add_u32 s46, s46, s45')
    a('s_add_u32 s46, s46, %d' % (xin - (20480 if p1 else 0)))
    if p1:
        a('s_cmp_eq_u32 s50, 0')
        a('s_cselect_b32 s46, s%d, s46' % S_HSRC)
    a('s_add_u32 s46, s46, s51')
    a('s_add_u32 s45, s45, s44')
    if p1:
        attn_addr(a, T0)
    a('v_lshrrev_b32 v%d, 4, v0' % T0)
    a('s_lshl_b32 s3, s%d, 2' % S_W)
    a('v_add_u32 v%d, s3, v%d' % (T0, T0))
    a('v_and_b32 v%d, 15, v0' % (T0 + 1))
    a('v_lshlrev_b32 v%d, 3, v%d' % (VSR, T0 + 1))
    a('v_lshl_add_u32 v%d, v%d, 10, v%d' % (T0 + 3, T0, VSR))
    a('v_add_u32 v%d, %d, v%d' % (VSR, L_STAT, VSR))
    a('v_min_u32 v%d, 11, v%d' % (VSTW, T0))
    a('v_lshl_add_u32 v%d, v%d, 7, v%d' % (VSTW, VSTW, VSR))
    a('s_lshl_b32 s40, s%d, 13' % S_TEAM)
    a('s_lshl_b32 s3, s%d, 18' % S_PASS)
    a('s_add_u32 s40, s40, s3')
    a('s_add_u32 s40, s40, %d' % (stin - (1024 if p1 else 0)))
    a('v_mov_b32 v%d, s40' % (T0 + 4))
    if p1:
        a('v_mov_b32 v%d, s%d' % (T0 + 5, S_HSTS))
        a('v_cmp_eq_u32 vcc, 0, v%d' % T0)
        a('v_cndmask_b32 v%d, v%d, v%d, vcc' % (T0 + 4, T0 + 4, T0 + 5))
    a('v_mov_b32 v%d, 0x%x' % (T0 + 5, OOB))
    a('v_cmp_gt_u32 vcc, %d, v%d' % (NT, T0))
    a('v_cndmask_b32 v%d, v%d, v%d, vcc' % (T0 + 4, T0 + 5, T0 + 4))
    a('v_add_u32 v%d, v%d, v%d' % (T0 + 3, T0 + 3, T0 + 4))
    a('v_mov_b32 v%d, v1' % VB)
    a('v_add_u32 v%d, %d, v1' % (VB + 1, 3 * SLOT))
    if p1:
        a('v_mul_u32_u24 v%d, 272, v%d' % (VSW, T0 + 1))
        a('v_lshl_add_u32 v%d, v%d, 4, v%d' % (VSW, T0, VSW))
        a('v_add_u32 v%d, %d, v%d' % (VSW, L_SCR, VSW))
    else:
        a('s_lshl_b32 s41, s%d, 3' % S_TEAM)
        a('s_mul_i32 s41, s41, 54')
        a('s_add_u32 s41, s41, s%d' % S_BLK)
        a('s_lshl_b32 s41, s41, 10')
        a('s_mul_i32 s3, s%d, %d' % (S_PASS, HSZ))
        a('s_add_u32 s41, s41, s3')
        a('s_add_u32 s41, s41, %d' % HB[0])
    a('s_mov_b32 s42, 0x%x' % f32bits(-1.0 / 640.0))
    a('s_mov_b32 s43, 0x%x' % f32bits(1e-5))

    def colsum():
        for q in range(4):
            a('v_mov_b32 v%d, 0x%x' % (STP + q, ONES))
        if not p1:
            for q in (3, 2, 1, 0):
                a('v_and_b32 v%d, 0xffff0000, v%d' % (B1R + 1 + 2 * q, B1R + q))
                a('v_lshlrev_b32 v%d, 16, v%d' % (B1R + 2 * q, B1R + q))
            a.wait_vm(wtag)
        for ks in range(20):
            for t in range(2):
                d = vr(PK + 4 * t, 4)
                a('v_mfma_f32_16x16x32_bf16 %s, %s, %s, %s' % (d, slot_reg(WSL[ks * 2 + t]), vr(STP, 4), '0' if ks == 0 else d))
        for q in range(8):
            a('v_mov_b32 v%d, v%d' % (CS + q, PK + q))

    def pass0(fn):
        L = a.newlabel('p0')
        a('s_cmp_lg_u32 s%d, 0' % S_PASS)
        a('s_cbranch_scc1 %s' % L)
        vm0 = list(a.vm)
        fn()
        a.label(L)
        a.vm = vm0

    if p1:
        LS = a.newlabel('p1_nowait')
        a('s_cmp_eq_u32 s%d, 0' % S_PASS)
        a('s_cbranch_scc1 %s' % LS)
        poll(a, S_TFL, 's%d' % S_PH)
        LH = a.newlabel('p1_nohalo')
        a('s_and_b32 s49, s%d, 7' % S_TEAM)
        a('s_cmp_eq_u32 s49, 0')
        a('s_cbranch_scc1 %s' % LH)
        a('s_lshl_b32 s49, s%d, 7' % S_TEAM)
        a('s_add_u32 s49, s49, %d' % (HF - 128))
        poll(a, 49, '1', lanes=0xff)
        a.label(LH)
        LG = a.newlabel('p1_go')
        a('s_branch %s' % LG)
        a.label(LS)
        first_deps(a)
        a.label(LG)
        a.vm = []
    else:
        pass0(colsum)
        poll(a, S_TFL, 's%d' % S_PH)
    stamp(a, st_i)
    LSKIP = None
    if not p1:
        LSKIP = a.newlabel('p3_skip')
        a('s_cmp_ge_u32 s%d, 14' % S_J)
        a('s_cbranch_scc1 %s' % LSKIP)

    def unit_dma(u):
        gs = []
        if u < G:
            sb, go = 46, u * KC * 1024
        else:
            sb, go = 45, xin + (u - 1 if p1 else u) * SLOT
        for i in range(5):
            g = []
            if i % 4 == 0:
                g.append(('i', 's_add_u32 m0, s44, %d' % ((u % NSLOT) * SLOT + i * 1024), None))
                g.append(('i', 's_add_u32 s%d, s%d, %d' % (S_DMA, sb, go + i * 1024), None))
            g.append(('i', 'buffer_load_dwordx4 v1, s[4:7], s%d offen offset:%d%s lds' % (S_DMA, (i % 4) * 1024, LDM()), 'd%d' % u))
            gs.append(g)
        return gs

    seq = []
    for u in range(NT):
        if u < G:
            for kk in range(KC):
                for tl in range(G):
                    seq.append((u, tl, u * KC + kk, tl * KC + kk))
        else:
            for ks in range(20):
                seq.append((u, u, ks, ks))

    lateg = {}
    for g, f in zip(wloads(S_WQ, WQ_SL, late, tagp='wq'), late):
        c = min((f // 2) // KC, G - 1)
        g[-1] = ('i', g[-1][1], 'wq%d' % c)
        lateg.setdefault(c, []).append(g)

    now(a, lateg.get(0, []))
    now(a, unit_dma(0))
    stl = [[('i', 'buffer_load_dwordx2 %s, v%d, s[4:7], 0 offen offset:%d%s' % (vr(SRL[2 * q], 2), 159, 128 * q, LDM()), 'dst')] for q in range(8)]
    a('v_mov_b32 v159, v%d' % (T0 + 3))
    inl = (not p1) and OPT['st3'] and G >= 2
    if not inl:
        now(a, stl)
    now(a, unit_dma(1))
    if p1:
        pass0(lambda: now(a, wloads(S_WQ, WQ_SL, range(10, 17 + OPT['burst4']), tagp='wq')))
        a('s_mov_b32 s3, 0x%x' % OOB)
        a('buffer_load_dword v163, v%d, s[4:7], s3 offen' % VZ, tag='wqE')
    r = Rec()
    r.wait_vm('dst')
    for lvl in (8, 4, 2):
        for q in range(lvl):
            r('v_add_f32 v%d, v%d, v%d' % (SRL[q], SRL[q], SRL[lvl + q]))
    S0, S1 = SRL[0], SRL[1]
    r('v_mul_f32 v%d, s42, v%d' % (S0, S0))
    r('v_mul_f32 v%d, s42, v%d' % (S1, S1))
    r('v_fma_f32 v%d, v%d, v%d, v%d' % (S1, S0, S0, S1))
    r('v_min_f32 v%d, 0, v%d' % (S1, S1))
    r('v_cvt_pk_bf16_f32 v%d, v%d, v%d' % (S1, S0, S1))
    r('v_lshlrev_b32 v%d, 16, v%d' % (S0, S1))
    r('v_and_b32 v%d, 0xffff0000, v%d' % (S1, S1))
    r('v_sub_f32 v%d, s43, v%d' % (S1, S1))
    r('v_cvt_pk_bf16_f32 v%d, 0, v%d' % (S1, S1))
    r('v_sqrt_f32 v%d, v%d' % (S1, S1))
    r('v_cvt_pk_bf16_f32 v%d, 0, v%d' % (S1, S1))
    r('v_rcp_f32 v%d, v%d' % (S1, S1))
    r('ds_write_b64 v%d, %s' % (VSTW, vr(S0, 2)), tag='stw')
    stats_items = r.items
    a.wait_vm('d0')
    a.wait_lg_all()
    a('s_barrier')
    stamp(a, st_i + 1)
    held = []
    if p1:
        held = wloads(S_WO, WO_SL, range(25), tagp='wo') + wloads(S_W1, W1_SL, range(22), tagp='w1')
    a.qm = (stl if inl else []) + lateg.get(1, []) + unit_dma(2) + lateg.get(2, []) + unit_dma(3) + lateg.get(3, []) + (unit_dma(4) if LEAD == 4 else []) + a.qm

    NF = NT * 20
    DEPTH = 6

    def rd(n):
        u, tl, ks, blk = seq[n]
        sl = u % NSLOT
        return ('i', 'ds_read_b128 %s, v%d offset:%d' % (vr(FR + 4 * (n % 8), 4), VB + sl // 3, (sl % 3) * SLOT + blk * 1024), 'f%d' % n)

    def epilogue(r, T, pk):
        b = accset(T)
        sp = STP + 2 * (T & 1)
        P = PK + 4 * (T & 1)
        if not p1:
            r('s_add_u32 s%d, s41, %d' % (S_QV, T * 55296))
        r.wait_lg('sp%d' % T)
        if pk:
            for q in range(4):
                r('v_pk_fma_f32 %s, %s, %s, %s op_sel_hi:[0,1,1]' % (vr(b + 2 * q, 2), vr(sp, 2), vr(CS + 2 * q, 2), vr(b + 2 * q, 2)))
            if p1:
                for q in range(4):
                    r('v_pk_mul_f32 %s, %s, %s op_sel:[1,0]' % (vr(b + 2 * q, 2), vr(sp, 2), vr(b + 2 * q, 2)))
            else:
                for q in range(4):
                    r('v_pk_fma_f32 %s, %s, %s, %s op_sel:[1,0,0]' % (vr(b + 2 * q, 2), vr(sp, 2), vr(b + 2 * q, 2), vr(B1R + 2 * q, 2)))
                for e in range(8):
                    r('v_max_f32 v%d, 0, v%d' % (b + e, b + e))
                for q in range(4):
                    r('v_pk_mul_f32 %s, %s, %s' % (vr(b + 2 * q, 2), vr(b + 2 * q, 2), vr(b + 2 * q, 2)))
        else:
            for e in range(8):
                r('v_fmac_f32 v%d, v%d, v%d' % (b + e, sp, CS + e))
            if p1:
                for e in range(8):
                    r('v_mul_f32 v%d, v%d, v%d' % (b + e, b + e, sp + 1))
            else:
                for e in range(8):
                    r('v_fma_f32 v%d, v%d, v%d, v%d' % (b + e, b + e, sp + 1, B1R + e))
                for e in range(8):
                    r('v_max_f32 v%d, 0, v%d' % (b + e, b + e))
                for e in range(8):
                    r('v_mul_f32 v%d, v%d, v%d' % (b + e, b + e, b + e))
        if T + 2 < NT:
            r.items.append(sp_read(T + 2))
        for q in range(4):
            r('v_cvt_pk_bf16_f32 v%d, v%d, v%d' % (P + q, b + 2 * q, b + 2 * q + 1))
        if p1:
            r('ds_write_b128 v%d, %s offset:%d' % (VSW, vr(P, 4), T * TP), tag='sw')
        else:
            r('buffer_store_dwordx4 %s, v1, s[4:7], s%d offen sc1' % (vr(P, 4), S_QV), tag='pub')
        r.items.append(('mark', T, None))

    def sp_read(T):
        return ('i', 'ds_read_b64 %s, v%d offset:%d' % (vr(STP + 2 * (T & 1), 2), VSR, T * 128), 'sp%d' % T)

    def flush_until(T):
        while any(it[0] == 'mark' and it[1] == T for it in a.qv):
            a.emit_item(a.qv.pop(0))

    if OPT['tstamp'] // 10 == which:
        a('s_memtime s[64:65]')
    for n in range(DEPTH):
        a.emit_item(rd(n))
    a.wait_lg('f1')
    nread = DEPTH
    quiet = OPT['quiet1'] if p1 else OPT['quiet3']
    a.pace = OPT['pace']
    edone = 0
    for n in range(NF):
        u, T, ks, blk = seq[n]
        pos = n % 20
        acc = accset(T)
        if pos == 0:
            if u >= NSET:
                flush_until(u - NSET)
            if u < G and u >= 1:
                a.flush_m(pred=lambda g: g[-1][2] == 'wq%d' % u)
                a.wait_vm('wq%d' % u)
            if p1 and u == 1:
                a.wait_vm('wqE')
                lg0 = list(a.lg)
                pass0(lambda: first_unit1(a))
                a.lg = lg0
            if p1 and u == OPT['lsu']:
                a.wait_vm('ls')
                pass0(lambda: late_sync(a, 0, 96))
            if u == G:
                if p1:
                    pass0(colsum)
                a.emit_item(sp_read(0))
                a.emit_item(sp_read(1))
        if p1 and n == OPT['lsu'] * 20 - 12:
            late_issue(a, 0, 96)
        if p1 and n == 8 * 20 - 30:
            late_issue(a, 1, 160)
        if p1 and n == 8 * 20 - 8:
            a.wait_vm('ls')
            pass0(lambda: late_sync(a, 1, 160))
        a.quiet = (NF - n) * 2 <= quiet
        for t in range(2):
            fg = []
            wait = None
            d = vr(acc + 4 * t, 4)
            if t == 0 and nread < NF:
                if nread % 20 == 0:
                    Tn = nread // 20
                    if Tn == (2 if inl else 1):
                        a.flush_v()
                        a.wait_lg('stw')
                    a.flush_m(pred=lambda g: g[-1][2] == 'd%d' % Tn)
                    a.wait_vm('d%d' % Tn)
                    a('s_barrier')
                    if OPT['tstamp'] == which * 10 + 3:
                        a('s_memtime s[%d:%d]' % (64 + 2 * Tn, 65 + 2 * Tn))
                    if p1 and Tn == OPT['lsu'] + 1:
                        a.qm += held
                    if Tn + LEAD < NT:
                        ps = max([i + 1 for i, g in enumerate(a.qm) if g[-1][2].startswith('d') or g[-1][2][:2] == 'wq'] + [0])
                        a.qm[ps:ps] = unit_dma(Tn + LEAD)
                fg.append(rd(nread))
                nread += 1
            if t == 1 and (n & 1) == 1 and n + 1 < NF:
                wait = ('wl', 'f%d' % min(n + 2, NF - 1), None)
            a.mfma('v_mfma_f32_16x16x32_bf16 %s, %s, %s, %s' % (d, slot_reg(WSL[ks * 2 + t]), vr(FR + 4 * (n % 8), 4), '0' if ks == 0 else d), fg, wait)
        if (n == 22 and inl) or (n == 1 and not inl):
            a.flush_m(pred=lambda g: g[-1][2] == 'dst')
            a.qv += stats_items
        if pos == 3 and u >= G:
            while edone < u:
                r = Rec()
                epilogue(r, edone, False)
                a.qv += r.items
                edone += 1
    a.quiet = False
    a.flush_v()
    if OPT['tstamp'] // 10 == which:
        a('s_memtime s[82:83]')
        a('s_waitcnt lgkmcnt(0)')
        a.lg = []
        a('s_lshl_b32 s99, s2, 2')
        a('s_add_u32 s99, s99, s%d' % S_W)
        a('s_lshl_b32 s99, s99, 9')
        a('s_lshl_b32 s98, s%d, 8' % S_PASS)
        a('s_add_u32 s99, s99, s98')
        a('s_add_u32 s99, s99, %d' % STAMP_BASE)
        a('s_mov_b64 exec, 1')
        for q in range(10):
            a('v_mov_b32 v163, s%d' % (64 + 2 * q))
            a('buffer_store_dword v163, v%d, s[4:7], s99 offen offset:%d' % (VZ, 4 * q), tag='stamp')
        a('s_mov_b64 exec, -1')
    stamp(a, st_i + 2)
    if p1:
        a.qm += wloads(S_W1, W1_SL, range(22, 40), tagp='w1') + w2loads(range(22))
    else:
        a.qm += w2loads(range(47, 70)) + wloads(S_WQ, WQ_SL, range(17), srd='s[16:19]', tagp='wq')
    if p1:
        a.flush_m(OPT['tail1'])
    r = Rec()
    epilogue(r, NT - 1, True)
    a.run(r, every=0)
    if p1:
        a.wait_lg_all()
        a('s_barrier')
        stamp(a, st_i + 3)
        r = Rec()
        attn_units(r, [(0, 0, 64, 68, 76), (0, 1, 84, 88, 96), (1, 0, 104, 108, 116), (1, 1, 124, 128, 136)], (64, 104))
        half = len(r.items) // 2
        r2 = Rec()
        r2.items = r.items[half:]
        r.items = r.items[:half]
        a.run(r, every=OPT['aevery'])
        a.run(r2, every=0)
        stamp(a, st_i + 4)
        publish(a)
        a.flush_m(OPT['burst1'])
    else:
        LJ = a.newlabel('p3_join')
        stamp(a, st_i + 4)
        publish(a)
        a.flush_m(pred=lambda g: g[-1][2] == 'w2')
        a('s_branch %s' % LJ)
        vm_main = list(a.vm)
        a.label(LSKIP)
        a.vm = []
        publish(a)
        now(a, w2loads(P3_PENDING_W2 + list(range(47, 70))))
        a.label(LJ)
        a.vm = vm_main
    stamp(a, st_i + 5)


def gen_ksplit(a, which):
    p2 = which == 2
    NK = 5 if p2 else 14
    KS = 20 if p2 else 54
    WSL = WO_SL if p2 else W2_SL
    wtag = 'wo' if p2 else 'w2'
    ACC = [64, 84]
    RING = 104
    NR = 14
    VW = 160
    VRD = 161
    st_i = 20 if p2 else 40
    a.flush_m(pred=lambda g: g[-1][2] == wtag)
    a('s_lshl_b32 s40, s%d, 3' % S_TEAM)
    a('s_lshr_b32 s3, s%d, 3' % S_J)
    a('s_lshl_b32 s3, s3, 2')
    a('s_add_u32 s40, s40, s3')
    a('s_mul_i32 s40, s40, %d' % KS)
    if p2:
        a('s_mul_i32 s3, s%d, 5' % S_W)
        a('s_add_u32 s40, s40, s3')
    else:
        a('s_add_u32 s40, s40, s%d' % S_KS0)
    a('s_lshl_b32 s40, s40, 10')
    a('s_mul_i32 s3, s%d, %d' % (S_PASS, XSZ if p2 else HSZ))
    a('s_add_u32 s40, s40, s3')
    a('s_add_u32 s40, s40, %d' % (OB[0] if p2 else HB[0]))
    for i in range(4):
        a('s_add_u32 s3, s%d, %d' % (S_W, 1 + i))
        a('s_and_b32 s3, s3, 3')
        a('s_mul_i32 s%d, s3, %d' % (41 + i, KS * 1024))
        a('s_add_u32 s%d, s%d, s40' % (41 + i, 41 + i))
        if i < 3:
            a('s_mul_i32 s%d, s3, 15360' % (52 + i))
        if not p2:
            a('s_add_u32 s%d, s%d, %d' % (48 + i, 41 + i, 13 * 1024))
            a('s_cmp_ge_u32 s%d, 2' % S_W)
            a('s_cselect_b32 s%d, %d, s%d' % (48 + i, OOB, 48 + i))
    a('s_mul_i32 s3, s%d, 15360' % S_W)
    a('v_add_u32 v%d, s3, v1' % VRD)
    xout = XB[1] if p2 else XB[2]
    stout = STB[1] if p2 else STB[2]
    a('s_add_u32 s36, s%d, s%d' % (S_XT, S_XOFF))
    a('s_add_u32 s36, s36, %d' % xout)
    a('s_lshl_b32 s3, s%d, 18' % S_PASS)
    a('s_add_u32 s37, s%d, s3' % S_STT)
    a('s_add_u32 s37, s37, %d' % stout)
    if not p2:
        a('s_lshl_b32 s38, s%d, 7' % S_TEAM)
        a('s_lshl_b32 s3, s%d, 2' % S_CG)
        a('s_add_u32 s38, s38, s3')
        a('s_add_u32 s38, s38, %d' % HF)
        a('s_cmp_eq_u32 s%d, 7' % S_MT)
        a('s_cselect_b32 s38, s38, %d' % OOB)
    poll(a, S_TFL, 's%d' % S_PH)
    stamp(a, st_i)
    seq = [(i, k) for i in range(4) for k in range(NK)]

    def ld(n):
        i, k = seq[n]
        g = []
        reg = vr(RING + 4 * (n % NR), 4)
        if (not p2) and k == 13:
            g.append(('i', 'buffer_load_dwordx4 %s, v1, s[4:7], s%d offen%s' % (reg, 48 + i, LDM()), 'a%d' % n))
            return g
        if k % 4 == 0:
            g.append(('i', 's_add_u32 s%d, s%d, %d' % (S_DMA, 41 + i, k * 1024), None))
        g.append(('i', 'buffer_load_dwordx4 %s, v1, s[4:7], s%d offen offset:%d%s' % (reg, S_DMA, (k % 4) * 1024, LDM()), 'a%d' % n))
        return g

    nld = OPT['kfirst']
    for n in range(nld):
        for it in ld(n):
            a.emit_item(it)
    own = ACC[1]
    ini = Rec()
    for q in range(10):
        ini('v_lshlrev_b32 v%d, 16, v%d' % (own + 2 * q, XRES + q))
        ini('v_and_b32 v%d, 0xffff0000, v%d' % (own + 2 * q + 1, XRES + q))
    if not p2:
        for q in range(10):
            ini('v_lshlrev_b32 v162, 16, v%d' % (B2R + q))
            ini('v_add_f32 v%d, v%d, v162' % (own + 2 * q, own + 2 * q))
            ini('v_and_b32 v162, 0xffff0000, v%d' % (B2R + q))
            ini('v_add_f32 v%d, v%d, v162' % (own + 2 * q + 1, own + 2 * q + 1))
    n = 0
    PS = ACC[0]
    for i in range(4):
        acc = ACC[i & 1]
        cnt = 0
        a.flush_v()
        for k in range(NK):
            a.quiet = (len(seq) - n) * 5 <= OPT['quiet4']
            a.wait_vm('a%d' % n)
            for s in range(5):
                d = vr(acc + 4 * s, 4)
                fg = []
                if nld < len(seq) and ((s == 4 and nld <= n + NR) or (s in (0, 2) and nld < n + NR)):
                    fg = ld(nld)
                    nld += 1
                first = (k == 0 and i != 3)
                a.mfma('v_mfma_f32_16x16x32_bf16 %s, %s, %s, %s' % (d, slot_reg(WSL[k * 5 + s]), vr(RING + 4 * (n % NR), 4), '0' if first else d), fg)
                cnt += 1
                if cnt == 3 and i >= 1:
                    pacc = ACC[(i - 1) & 1]
                    r = Rec()
                    r('v_add_u32 v%d, s%d, v1' % (VW, 52 + i - 1))
                    for s2 in range(5):
                        r('ds_write_b128 v%d, %s offset:%d' % (VW, vr(pacc + 4 * s2, 4), ((i - 1) * 5 + s2) * 1024), tag='pw')
                    if i == 2:
                        r.delay(3)
                        r.wait_lg('pw')
                        r.items += ini.items
                    a.qv += r.items
                if i == 3 and cnt == (14 if p2 else 30):
                    a.flush_v()
                    a.wait_lg_all()
                    a('s_barrier')
                    r = Rec()
                    for s2 in range(5):
                        r('ds_read_b128 %s, v%d offset:%d' % (vr(PS + 4 * s2, 4), VRD, s2 * 1024), tag='pr0')
                    a.qv += r.items
            n += 1
    a.quiet = False
    a.flush_v()
    stamp(a, st_i + 1)
    if p2:
        a.qm += w2loads(range(22, 47))
    else:
        a.qm += wloads(S_WQ, WQ_SL, range(17, 17 + OPT['burst4']), srd='s[16:19]', tagp='wq')
    for src in (1, 2):
        for s2 in range(5):
            a('ds_read_b128 %s, v%d offset:%d' % (vr(RING + (src - 1) * 20 + 4 * s2, 4), VRD, (src * 5 + s2) * 1024), tag='pr%d' % src)
    a.flush_m(OPT['tail2'] if p2 else OPT['tail4'])
    tile5_voff(a, 144, 145)
    stat_voff(a, 145, 146)
    a.wait_lg('pr0')
    for q in range(10):
        a('v_pk_add_f32 %s, %s, %s' % (vr(own + 2 * q, 2), vr(own + 2 * q, 2), vr(PS + 2 * q, 2)))
    for src in (1, 2):
        a.wait_lg('pr%d' % src)
        for q in range(10):
            a('v_pk_add_f32 %s, %s, %s' % (vr(own + 2 * q, 2), vr(own + 2 * q, 2), vr(RING + (src - 1) * 20 + 2 * q, 2)))
    for q in range(10):
        a('v_cvt_pk_bf16_f32 v%d, v%d, v%d' % (XRES + q, own + 2 * q, own + 2 * q + 1))
    LF = None
    if not p2:
        LF = a.newlabel('final')
        a('s_cmp_eq_u32 s%d, 1' % S_PASS)
        a('s_cbranch_scc1 %s' % LF)
    store_tile(a, XRES, 36, 144)
    tile_stats(a, XRES, 64)
    a('buffer_store_dwordx2 v[64:65], v145, s[4:7], s37 offen sc1', tag='pub')
    stamp(a, st_i + 2)
    publish(a)
    if not p2:
        a('s_mov_b64 exec, 1')
        a('buffer_store_dword v162, v%d, s[4:7], s38 offen sc1' % VZ)
        a('s_mov_b64 exec, -1')
    else:
        a.flush_m(OPT['burst2'])
    stamp(a, st_i + 3)
    return LF


def main(out):
    global P3_PENDING_W2
    a = Sched()
    name = KNAME + '_kernel'
    a.raw('; @launch grid=(256,1,1) block=(256,1,1) lds=%d' % LDS_SIZE)
    a.raw('.amdgcn_target "amdgcn-amd-amdhsa--gfx950"')
    a.raw('.text')
    a.raw('.globl %s' % name)
    a.raw('.p2align 8')
    a.raw('.type %s,@function' % name)
    a.raw('%s:' % name)
    END = 'k_end'
    gen_prologue(a, END)
    gen_prep(a)
    gen_setup(a)
    gen_roles(a)
    stamp(a, 4)
    a.label('pass_loop')
    gen_nsplit(a, 1)
    gen_ksplit(a, 2)
    a.flush_m(pred=lambda g: g[-1][2] == 'w1')
    pend = []
    for g in a.qm:
        reg = g[-1][1].split()[1].rstrip(',')
        pend.append([i for i in range(70) if slot_reg(W2_SL[i]) == reg][0])
    P3_PENDING_W2 = pend
    a.qm = w2loads(pend)
    gen_nsplit(a, 3)
    LF = gen_ksplit(a, 4)
    a.flush_m()
    a('s_mov_b32 s%d, 1' % S_PASS)
    a('s_mov_b32 s%d, %d' % (S_XOFF, 2 * XSZ))
    a('s_mov_b32 s18, 0')
    a('s_add_u32 s%d, s%d, %d' % (S_HSRC, S_HSRC, 2 * XSZ))
    a('s_add_u32 s%d, s%d, %d' % (S_HSTS, S_HSTS, 2 * STSZ))
    a('s_branch pass_loop')
    a.label(LF)
    rowmajor_voff(a, 64, 65)
    for s in range(5):
        a('buffer_store_dwordx2 %s, v64, s[12:15], s%d offen offset:%d' % (vr(XRES + 2 * s, 2), S_RM, 32 * s))
    stamp(a, 50)
    a.label(END)
    a('s_endpgm')
    a.raw('code_end:')
    a.raw('.section .rodata,"a"')
    a.raw('.p2align 6')
    a.raw('.amdhsa_kernel %s' % name)
    a.raw('  .amdhsa_next_free_vgpr 512')
    a.raw('  .amdhsa_next_free_sgpr 102')
    a.raw('  .amdhsa_accum_offset 256')
    a.raw('  .amdhsa_group_segment_fixed_size 0')
    a.raw('  .amdhsa_kernarg_size 88')
    a.raw('  .amdhsa_user_sgpr_count 2')
    a.raw('  .amdhsa_user_sgpr_kernarg_segment_ptr 1')
    a.raw('  .amdhsa_system_sgpr_workgroup_id_x 1')
    a.raw('.end_amdhsa_kernel')
    open(out, 'w').write(a.text())
    print('instructions:', a.nins, 'ws end', WS_END)


if __name__ == '__main__':
    out = sys.argv[1] if len(sys.argv) > 1 else 'cdna_kernels/%s.s' % KNAME
    for o in sys.argv[2:]:
        if '=' in o:
            k, v = o.split('=')
            OPT[k] = int(v)
        else:
            OPT[o] = True
    main(out)
```
